```python
import torch

def _softmax(x, axis=-1):
    return torch.softmax(x, dim=axis)
def _gelu(x):
    return torch.nn.functional.gelu(x, approximate="tanh")
def _silu(x):
    return torch.nn.functional.silu(x)
def _sigmoid(x):
    return torch.sigmoid(x)
def _layernorm(x, axis=-1, eps=1e-5):
    m = x.mean(dim=axis, keepdim=True)
    v = x.var(dim=axis, keepdim=True, unbiased=False)
    return (x - m) / torch.sqrt(v + eps)
def _scatter_add(tgt, idx, src, axis=0):
    return tgt.clone().index_add_(axis, idx, src)
def _segment_sum(src, seg, n):
    out = torch.zeros((n,) + src.shape[1:], dtype=src.dtype)
    return out.index_add_(0, seg, src)
def _pad(x, pw):
    flat = tuple(v for pair in reversed(pw) for v in pair)
    return torch.nn.functional.pad(x, flat)

kernel_name = 'gated_mix__softmax_full_mha__mixer_s_mlp__prompt'

def setup_inputs():

    _w = (lambda a: (lambda t: t.to(torch.bfloat16) if t.is_floating_point() else t)(torch.as_tensor(a)))
    def _A_setup():
        B, S, D = 1, 2048, 1024
        return {
            "x": _w((lambda *s: torch.randn(*s, dtype=torch.bfloat16) * 0.1)(B, S, D)),
            "wqkv": _w((lambda *s: torch.randn(*s, dtype=torch.bfloat16) * 0.4)(D, 3 * D)),
            "wo": _w((lambda *s: torch.randn(*s, dtype=torch.bfloat16) * 0.4)(D, D)),
        }
    _A_in = _A_setup()

    def _B_setup():
        B, S, D, F = 1, 2048, 1024, 3584
        return {
            "x":  _w((lambda *s: torch.randn(*s, dtype=torch.bfloat16) * 0.1)(B, S, D)),
            "w1": _w((lambda *s: torch.randn(*s, dtype=torch.bfloat16) * 3.2)(D, D) * (D ** -0.5)),
            "w2": _w((lambda *s: torch.randn(*s, dtype=torch.bfloat16) * 3.2)(D, D) * (D ** -0.5)),
            "w3": _w((lambda *s: torch.randn(*s, dtype=torch.bfloat16) * 3.2)(D, F) * (D ** -0.5)),
            "w4": _w((lambda *s: torch.randn(*s, dtype=torch.bfloat16) * 3.2)(F, D) * (F ** -0.5)),
        }
    _B_in = _B_setup()

    return {
        "A_x": _A_in["x"],
        "A_wqkv": _A_in["wqkv"],
        "A_wo": _A_in["wo"],
        "B_x": _B_in["x"],
        "B_w1": _B_in["w1"],
        "B_w2": _B_in["w2"],
        "B_w3": _B_in["w3"],
        "B_w4": _B_in["w4"],
        "gate_w": _w((lambda *s: torch.randn(*s, dtype=torch.bfloat16) * 0.4)(1024) * 16.0),
    }

def reference(A_x, A_wqkv, A_wo, B_x, B_w1, B_w2, B_w3, B_w4, gate_w):
    def _A_ref(x, wqkv, wo):
        B, S, D = x.shape
        H = 32; Dh = D // H
        qkv = (lambda x, *d: x.permute(*d))((x @ wqkv).reshape(B, S, 3, H, Dh), 2, 0, 3, 1, 4)
        q, k, v = qkv[0], qkv[1], qkv[2]
        scale = Dh ** -0.5
        scores = torch.einsum("bhqd,bhkd->bhqk", q, k) * scale
        p = _softmax(scores, axis=-1)
        o = torch.einsum("bhqk,bhkd->bhqd", p, v)
        return (lambda x, *d: x.permute(*d))(o, 0, 2, 1, 3).reshape(B, S, D) @ wo

    def _B_ref(x, w1, w2, w3, w4):
        B, S, D = x.shape
        h = _gelu(_layernorm(x, axis=-1) @ w1)
        c = D // 4
        g0 = _pad(h[:, :, 0*c:1*c], ((0, 0), (1, 0), (0, 0)))[:, :S, :]
        g1 = _pad(h[:, :, 1*c:2*c], ((0, 0), (0, 1), (0, 0)))[:, 1:, :]
        g2 = _pad(h[:, :, 2*c:3*c], ((0, 0), (2, 0), (0, 0)))[:, :S, :]
        g3 = _pad(h[:, :, 3*c:   ], ((0, 0), (0, 2), (0, 0)))[:, 2:, :]
        hs = torch.concatenate([g0, g1, g2, g3], axis=-1) @ w2
        x1 = x + hs
        h2 = _gelu(_layernorm(x1, axis=-1) @ w3) @ w4
        return x1 + h2

    x = A_x
    g = _sigmoid((x * gate_w).sum(-1, keepdims=True))
    a = _A_ref(x, A_wqkv, A_wo)
    b = _B_ref(x, B_w1, B_w2, B_w3, B_w4)
    return g * a + (1 - g) * b
```

```python
from dsl import *
import os
EXP = os.environ.get('EXP', '').split(',')
S, D, H, DH, F = 2048, 1024, 32, 32, 3584
KA_X, KA_WQKV, KA_WO, KA_BX, KA_W1, KA_W2, KA_W3, KA_W4, KA_G, KA_OUT, KA_DBG, KA_WS = [8*i for i in range(12)]
WS_Q   = 0x0000000
WS_KV  = 0x0400000
WS_H1  = 0x0C00000
WS_X1  = 0x1000000
WS_HO  = 0x1400000
HO_PANEL = 144 * 8192
WS_G   = 0x2600000
WS_ST  = 0x2610000
WS_CS3 = 0x2700000
WS_END = 0x2800000

GELU_C0 = -2.0 * 1.4426950408889634 * 0.7978845608028654
GELU_C1 = GELU_C0 * 0.044715

def kernel_header(A, name):
    A.lines.append(f".p2align 8")
    A.lines.append(f".globl {name}")
    A.lines.append(f".type {name},@function")
    A.lines.append(f"{name}:")

def kernel_desc(name, vgpr, sgpr=96):
    acc = (vgpr + 3) // 4 * 4
    return f""".p2align 6
.amdhsa_kernel {name}
  .amdhsa_next_free_vgpr {vgpr}
  .amdhsa_next_free_sgpr {sgpr}
  .amdhsa_accum_offset {acc}
  .amdhsa_group_segment_fixed_size 0
  .amdhsa_kernarg_size 96
  .amdhsa_user_sgpr_count 2
  .amdhsa_user_sgpr_kernarg_segment_ptr 1
  .amdhsa_system_sgpr_workgroup_id_x 1
  .amdhsa_float_denorm_mode_32 {0 if "nodenorm" in EXP else 3}
.end_amdhsa_kernel
"""

def gelu(A, regs, tmp, sC0, sC1):
    n = len(regs)
    for r, t in zip(regs, tmp): A(f"v_mul_f32 v{t}, v{r}, v{r}")
    for r, t in zip(regs, tmp): A(f"v_fma_f32 v{t}, v{t}, s{sC1}, v{sC0}")
    for r, t in zip(regs, tmp): A(f"v_mul_f32 v{t}, v{t}, v{r}")
    for r, t in zip(regs, tmp): A(f"v_exp_f32 v{t}, v{t}")
    if n < 2: A("s_nop 0")
    for r, t in zip(regs, tmp): A(f"v_add_f32 v{t}, 1.0, v{t}")
    for r, t in zip(regs, tmp): A(f"v_rcp_f32 v{t}, v{t}")
    if n < 2: A("s_nop 0")
    for r, t in zip(regs, tmp): A(f"v_mul_f32 v{r}, v{r}, v{t}")

def compute_loop(A, NT, NN, KS, T, acc, XB, WB, xread, wread, advance, swapped=(), bar_after=2, sCnt=40, name="c", every_step=False):
    assert KS % 2 == 0
    pre = []
    for tb in range(NT): pre.append(Item(xread(0, tb, XB(0, tb)), gives=("X", 0, tb)))
    for nb in range(NN):
        for e in range(2): pre.append(Item(wread(0, nb, e, WB(nb) + 2*e), gives=("W", nb, e)))
    for it in pre: A(it.text)
    body = []
    for st in range(KS):
        p = st & 1
        last = st == KS - 1 or every_step
        fin = st == KS - 1
        nst = (st + 1) % KS
        pend = []
        xq = [Item(xread(nst, tb, XB(1 - p, tb)), gives=("X", 1 - p, tb)) for tb in range(NT)]
        adv = [Item(t) for t in advance()] if last else []
        tail = [Item(f"s_sub_u32 s{sCnt}, s{sCnt}, 1"), Item(f"s_cmp_lg_u32 s{sCnt}, 0")] if fin else []
        for nb in range(NN):
            for tb in range(NT):
                a = acc(tb, nb)
                if nb in swapped:
                    txt = f"v_mfma_f32_16x16x32_bf16 {v(a,4)}, {v(XB(p,tb),4)}, {v(WB(nb),4)}, {v(a,4)}"
                else:
                    txt = f"v_mfma_f32_16x16x32_bf16 {v(a,4)}, {v(WB(nb),4)}, {v(XB(p,tb),4)}, {v(a,4)}"
                body.append(Item(txt, needs=[("X", p, tb), ("W", nb, 0), ("W", nb, 1)]))
                if last and nb < bar_after:
                    if adv: body.append(adv.pop(0))
                elif pend: body.append(pend.pop(0))
                elif xq: body.append(xq.pop(0))
                elif tail: body.append(tail.pop(0))
            pend += [Item(wread(nst, nb, e, WB(nb) + 2*e), gives=("W", nb, e)) for e in range(2)]
            if last and nb == bar_after - 1:
                for it in adv: body.append(it)
                body.append(Item("s_barrier", drain=True))
        for it in xq + pend + tail: body.append(it)
    lines = insert_lgkm_waits(pre, body, maxcnt=6)
    L = A.label(name + "loop")
    A(f"s_mov_b32 s{sCnt}, {T}")
    A(f"{L}:")
    for l in lines:
        if "noread" in EXP and l.startswith("ds_read"): continue
        if "nomfma" in EXP and l.startswith("v_mfma"): continue
        A(l)
    A(f"s_cbranch_scc1 {L}")

import os
PROF = int(os.environ.get("PROF", "0"))
WS_PROF = 0x2780000
def stamp(A, i):
    if not PROF: return
    A(f"s_memrealtime s[{64+4*i}:{65+4*i}]")
    A(f"s_memtime s[{66+4*i}:{67+4*i}]")
def stamp_flush(A, kidx, n, wslo, wshi, role=0):
    if not PROF: return
    A("s_waitcnt lgkmcnt(0)")
    srd(A, 56, wslo, wshi, WS_END)
    for i in range(n):
        A(f"v_mov_b32 v{2+2*i}, s{64+4*i}")
        A(f"v_mov_b32 v{3+2*i}, s{66+4*i}")
    A(f"s_lshl_b32 s60, s2, 7")
    A(f"s_add_u32 s60, s60, {WS_PROF + kidx*65536 + role*64}")
    A("v_mov_b32 v1, 0")
    A("s_mov_b64 exec, 1")
    for i in range(n):
        A(f"buffer_store_dwordx2 v[{2+2*i}:{3+2*i}], v1, s[56:59], s60 offen offset:{8*i}")
```

```python
class Asm:
    def __init__(self):
        self.lines = []
        self.uid = 0
    def __call__(self, s):
        for l in s.split("\n"):
            l = l.strip()
            if not l:
                continue
            if l.endswith(":"):
                self.lines.append(l)
            else:
                self.lines.append("    " + l)
    def label(self, base):
        self.uid += 1
        return f"L_{base}_{self.uid}"
    def text(self):
        return "\n".join(self.lines) + "\n"

def v(a, n=1):
    return f"v{a}" if n == 1 else f"v[{a}:{a+n-1}]"
def s(a, n=1):
    return f"s{a}" if n == 1 else f"s[{a}:{a+n-1}]"

def f32bits(x):
    import struct
    return struct.unpack("<I", struct.pack("<f", x))[0]
def hexf(x):
    return f"0x{f32bits(x):08x}"

def srd(A, d, lo, hi, nbytes):
    A(f"s_mov_b32 s{d}, s{lo}")
    A(f"s_and_b32 s{d+1}, s{hi}, 0xffff")
    A(f"s_mov_b32 s{d+2}, {nbytes}")
    A(f"s_mov_b32 s{d+3}, 0x20000")

def srd_off(A, d, lo, hi, off, nbytes):
    A(f"s_add_u32 s{d}, s{lo}, {off}")
    A(f"s_addc_u32 s{d+1}, s{hi}, 0")
    A(f"s_and_b32 s{d+1}, s{d+1}, 0xffff")
    A(f"s_mov_b32 s{d+2}, {nbytes}")
    A(f"s_mov_b32 s{d+3}, 0x20000")

class Item:
    def __init__(self, text, gives=None, needs=(), lds=False, drain=False):
        self.text = text; self.gives = gives; self.needs = tuple(needs); self.lds = lds or gives is not None; self.drain = drain

def insert_lgkm_waits(pre, body, maxcnt=15):
    def simulate(hist):
        req = []
        hist = list(hist)
        for it in body:
            n = None
            if it.drain:
                n = 0
            for t in it.needs:
                idx = max(i for i, x in enumerate(hist) if x == t)
                after = len(hist) - 1 - idx
                n = after if n is None else min(n, after)
            req.append(n)
            if it.lds:
                hist.append(it.gives)
        return req, hist
    h0 = [it.gives for it in pre if it.lds]
    r1, h1 = simulate(h0)
    r2, h2 = simulate(h1)
    req = [None if a is None else min(a, b) for a, b in zip(r1, r2)]
    out = []
    outstanding_bound = None
    for it, n in zip(body, req):
        if n is not None and (outstanding_bound is None or outstanding_bound > n):
            n = min(n, maxcnt)
            out.append(f"s_waitcnt lgkmcnt({n})")
            outstanding_bound = n
        out.append(it.text)
        if it.lds and outstanding_bound is not None:
            outstanding_bound += 1
    return out
```

```python
import re, sys
TRANS = ("v_exp_", "v_log_", "v_rcp_", "v_rsq_", "v_sqrt_", "v_sin_", "v_cos_")
def regs(tok):
    tok = tok.strip()
    tok = re.sub(r"^-|^abs\(|\)$|^\||\|$", "", tok); tok = re.sub(r"^abs\(", "", tok)
    m = re.fullmatch(r"([vsa])\[(\d+):(\d+)\]", tok)
    if m: return {(m.group(1), i) for i in range(int(m.group(2)), int(m.group(3)) + 1)}
    m = re.fullmatch(r"([vsa])(\d+)", tok)
    if m: return {(m.group(1), int(m.group(2)))}
    if tok in ("vcc", "exec", "m0"): return {(tok, 0)}
    return set()
class I:
    def __init__(s, line, no):
        s.line = line; s.no = no
        p = line.split(None, 1); s.op = p[0]
        ops = [x.strip() for x in p[1].split(",")] if len(p) > 1 else []
        if ops:
            parts = ops[-1].split(); ops[-1] = parts[0]; s.mods = parts[1:]
        else: s.mods = []
        s.ops = ops
        op = s.op
        s.mfma = op.startswith("v_mfma") or op.startswith("v_smfmac")
        s.valu = op.startswith("v_") and not s.mfma
        s.vmem = op.startswith("buffer_") or op.startswith("global_")
        s.ds = op.startswith("ds_")
        s.salu = op.startswith("s_")
        s.trans = op.startswith(TRANS)
        s.w = set(); s.r = set(); s.cread = set(); s.ab = set()
        R = [regs(x) for x in ops]
        if s.mfma:
            s.w = R[0]; s.ab = R[1] | R[2]
            if op.startswith("v_smfmac"): s.cread = R[0]; s.ab |= R[3]
            else: s.cread = R[3]
            s.r = s.ab | s.cread
            s.passes = 8 if "32x32" in op else 4
        elif s.valu:
            if op.startswith("v_permlane") and "swap" in op: s.w = R[0] | R[1]; s.r = R[0] | R[1]
            elif op.startswith("v_cmp"): s.w = R[0]; s.r = set().union(*R[1:])
            elif "_co_" in op: s.w = R[0] | R[1]; s.r = set().union(*R[2:])
            else:
                s.w = R[0]; s.r = set().union(*R[1:]) if len(R) > 1 else set()
                if op.startswith(("v_fmac", "v_dot2c", "v_pk_fmac")): s.r |= R[0]
        elif s.vmem:
            lds = "lds" in s.mods
            if "load" in op and not lds: s.w = R[0]; s.r = set().union(*R[1:])
            elif lds: s.r = set().union(*R) | {("m0", 0)}
            elif op in ("buffer_wbl2", "buffer_inv"): pass
            else:
                s.r = set().union(*R)
                s.data = R[0] if op.startswith("buffer_") else R[1]
        elif s.ds:
            if "read" in op or "permute" in op or "swizzle" in op: s.w = R[0]; s.r = set().union(*R[1:])
            else: s.r = set().union(*R)
        elif s.salu:
            if op.startswith(("s_cmp", "s_cbranch", "s_branch", "s_waitcnt", "s_barrier", "s_nop", "s_endpgm", "s_setprio", "s_sleep")): s.r = set().union(*R) if R else set()
            else:
                s.w = R[0] if R else set(); s.r = set().union(*R[1:]) if len(R) > 1 else set()
        s.states = int(ops[0]) + 1 if op == "s_nop" else 1
def need(p, c):
    n = 0
    vw = {x for x in p.w if x[0] in "va"}; sw = {x for x in p.w if x[0] in ("s", "vcc", "exec")}
    if p.valu:
        if c.mfma and vw & c.r: n = max(n, 2)
        if c.valu and (c.op.startswith("v_permlane") or "_dpp" in c.op) and vw & c.r: n = max(n, 2)
        if c.op.startswith(("v_readfirstlane", "v_readlane")) and vw & c.r: n = max(n, 1)
        if p.trans and c.valu and not c.trans and vw & c.r: n = max(n, 1)
        if p.trans and (c.valu or c.vmem or c.ds) and vw & c.r: n = max(n, 1)
        if c.valu and sw & c.r: n = max(n, 2)
        if c.vmem and sw & c.r: n = max(n, 5)
        if p.op.startswith("v_permlane") and c.valu and vw & c.r: n = max(n, 0)
    if p.mfma:
        big = 12 if p.passes == 8 else 8
        if (c.valu or c.vmem or c.ds) and p.w & (c.r | c.w): n = max(n, big)
        if c.mfma:
            if p.w & c.ab: n = max(n, big)
            if p.w & c.cread and not (p.w == c.cread and p.passes == c.passes): n = max(n, 10 if p.passes == 8 else 6)
            if p.w & c.w and not (p.w & c.cread): n = max(n, 0)
        if c.valu and p.cread & c.w: n = max(n, 7 if p.passes == 8 else 3)
    if p.salu and ("m0", 0) in p.w and c.vmem and ("m0", 0) in c.r: n = max(n, 1)
    if p.vmem and hasattr(p, "data") and ("x4" in p.op or "x3" in p.op) and p.data & c.w: n = max(n, 2 if c.valu else 1)
    return n
def check(text):
    ins = []; labels = {}
    for no, l in enumerate(text.split("\n"), 1):
        l = l.split(";")[0].strip()
        if not l or l.startswith("."): continue
        if l.endswith(":"): labels[l[:-1]] = len(ins); continue
        ins.append(I(l, no))
    bad = []
    def scan(start):
        p = ins[start]
        stack = [(start + 1, 0)] if p.op not in ("s_branch", "s_endpgm") else []
        seen = set()
        while stack:
            i, st = stack.pop()
            if st >= 20 or i >= len(ins) or (i, st) in seen: continue
            seen.add((i, st))
            c = ins[i]
            n = need(p, c)
            if n > st: bad.append((p.no, c.no, n, st, p.line, c.line))
            if c.op == "s_endpgm": continue
            if c.op == "s_branch": stack.append((labels[c.ops[0]], st + 1)); continue
            if c.op.startswith("s_cbranch"): stack.append((labels[c.ops[0]], st + 1))
            stack.append((i + 1, st + c.states))
    for i in range(len(ins)): scan(i)
    return sorted(set(bad))
if __name__ == "__main__":
    b = check(open(sys.argv[1]).read())
    for x in b: print(f"line {x[0]} -> {x[1]}: need {x[2]} have {x[3]}: [{x[4]}] -> [{x[5]}]")
    print(len(b), "hazards")
```

```python
from common import *
SLOT = 49152
NS = 3
L_ST = NS * SLOT
L_CS = L_ST + 2048
LDS_BYTES = L_CS + 256
T = 16
QSCALE = (DH ** -0.5) * 1.4426950408889634

def gen_k1(A, name="k1_kernel"):
    kernel_header(A, name)
    Lend = A.label("k1end"); Lload = A.label("k1load")
    A(f"s_cmp_ge_u32 s2, 256")
    A(f"s_cbranch_scc1 {Lend}")
    stamp(A, 0)
    A(f"s_load_dwordx4 s[4:7], s[0:1], {KA_X}")
    A(f"s_load_dwordx2 s[8:9], s[0:1], {KA_W1}")
    A(f"s_load_dwordx2 s[10:11], s[0:1], {KA_G}")
    A(f"s_load_dwordx2 s[12:13], s[0:1], {KA_WS}")
    A("""s_and_b32 s14, s2, 7
         s_lshr_b32 s15, s2, 3
         s_and_b32 s16, s14, 1
         s_lshl_b32 s16, s16, 3
         s_and_b32 s3, s15, 7
         s_add_u32 s16, s16, s3
         s_lshr_b32 s17, s14, 1
         s_lshl_b32 s17, s17, 2
         s_lshr_b32 s3, s15, 3
         s_add_u32 s17, s17, s3""")
    A("""v_lshrrev_b32 v1, 6, v0
         v_and_b32 v2, 63, v0""")
    A("s_nop 0")
    A("v_readfirstlane_b32 s18, v1")
    A("s_waitcnt lgkmcnt(0)")
    A("s_cmp_ge_u32 s18, 4")
    A(f"s_cbranch_scc1 {Lload}")
    ACC, XB0, WB0 = 128, 64, 96
    acc = lambda tb, nb: ACC + 4 * (tb * 8 + nb)
    XB = lambda p, tb: XB0 + 16 * p + 4 * tb
    WB = lambda nb: WB0 + 4 * nb
    A("""s_lshr_b32 s19, s18, 1
         s_and_b32 s20, s18, 1
         v_and_b32 v3, 15, v2
         v_lshrrev_b32 v4, 4, v2""")
    A("""s_lshl_b32 s3, s19, 6
         v_add_u32 v5, s3, v3
         v_lshlrev_b32 v5, 7, v5
         v_lshrrev_b32 v6, 1, v3
         v_xor_b32 v6, v6, v4
         v_lshlrev_b32 v7, 4, v6
         v_add_u32 v14, v5, v7
         v_xor_b32 v15, 64, v14""")
    A("""v_lshrrev_b32 v5, 2, v3
         v_and_b32 v6, 3, v3
         v_lshl_add_u32 v7, v4, 3, v5
         v_lshlrev_b32 v7, 7, v7
         v_lshl_add_u32 v7, v6, 3, v7
         v_lshrrev_b32 v8, 1, v5
         v_and_b32 v9, 1, v4
         v_lshl_or_b32 v8, v9, 1, v8
         s_lshl_b32 s3, s20, 1
         v_xor_b32 v8, s3, v8
         v_lshl_add_u32 v16, v8, 5, v7
         v_xor_b32 v17, 32, v16""")
    A("""v_mov_b32 v10, v14
         v_mov_b32 v11, v15
         v_mov_b32 v12, v16
         v_mov_b32 v13, v17
         s_mov_b32 s21, 0""")
    for i in range(128): A(f"v_mov_b32 v{ACC+i}, 0")
    xread = lambda st, tb, dst: f"ds_read_b128 {v(dst,4)}, v{10+st} offset:{tb*2048}"
    wread = lambda st, nb, e, dst: f"ds_read_b64_tr_b16 {v(dst,2)}, v{12+(nb&1)} offset:{16384 + (nb>>1)*8192 + st*4096 + e*512}"
    def advance():
        return [f"s_add_u32 s21, s21, {SLOT}", f"s_cmp_eq_u32 s21, {NS*SLOT}", "s_cselect_b32 s21, 0, s21",
                "v_add_u32 v10, s21, v14", "v_add_u32 v11, s21, v15", "v_add_u32 v12, s21, v16", "v_add_u32 v13, s21, v17"]
    A("s_barrier")
    stamp(A, 1)
    if PROF: A("s_waitcnt lgkmcnt(0)")
    compute_loop(A, 4, 8, 2, T, acc, XB, WB, xread, wread, advance, swapped=(4, 5), name="k1c")
    stamp(A, 2)
    srd(A, 24, 12, 13, WS_END)
    A("""s_lshl_b32 s22, s17, 1
         s_add_u32 s22, s22, s20
         s_lshl_b32 s23, s16, 2
         s_lshl_b32 s3, s19, 1
         s_add_u32 s23, s23, s3""")
    A("""v_lshrrev_b32 v5, 1, v4
         v_and_b32 v6, 1, v4
         v_lshlrev_b32 v5, 10, v5
         v_lshl_add_u32 v5, v6, 9, v5
         v_lshl_add_u32 v20, v3, 4, v5""")
    A("""v_lshrrev_b32 v6, 2, v3
         v_and_b32 v7, 3, v3
         v_lshl_add_u32 v6, v6, 3, v7
         v_lshl_add_u32 v21, v6, 4, v5""")
    A("""v_lshrrev_b32 v6, 3, v3
         v_and_b32 v7, 7, v3
         v_lshl_add_u32 v6, v6, 4, v7
         v_lshl_add_u32 v22, v6, 4, v5""")
    A(f"""s_lshl_b32 s28, s22, 17
          s_lshl_b32 s3, s23, 11
          s_add_u32 s28, s28, s3
          s_add_u32 s28, s28, {WS_Q}
          s_lshl_b32 s29, s22, 18
          s_lshl_b32 s3, s23, 12
          s_add_u32 s29, s29, s3
          s_add_u32 s29, s29, {WS_KV}
          s_add_u32 s30, s29, 4096
          s_mov_b32 s31, {hexf(QSCALE)}""")
    A("s_waitcnt lgkmcnt(0)")
    tmp = [64, 68, 72, 76, 80, 84, 88, 92, 96, 100, 104, 108]
    ti = 0
    for tb in range(4):
        t = tmp[ti]; ti += 1
        a0, a1 = acc(tb, 2), acc(tb, 3)
        A(f"v_cvt_pk_bf16_f32 v{t}, v{a0}, v{a0+1}"); A(f"v_cvt_pk_bf16_f32 v{t+1}, v{a0+2}, v{a0+3}")
        A(f"v_cvt_pk_bf16_f32 v{t+2}, v{a1}, v{a1+1}"); A(f"v_cvt_pk_bf16_f32 v{t+3}, v{a1+2}, v{a1+3}")
        A(f"buffer_store_dwordx4 {v(t,4)}, v21, s[24:27], s{29 + (tb>>1)} offen offset:{(tb&1)*64}")
    for u in range(2):
        for nbv in range(2):
            t = tmp[ti]; ti += 1
            a0, a1 = acc(2*u, 4+nbv), acc(2*u+1, 4+nbv)
            A(f"v_cvt_pk_bf16_f32 v{t}, v{a0}, v{a0+1}"); A(f"v_cvt_pk_bf16_f32 v{t+1}, v{a0+2}, v{a0+3}")
            A(f"v_cvt_pk_bf16_f32 v{t+2}, v{a1}, v{a1+1}"); A(f"v_cvt_pk_bf16_f32 v{t+3}, v{a1+2}, v{a1+3}")
            A(f"buffer_store_dwordx4 {v(t,4)}, v22, s[24:27], s{29 + u} offen offset:{2048 + nbv*128}")
    for tb in range(4):
        t = tmp[ti]; ti += 1
        a0, a1 = acc(tb, 0), acc(tb, 1)
        for r in range(4): A(f"v_mul_f32 v{a0+r}, s31, v{a0+r}")
        for r in range(4): A(f"v_mul_f32 v{a1+r}, s31, v{a1+r}")
        A(f"v_cvt_pk_bf16_f32 v{t}, v{a0}, v{a0+1}"); A(f"v_cvt_pk_bf16_f32 v{t+1}, v{a0+2}, v{a0+3}")
        A(f"v_cvt_pk_bf16_f32 v{t+2}, v{a1}, v{a1+1}"); A(f"v_cvt_pk_bf16_f32 v{t+3}, v{a1+2}, v{a1+3}")
        A(f"buffer_store_dwordx4 {v(t,4)}, v20, s[24:27], s28 offen offset:{(tb>>1)*2048 + (tb&1)*256}")
    A("s_barrier")
    A(f"""s_lshl_b32 s3, s19, 9
          v_lshl_add_u32 v5, v3, 3, s3
          v_add_u32 v5, {L_ST}, v5
          s_lshl_b32 s3, s20, 7
          v_lshl_add_u32 v6, v4, 4, s3
          v_add_u32 v6, {L_CS}, v6""")
    for tb in range(4):
        A(f"ds_read_b64 {v(24+4*tb,2)}, v5 offset:{tb*128}")
        A(f"ds_read_b64 {v(26+4*tb,2)}, v5 offset:{1024 + tb*128}")
    A("ds_read_b128 v[40:43], v6")
    A("ds_read_b128 v[44:47], v6 offset:64")
    A(f"""s_lshr_b32 s3, s22, 3
          s_lshr_b32 s32, s3, 1
          s_add_u32 s32, s32, 1
          s_sub_u32 s33, 0, s32
          s_and_b32 s3, s3, 1
          s_cmp_eq_u32 s3, 1
          s_cselect_b32 s32, s33, s32
          s_lshl_b32 s33, s16, 7
          s_lshl_b32 s3, s19, 6
          s_add_u32 s33, s33, s3
          s_add_u32 s33, s33, s32
          s_lshl_b32 s34, s22, 13
          s_add_u32 s34, s34, {WS_H1}
          s_mov_b32 s35, {hexf(1.0/1024)}
          s_mov_b32 s36, {hexf(GELU_C1)}
          v_mov_b32 v48, {hexf(GELU_C0)}
          v_mov_b32 v49, {hexf(1e-5)}""")
    A("s_waitcnt lgkmcnt(0)")
    for tb in range(4):
        b = 24 + 4 * tb
        A(f"""v_add_f32 v{b}, v{b}, v{b+2}
              v_add_f32 v{b+1}, v{b+1}, v{b+3}
              v_mul_f32 v{b}, s35, v{b}
              v_fma_f32 v{b+1}, v{b+1}, s35, v49
              v_fma_f32 v{b+1}, -v{b}, v{b}, v{b+1}
              v_max_f32 v{b+1}, v{b+1}, v49
              v_rsq_f32 v{b+1}, v{b+1}""")
    for tb in range(4):
        b = 24 + 4 * tb
        a0, a1 = acc(tb, 6), acc(tb, 7)
        regs = [a0 + r for r in range(4)] + [a1 + r for r in range(4)]
        for i, r in enumerate(regs): A(f"v_fma_f32 v{r}, -v{b}, v{40+i}, v{r}")
        for i, r in enumerate(regs): A(f"v_mul_f32 v{r}, v{r}, v{b+1}")
        gelu(A, regs, list(range(52, 60)), 48, 36)
        A(f"""v_add_u32 v50, s33, v3
              v_add_u32 v50, {tb*16}, v50
              v_cmp_gt_u32 vcc, 2048, v50
              v_and_b32 v50, 2047, v50
              v_lshrrev_b32 v51, 7, v50
              v_lshlrev_b32 v51, 18, v51
              v_bfe_u32 v60, v50, 4, 3
              v_lshl_add_u32 v51, v60, 10, v51
              v_and_b32 v60, 15, v50
              v_lshl_add_u32 v51, v60, 4, v51
              v_lshl_add_u32 v51, v4, 8, v51""")
        t = 112 + 4 * tb
        A(f"v_cvt_pk_bf16_f32 v{t}, v{a0}, v{a0+1}"); A(f"v_cvt_pk_bf16_f32 v{t+1}, v{a0+2}, v{a0+3}")
        A(f"v_cvt_pk_bf16_f32 v{t+2}, v{a1}, v{a1+1}"); A(f"v_cvt_pk_bf16_f32 v{t+3}, v{a1+2}, v{a1+3}")
        for r in range(4): A(f"v_cndmask_b32 v{t+r}, 0, v{t+r}, vcc")
        A(f"buffer_store_dwordx4 {v(t,4)}, v51, s[24:27], s34 offen")
    stamp(A, 3)
    if PROF: A("s_waitcnt vmcnt(0)")
    stamp(A, 4)
    stamp_flush(A, 0, 5, 12, 13)
    A("s_endpgm")
    A(f"{Lload}:")
    A("s_sub_u32 s18, s18, 4")
    srd(A, 24, 4, 5, S * D * 2)
    A(f"""s_lshl_b32 s3, s18, 11
          s_mov_b32 s30, {D*3*D*2}
          s_mov_b32 s32, 6144
          s_cmp_eq_u32 s18, 3
          s_cselect_b32 s28, s8, s6
          s_cselect_b32 s29, s9, s7
          s_cselect_b32 s30, {D*D*2}, s30
          s_cselect_b32 s32, 2048, s32
          s_cselect_b32 s33, 0, s3
          s_and_b32 s29, s29, 0xffff
          s_mov_b32 s31, 0x20000
          s_lshl_b32 s3, s17, 7
          s_add_u32 s33, s33, s3
          s_lshl_b32 s34, s32, 4
          s_lshl_b32 s35, s32, 6""")
    A("""v_lshrrev_b32 v3, 3, v2
         v_and_b32 v4, 7, v2
         v_lshrrev_b32 v5, 1, v3
         v_xor_b32 v5, v5, v4
         s_lshl_b32 s3, s16, 7
         s_lshl_b32 s36, s18, 5
         s_add_u32 s3, s3, s36
         v_add_u32 v6, s3, v3
         v_lshlrev_b32 v6, 11, v6
         v_lshl_add_u32 v10, v5, 4, v6
         v_xor_b32 v11, 64, v10""")
    A(f"""v_add_u32 v11, {8*2048 - 1024}, v11
          v_add_u32 v12, {16*2048 - 2048}, v10
          v_add_u32 v13, {16*2048 - 2048}, v11""")
    A("""v_bfe_u32 v5, v3, 1, 1
         v_lshlrev_b32 v5, 1, v5
         v_xor_b32 v5, v5, v4
         v_mul_lo_u32 v6, v3, s32
         v_lshl_add_u32 v14, v5, 4, v6
         v_xor_b32 v5, 4, v5
         v_lshl_add_u32 v15, v5, 4, v6
         s_lshl_b32 s3, s32, 3
         s_sub_u32 s3, s3, 1024
         v_add_u32 v15, s3, v15""")
    A("""s_lshl_b32 s37, s18, 12
         s_lshl_b32 s38, s18, 13
         s_add_u32 s38, s38, 16384
         s_mov_b32 s39, 0""")
    def issue(j):
        slot = (j % NS) * SLOT
        A(f"s_add_u32 m0, s37, {slot}")
        A("s_mov_b32 s41, s33")
        for i in range(4):
            A(f"buffer_load_dwordx4 v{10+i}, s[24:27], s39 offen offset:{i*1024} lds")
        for i in range(4):
            A(f"s_add_u32 m0, s38, {slot + i*2048}")
            if i: A("s_add_u32 s41, s41, s34")
            else: A("s_add_u32 s39, s39, 128")
            A(f"buffer_load_dwordx4 v14, s[28:31], s41 offen lds")
            A(f"buffer_load_dwordx4 v15, s[28:31], s41 offen offset:1024 lds")
        A("s_add_u32 s33, s33, s35")
    issue(0); issue(1)
    A("""s_and_b32 s3, s18, 1
         s_lshl_b32 s3, s3, 6
         v_add_u32 v5, s3, v2
         v_bfe_u32 v6, v5, 1, 3
         s_lshr_b32 s42, s18, 1
         s_lshl_b32 s3, s42, 2
         v_xor_b32 v6, s3, v6
         v_lshlrev_b32 v6, 4, v6
         v_lshl_add_u32 v16, v5, 7, v6
         v_xor_b32 v17, 16, v16
         v_xor_b32 v18, 32, v16
         v_xor_b32 v19, 48, v16""")
    A(f"""v_lshlrev_b32 v26, 3, v5
          s_lshl_b32 s3, s42, 10
          s_add_u32 s3, s3, {L_ST}
          v_add_u32 v26, s3, v26""")
    A(f"""v_and_b32 v3, 15, v2
          v_lshrrev_b32 v4, 4, v2
          v_lshrrev_b32 v5, 2, v3
          v_and_b32 v6, 3, v3
          v_lshl_add_u32 v7, v4, 3, v5
          v_lshlrev_b32 v7, 7, v7
          v_lshl_add_u32 v7, v6, 3, v7
          v_lshrrev_b32 v8, 1, v5
          v_and_b32 v9, 1, v4
          v_lshl_or_b32 v8, v9, 1, v8
          v_xor_b32 v8, s18, v8
          v_lshl_add_u32 v20, v8, 5, v7
          v_add_u32 v20, {16384 + 3*8192}, v20""")
    A("""v_mov_b32 v27, 0
         v_mov_b32 v28, 0
         v_mov_b32 v29, 0
         v_mov_b32 v30, 0
         v_mov_b32 v31, 0
         v_mov_b32 v9, 0xffff0000""")
    A("s_waitcnt vmcnt(12)")
    A("s_barrier")
    Lst = A.label("k1stats")
    def stats():
        if "nostats" in EXP: return
        for i in range(5): A(f"v_add_u32 v{21+i}, s43, v{16+i}")
        for i in range(4): A(f"ds_read_b128 {v(32+4*i,4)}, v{21+i}")
        for i in range(4): A(f"ds_read_b64_tr_b16 {v(48+2*i,2)}, v25 offset:{(i>>1)*4096 + (i&1)*512}")
        for i in range(4):
            A(f"s_waitcnt lgkmcnt({7-i})")
            for k in range(4):
                r = 32 + 4*i + k
                A(f"""v_lshlrev_b32 v56, 16, v{r}
                      v_and_b32 v57, v9, v{r}
                      v_add_f32 v27, v27, v56
                      v_fmac_f32 v28, v56, v56
                      v_add_f32 v29, v29, v57
                      v_fmac_f32 v30, v57, v57""")
        A("s_waitcnt lgkmcnt(0)")
        for r in range(48, 56):
            A(f"""v_lshlrev_b32 v56, 16, v{r}
                  v_and_b32 v57, v9, v{r}
                  v_add_f32 v31, v31, v56
                  v_add_f32 v31, v31, v57""")
    A(f"s_mov_b32 s43, 0")
    A(f"s_mov_b32 s44, {2*SLOT}")
    A(f"s_mov_b32 s40, {T-2}")
    L = A.label("k1lloop")
    A(f"{L}:")
    A(f"s_add_u32 m0, s37, s44")
    A("s_mov_b32 s41, s33")
    for i in range(0 if "nodma" in EXP else 4):
        A(f"buffer_load_dwordx4 v{10+i}, s[24:27], s39 offen offset:{i*1024} lds")
    A("s_add_u32 s45, s38, s44")
    for i in range(0 if "nodma" in EXP else 4):
        A(f"s_add_u32 m0, s45, {i*2048}")
        if i: A("s_add_u32 s41, s41, s34")
        else: A("s_add_u32 s39, s39, 128")
        A(f"buffer_load_dwordx4 v14, s[28:31], s41 offen lds")
        A(f"buffer_load_dwordx4 v15, s[28:31], s41 offen offset:1024 lds")
    A("s_add_u32 s33, s33, s35")
    stats()
    A(f"""s_mov_b32 s44, s43
          s_add_u32 s43, s43, {SLOT}
          s_cmp_eq_u32 s43, {NS*SLOT}
          s_cselect_b32 s43, 0, s43
          s_waitcnt vmcnt(12)
          s_barrier
          s_sub_u32 s40, s40, 1
          s_cmp_lg_u32 s40, 0
          s_cbranch_scc1 {L}""")
    srd(A, 48, 10, 11, D * 2)
    A("""s_lshl_b32 s46, s16, 7
         s_lshl_b32 s3, s17, 3
         s_add_u32 s46, s46, s3
         s_lshl_b32 s3, s18, 1
         s_add_u32 s46, s46, s3
         s_lshl_b32 s47, s46, 11
         v_lshlrev_b32 v8, 5, v2""")
    A("""buffer_load_dwordx4 v[64:67], v8, s[24:27], s47 offen
         buffer_load_dwordx4 v[68:71], v8, s[24:27], s47 offen offset:16
         buffer_load_dwordx4 v[72:75], v8, s[24:27], s47 offen offset:2048
         buffer_load_dwordx4 v[76:79], v8, s[24:27], s47 offen offset:2064
         buffer_load_dwordx4 v[80:83], v8, s[48:51], 0 offen
         buffer_load_dwordx4 v[84:87], v8, s[48:51], 0 offen offset:16""")
    A("s_mov_b32 s40, 2")
    L2 = A.label("k1ltail")
    A(f"{L2}:")
    stats()
    A(f"""s_add_u32 s43, s43, {SLOT}
          s_cmp_eq_u32 s43, {NS*SLOT}
          s_cselect_b32 s43, 0, s43
          s_waitcnt vmcnt(6)
          s_barrier
          s_sub_u32 s40, s40, 1
          s_cmp_lg_u32 s40, 0
          s_cbranch_scc1 {L2}""")
    A("""v_add_f32 v27, v27, v29
         v_add_f32 v28, v28, v30
         v_mov_b32 v56, v31""")
    A("ds_write_b64 v26, v[27:28]") if False else None
    A("""v_mov_b32 v58, v27
         v_mov_b32 v59, v28
         ds_write_b64 v26, v[58:59]
         v_permlane32_swap_b32 v56, v31
         s_nop 1
         v_add_f32 v31, v31, v56
         v_mov_b32 v56, v31
         s_nop 1
         v_permlane16_swap_b32 v56, v31
         s_nop 1
         v_add_f32 v31, v31, v56""")
    A(f"""s_lshl_b32 s3, s18, 6
          s_add_u32 s3, s3, {L_CS}
          v_and_b32 v3, 15, v2
          v_lshl_add_u32 v3, v3, 2, s3
          ds_write_b32 v3, v31
          s_waitcnt lgkmcnt(0)
          s_barrier""")
    A("s_waitcnt vmcnt(0)")
    for row in range(2):
        accr = 60 + row
        A(f"v_mov_b32 v{accr}, 0")
        for k in range(8):
            xr = 64 + 8*row + k; gr = 80 + k
            A(f"""v_lshlrev_b32 v56, 16, v{xr}
                  v_and_b32 v57, v9, v{xr}
                  v_lshlrev_b32 v58, 16, v{gr}
                  v_and_b32 v59, v9, v{gr}
                  v_mul_f32 v56, v56, v58
                  v_mul_f32 v57, v57, v59
                  v_cvt_pk_bf16_f32 v56, v56, v57
                  v_lshlrev_b32 v57, 16, v56
                  v_and_b32 v56, v9, v56
                  v_add_f32 v{accr}, v{accr}, v57
                  v_add_f32 v{accr}, v{accr}, v56""")
    A("""s_nop 1
         v_permlane32_swap_b32 v60, v61
         s_nop 1
         v_add_f32 v60, v60, v61
         v_mov_b32 v61, v60
         s_nop 1
         v_permlane16_swap_b32 v61, v60
         s_nop 1
         v_add_f32 v60, v60, v61
         s_nop 1
         v_add_f32_dpp v60, v60, v60 row_ror:8 row_mask:0xf bank_mask:0xf
         s_nop 1
         v_add_f32_dpp v60, v60, v60 row_ror:4 row_mask:0xf bank_mask:0xf
         s_nop 1
         v_add_f32_dpp v60, v60, v60 row_ror:2 row_mask:0xf bank_mask:0xf
         s_nop 1
         v_add_f32_dpp v60, v60, v60 row_ror:1 row_mask:0xf bank_mask:0xf""")
    A(f"""v_cvt_pk_bf16_f32 v60, v60, v60
          v_and_b32 v60, v9, v60
          v_mul_f32 v60, {hexf(-1.4426950408889634)}, v60
          v_exp_f32 v60, v60
          s_nop 0
          v_add_f32 v60, 1.0, v60
          v_rcp_f32 v60, v60
          s_nop 0
          v_cvt_pk_bf16_f32 v60, v60, v60
          v_and_b32 v60, v9, v60""")
    srd(A, 24, 12, 13, WS_END)
    A(f"""s_lshl_b32 s46, s46, 2
          s_add_u32 s46, s46, {WS_G}
          v_lshrrev_b32 v3, 5, v2
          v_lshlrev_b32 v3, 2, v3
          v_and_b32 v4, 31, v2
          v_cmp_eq_u32 vcc, 0, v4
          s_and_saveexec_b64 s[44:45], vcc
          buffer_store_dword v60, v3, s[24:27], s46 offen""")
    A(f"{Lend}:")
    A("s_endpgm")
    return dict(name=name, grid=256, block=512, lds=LDS_BYTES, vgpr=256)
```

```python
from common import *
NS = 3
KVS = 16384
GS = 24576
L_KV = 0
L_G = NS * KVS
L_XR = L_G + NS * GS
LDS_BYTES = L_XR + 16384
T = 16

def gen_k2(A, name="k2_kernel"):
    kernel_header(A, name)
    Lend = A.label("k2end"); Lg = A.label("k2gemm")
    A(f"s_cmp_ge_u32 s2, 256")
    A(f"s_cbranch_scc1 {Lend}")
    stamp(A, 0)
    A(f"s_load_dwordx2 s[4:5], s[0:1], {KA_X}")
    A(f"s_load_dwordx4 s[8:11], s[0:1], {KA_W2}")
    A(f"s_load_dwordx2 s[12:13], s[0:1], {KA_WS}")
    A("""s_and_b32 s14, s2, 7
         s_lshr_b32 s15, s2, 3
         s_lshl_b32 s16, s14, 2
         s_lshr_b32 s3, s15, 3
         s_add_u32 s16, s16, s3
         s_and_b32 s17, s15, 7""")
    A("""v_lshrrev_b32 v1, 6, v0
         v_and_b32 v2, 63, v0""")
    A("s_nop 0")
    A("v_readfirstlane_b32 s18, v1")
    A("s_waitcnt lgkmcnt(0)")
    srd(A, 24, 12, 13, WS_END)
    A("s_cmp_ge_u32 s18, 4")
    A(f"s_cbranch_scc1 {Lg}")
    SB = lambda i: 64 + 16 * (i & 3)
    O = lambda q: 128 + 16 * q
    Lr = lambda q: 160 + 4 * q
    Q = lambda q, b: 168 + 8 * q + 4 * b
    KB = lambda p, b: 184 + 8 * p + 4 * b
    VB = lambda p, b: 200 + 8 * p + 4 * b
    ONES, IDX, VBASE, VB0 = 216, 220, 10, 11
    A(f"""s_lshl_b32 s19, s17, 3
          s_lshl_b32 s3, s18, 1
          s_add_u32 s19, s19, s3
          s_lshl_b32 s20, s16, 17
          s_lshl_b32 s3, s19, 11
          s_add_u32 s20, s20, s3
          s_add_u32 s20, s20, {WS_Q}
          v_lshlrev_b32 v{VB0}, 4, v2""")
    for q in range(2):
        for b in range(2):
            A(f"buffer_load_dwordx4 {v(Q(q,b),4)}, v{VB0}, s[24:27], s20 offen offset:{q*2048 + b*1024}")
    A(f"""s_lshl_b32 s21, s19, 7
          s_add_u32 s21, s21, {WS_G}
          v_and_b32 v3, 31, v2
          v_lshlrev_b32 v4, 2, v3
          buffer_load_dword v12, v4, s[24:27], s21 offen
          buffer_load_dword v13, v4, s[24:27], s21 offen offset:128""")
    A(f"""v_bfe_u32 v4, v2, 2, 1
          v_cmp_eq_u32 vcc, 0, v4
          v_mov_b32 v5, 0x3f803f80
          v_mov_b32 v{IDX}, 0xdddddddd
          v_cndmask_b32 v{ONES}, 0, v5, vcc
          v_cndmask_b32 v{ONES+1}, 0, v5, vcc
          v_cndmask_b32 v{ONES+2}, v5, 0, vcc
          v_cndmask_b32 v{ONES+3}, v5, 0, vcc""")
    for i in range(40): A(f"v_mov_b32 v{128+i}, 0")
    for i in range(16): A(f"v_mov_b32 v{SB(3)+i}, 0")
    for i in range(8): A(f"v_mov_b32 v{VB(1,0)+i}, 0")
    A(f"v_mov_b32 v{VBASE}, v{VB0}")
    A("s_mov_b32 s22, 0")
    if "prio" in EXP: A("s_setprio 3")
    A("s_barrier")
    stamp(A, 1)
    if PROF: A("s_waitcnt lgkmcnt(0)")
    rdK = lambda t: [Item(f"ds_read_b128 {v(KB(t&1,b),4)}, v{VBASE} offset:{(t&3)*4096 + b*1024}", gives=("K", t&1, b)) for b in range(2)]
    rdV = lambda t: [Item(f"ds_read_b128 {v(VB(t&1,b),4)}, v{VBASE} offset:{(t&3)*4096 + 2048 + b*1024}", gives=("V", t&1, b)) for b in range(2)]
    def qk(u):
        t, q = u >> 1, u & 1
        d = SB(u)
        return [Item(f"v_mfma_f32_32x32x16_bf16 {v(d,16)}, {v(KB(t&1,0),4)}, {v(Q(q,0),4)}, 0", needs=[("K", t&1, 0)]),
                Item(f"v_mfma_f32_32x32x16_bf16 {v(d,16)}, {v(KB(t&1,1),4)}, {v(Q(q,1),4)}, {v(d,16)}", needs=[("K", t&1, 1)])]
    def pv(u, need=True):
        t, q = u >> 1, u & 1
        d = SB(u)
        r = []
        for b in range(2):
            r.append(Item(f"v_smfmac_f32_32x32x32_bf16 {v(O(q),16)}, {v(VB(t&1,b),4)}, {v(d+8*b,8)}, v{IDX}", needs=[("V", t&1, b)] if need else []))
            r.append(Item(f"v_smfmac_f32_16x16x64_bf16 {v(Lr(q),4)}, {v(ONES,4)}, {v(d+8*b,8)}, v{IDX}"))
        return r
    pre = [Item("", gives=("V", 1, 0)), Item("", gives=("V", 1, 1))] + rdK(0) + rdV(0)
    for it in pre[2:]: A(it.text)
    A("s_waitcnt lgkmcnt(2) vmcnt(0)")
    for it in qk(0): A(it.text)
    A("s_nop 9")
    body = []
    for u in range(8):
        e = [Item(f"v_exp_f32 v{SB(u)+i}, v{SB(u)+i}") for i in range(16)]
        m = qk(u + 1) + pv(u - 1)
        t1 = (u >> 1) + 1
        rd = rdK(t1) if (u & 1) == 0 else rdV(t1)
        head = []
        if u == 6:
            head = [Item("s_barrier", drain=True)]
        extra = list(rd)
        if u == 5:
            extra += [Item(f"s_add_u32 s22, s22, {KVS}"), Item(f"s_cmp_eq_u32 s22, {NS*KVS}"), Item("s_cselect_b32 s22, 0, s22"), Item(f"v_add_u32 v{VBASE}, s22, v{VB0}")]
        if u == 7:
            extra += [Item("s_sub_u32 s40, s40, 1"), Item("s_cmp_lg_u32 s40, 0")]
        cnt = [3, 3, 3, 1, 3, 3]
        k = 0
        for mi in range(6):
            body.append(m[mi])
            if mi == 0: body += head
            for j in range(cnt[mi]):
                body.append(e[k]); k += 1
                if extra: body.append(extra.pop(0))
    lines = insert_lgkm_waits(pre, body, maxcnt=15)
    L = A.label("k2aloop")
    A(f"s_mov_b32 s40, {T}")
    A(f"{L}:")
    for l in lines:
        if "nosum" in EXP and l.startswith("v_smfmac_f32_16x16"): continue
        if "nopv" in EXP and l.startswith("v_smfmac_f32_32x32"): continue
        if "noexp" in EXP and l.startswith("v_exp"): continue
        if "noqk" in EXP and l.startswith("v_mfma"): continue
        if "noard" in EXP and l.startswith("ds_read"): continue
        if "nobar" in EXP and l.startswith("s_barrier"): continue
        A(l)
    A(f"s_cbranch_scc1 {L}")
    A("s_nop 1")
    for it in pv(7, False): A(it.text)
    stamp(A, 2)
    A("s_nop 15")
    Lslow = A.label("k2slow"); Lfin = A.label("k2fin")
    A(f"""v_min_f32 v4, v{Lr(0)}, v{Lr(1)}
          v_max_f32 v5, v{Lr(0)}, v{Lr(1)}""")
    A("v_mov_b32 v7, 0")
    for i in range(32): A(f"v_fmac_f32 v7, 0, v{128+i}")
    A(f"""v_fmac_f32 v7, 0, v{Lr(0)}
          v_fmac_f32 v7, 0, v{Lr(1)}
          v_cmp_le_f32 vcc, {hexf(2.0**-20)}, v4
          s_mov_b64 s[44:45], vcc
          v_cmp_ge_f32 vcc, {hexf(2.0**60)}, v5
          s_and_b64 s[44:45], s[44:45], vcc
          v_cmp_eq_f32 vcc, 0, v7
          s_and_b64 s[44:45], s[44:45], vcc
          s_cmp_eq_u64 s[44:45], -1""")
    if "forceslow" in EXP: A(f"s_branch {Lslow}")
    if "noslow" in EXP: A(f"s_branch {Lfin}")
    A(f"s_cbranch_scc0 {Lslow}")
    A(f"{Lfin}:")
    A(f"""v_rcp_f32 v4, v{Lr(0)}
          v_rcp_f32 v5, v{Lr(1)}
          s_lshr_b32 s3, s19, 2
          s_mul_i32 s20, s3, {HO_PANEL}
          s_add_u32 s3, s16, 112
          s_lshl_b32 s3, s3, 13
          s_add_u32 s20, s20, s3
          s_and_b32 s3, s19, 3
          s_lshl_b32 s3, s3, 11
          s_add_u32 s20, s20, s3
          s_add_u32 s20, s20, {WS_HO}
          v_mul_f32 v4, v4, v12
          v_mul_f32 v5, v5, v13
          v_bfe_u32 v6, v2, 4, 1
          v_lshlrev_b32 v6, 10, v6
          v_and_b32 v7, 15, v2
          v_lshl_add_u32 v6, v7, 4, v6
          v_lshrrev_b32 v7, 5, v2
          v_lshl_add_u32 v6, v7, 8, v6""")
    for q in range(2):
        for i in range(16): A(f"v_mul_f32 v{O(q)+i}, v{O(q)+i}, v{4+q}")
        for b in range(2):
            t = 64 + 8 * q + 4 * b
            for i in range(4): A(f"v_cvt_pk_bf16_f32 v{t+i}, v{O(q)+8*b+2*i}, v{O(q)+8*b+2*i+1}")
            A(f"buffer_store_dwordx4 {v(t,4)}, v6, s[24:27], s20 offen offset:{q*2048 + b*512}")
    stamp(A, 3)
    if PROF: A("s_waitcnt vmcnt(0)")
    stamp(A, 4)
    stamp_flush(A, 1, 5, 12, 13)
    A("s_endpgm")
    A(f"{Lslow}:")
    A("s_waitcnt lgkmcnt(0)")
    for i in range(40): A(f"v_mov_b32 v{128+i}, 0")
    A(f"""v_mov_b32 v14, 0xff7fffff
          v_mov_b32 v15, 0xff7fffff
          s_lshl_b32 s41, s16, 18
          s_add_u32 s41, s41, {WS_KV}
          s_mov_b32 s40, 64""")
    Ls = A.label("k2sloop")
    A(f"{Ls}:")
    for b in range(2): A(f"buffer_load_dwordx4 {v(KB(0,b),4)}, v{VB0}, s[24:27], s41 offen offset:{b*1024}")
    for b in range(2): A(f"buffer_load_dwordx4 {v(VB(0,b),4)}, v{VB0}, s[24:27], s41 offen offset:{2048 + b*1024}")
    A("s_waitcnt vmcnt(0)")
    for q in range(2):
        for it in qk(q): A(it.text)
    A("s_nop 15")
    for q in range(2):
        d = SB(q); m = 14 + q
        A(f"v_max3_f32 v4, v{d}, v{d+1}, v{m}")
        for i in range(2, 16, 2): A(f"v_max3_f32 v4, v{d+i}, v{d+i+1}, v4")
        A(f"""v_mov_b32 v5, v4
              s_nop 1
              v_permlane32_swap_b32 v5, v4
              s_nop 1
              v_max_f32 v4, v4, v5
              v_sub_f32 v5, v{m}, v4
              v_exp_f32 v5, v5
              v_mov_b32 v{m}, v4""")
        for i in range(16): A(f"v_sub_f32 v{d+i}, v{d+i}, v4")
        for i in range(16): A(f"v_exp_f32 v{d+i}, v{d+i}")
        for i in range(16): A(f"v_mul_f32 v{O(q)+i}, v{O(q)+i}, v5")
        for i in range(4): A(f"v_mul_f32 v{Lr(q)+i}, v{Lr(q)+i}, v5")
        A("s_nop 1")
        for it in pv(q, False): A(it.text)
    A(f"""s_nop 15
          s_add_u32 s41, s41, 4096
          s_sub_u32 s40, s40, 1
          s_cmp_lg_u32 s40, 0
          s_cbranch_scc1 {Ls}
          s_branch {Lfin}""")
    A(f"{Lg}:")
    A("s_sub_u32 s18, s18, 4")
    A("""s_and_b32 s19, s14, 3
         s_lshl_b32 s19, s19, 2
         s_and_b32 s3, s15, 3
         s_add_u32 s19, s19, s3
         s_lshr_b32 s20, s14, 2
         s_lshl_b32 s20, s20, 3
         s_lshr_b32 s3, s15, 2
         s_add_u32 s20, s20, s3""")
    srd(A, 28, 8, 9, D * D * 2)
    A(f"""s_lshl_b32 s3, s18, 12
          s_lshl_b32 s33, s16, 18
          s_add_u32 s33, s33, s3
          s_add_u32 s33, s33, {WS_KV}
          s_lshl_b32 s34, s19, 18
          s_add_u32 s34, s34, s3
          s_add_u32 s34, s34, {WS_H1}
          s_lshl_b32 s35, s17, 1
          s_and_b32 s36, s20, 7
          s_lshl_b32 s36, s36, 1
          s_lshl_b32 s3, s19, 2
          s_add_u32 s36, s36, s3
          s_and_b32 s36, s36, 15
          {"s_mov_b32 s35, 0" if "norot" in EXP else ""}
          {"s_mov_b32 s36, 0" if "norot" in EXP else ""}
          s_lshl_b32 s37, s18, 12
          s_lshl_b32 s38, s18, 11
          s_add_u32 s38, s38, {L_G + 16384}
          s_add_u32 s39, s37, {L_G}""")
    A("v_lshlrev_b32 v10, 4, v2")
    A(f"""v_lshrrev_b32 v3, 3, v2
          v_and_b32 v4, 7, v2
          v_and_b32 v5, 6, v3
          v_xor_b32 v5, v5, v4
          s_lshl_b32 s3, s18, 4
          v_add_u32 v6, s3, v3
          v_lshlrev_b32 v6, 11, v6
          v_lshl_add_u32 v11, v5, 4, v6
          s_lshl_b32 s3, s20, 7
          v_add_u32 v11, s3, v11
          v_add_u32 v12, {8*2048 - 1024}, v11""")
    def issue(kvslot, gslot):
        A(f"""s_add_u32 m0, s37, {kvslot}
              s_lshl_b32 s41, s35, 14
              s_add_u32 s41, s41, s33""")
        for i in range(4): A(f"buffer_load_dwordx4 v10, s[24:27], s41 offen offset:{i*1024} lds")
        A(f"""s_add_u32 m0, s39, {gslot}
              s_lshl_b32 s41, s36, 14
              s_add_u32 s41, s41, s34""")
        for i in range(4): A(f"buffer_load_dwordx4 v10, s[24:27], s41 offen offset:{i*1024} lds")
        A(f"""s_add_u32 m0, s38, {gslot}
              s_lshl_b32 s41, s36, 17""")
        A("buffer_load_dwordx4 v11, s[28:31], s41 offen lds")
        A("buffer_load_dwordx4 v12, s[28:31], s41 offen offset:1024 lds")
        A("""s_add_u32 s35, s35, 1
             s_and_b32 s35, s35, 15
             s_add_u32 s36, s36, 1
             s_and_b32 s36, s36, 15""")
    issue(0, 0); issue(KVS, GS)
    ACC = 64; XB = 128; WB = 144
    acc = lambda tb, nb: ACC + 4 * (tb * 4 + nb)
    A(f"""s_lshr_b32 s21, s18, 1
          s_and_b32 s22, s18, 1
          s_lshl_b32 s3, s21, 13
          s_lshl_b32 s41, s22, 12
          s_add_u32 s3, s3, s41
          s_add_u32 s3, s3, {L_G}
          v_add_u32 v14, s3, v10
          v_and_b32 v3, 15, v2
          v_lshrrev_b32 v4, 4, v2
          v_lshrrev_b32 v5, 2, v3
          v_and_b32 v6, 3, v3
          v_lshl_add_u32 v7, v4, 2, v5
          v_bfe_u32 v8, v7, 1, 2
          v_lshlrev_b32 v7, 7, v7
          v_lshl_add_u32 v7, v6, 3, v7
          v_lshl_add_u32 v7, v8, 5, v7
          s_lshl_b32 s3, s21, 12
          s_add_u32 s3, s3, {L_G + 16384}
          v_add_u32 v15, s3, v7
          v_xor_b32 v16, 32, v15
          v_xor_b32 v17, 64, v15
          v_xor_b32 v18, 96, v15""")
    for i in range(64): A(f"v_mov_b32 v{ACC+i}, 0")
    A("s_waitcnt vmcnt(10)")
    A("s_barrier")
    def compute():
        if "nogemm" in EXP: return
        for i in range(5): A(f"v_add_u32 v{20+i}, s43, v{14+i}")
        for tb in range(4): A(f"ds_read_b128 {v(XB+4*tb,4)}, v20 offset:{tb*1024}")
        for nb in range(4):
            for e in range(2): A(f"ds_read_b64_tr_b16 {v(WB+4*nb+2*e,2)}, v{21+nb} offset:{e*2048}")
        for nb in range(4):
            A(f"s_waitcnt lgkmcnt({6-2*nb})")
            for tb in range(4):
                A(f"v_mfma_f32_16x16x32_bf16 {v(acc(tb,nb),4)}, {v(WB+4*nb,4)}, {v(XB+4*tb,4)}, {v(acc(tb,nb),4)}")
    A(f"""s_mov_b32 s43, 0
          s_mov_b32 s44, {2*GS}
          s_mov_b32 s45, {2*KVS}
          s_mov_b32 s46, 0
          s_mov_b32 s40, {T-2}""")
    L = A.label("k2gloop")
    if "nobar" in EXP: A("s_endpgm")
    A(f"{L}:")
    if "nodma2" not in EXP: issue("s45", "s44")
    compute()
    A(f"""s_mov_b32 s44, s43
          s_mov_b32 s45, s46
          s_add_u32 s43, s43, {GS}
          s_add_u32 s46, s46, {KVS}
          s_cmp_eq_u32 s43, {NS*GS}
          s_cselect_b32 s43, 0, s43
          s_cselect_b32 s46, 0, s46
          s_waitcnt vmcnt(10)
          s_barrier
          s_sub_u32 s40, s40, 1
          s_cmp_lg_u32 s40, 0
          s_cbranch_scc1 {L}""")
    srd(A, 28, 4, 5, S * D * 2)
    A(f"""v_lshrrev_b32 v5, 3, v2
          v_and_b32 v6, 7, v2
          v_lshrrev_b32 v7, 1, v5
          v_xor_b32 v7, v7, v6
          s_lshl_b32 s3, s19, 7
          s_lshl_b32 s41, s18, 5
          s_add_u32 s3, s3, s41
          v_add_u32 v5, s3, v5
          v_lshlrev_b32 v5, 11, v5
          v_lshl_add_u32 v26, v7, 4, v5
          v_xor_b32 v27, 64, v26
          v_add_u32 v27, {8*2048 - 1024}, v27
          v_add_u32 v28, {16*2048 - 2048}, v26
          v_add_u32 v29, {16*2048 - 2048}, v27
          s_add_u32 m0, s37, {L_XR}
          s_lshl_b32 s41, s20, 7""")
    for i in range(4): A(f"buffer_load_dwordx4 v{26+i}, s[28:31], s41 offen offset:{i*1024} lds")
    srd(A, 28, 10, 11, D * F * 2)
    A(f"""v_cmp_le_u32 vcc, 28, v2
          s_nop 1
          v_cndmask_b32 v5, 0, 1, vcc
          v_mul_u32_u24 v6, 28, v5
          v_sub_u32 v6, v2, v6
          v_mul_u32_u24 v5, 7168, v5
          v_lshl_add_u32 v30, v6, 4, v5
          v_cmp_le_u32 vcc, 56, v2
          v_mov_b32 v5, 0x7ffffff0
          s_nop 0
          v_cndmask_b32 v30, v30, v5, vcc
          s_lshr_b32 s3, s2, 4
          s_lshl_b32 s3, s3, 6
          s_lshl_b32 s41, s18, 4
          s_add_u32 s3, s3, s41
          s_mul_i32 s47, s3, 7168
          s_and_b32 s3, s2, 15
          s_mul_i32 s3, s3, 448
          s_add_u32 s47, s47, s3""")
    for i in range(8):
        A(f"buffer_load_dwordx4 {v(160+4*i,4)}, v30, s[28:31], s47 offen")
        if i < 7: A(f"s_add_u32 s47, s47, {2*7168}")
    compute()
    A(f"""s_add_u32 s43, s43, {GS}
          s_cmp_eq_u32 s43, {NS*GS}
          s_cselect_b32 s43, 0, s43
          s_waitcnt vmcnt(8)
          s_barrier""")
    compute()
    A("s_waitcnt vmcnt(0)")
    A("v_mov_b32 v9, 0xffff0000")
    for k in range(4):
        A(f"v_lshlrev_b32 v{192+2*k}, 16, v{160+k}")
        A(f"v_and_b32 v{193+2*k}, v9, v{160+k}")
    for i in range(1, 8):
        for k in range(4):
            r = 160 + 4*i + k
            A(f"""v_lshlrev_b32 v5, 16, v{r}
                  v_and_b32 v6, v9, v{r}
                  v_add_f32 v{192+2*k}, v{192+2*k}, v5
                  v_add_f32 v{193+2*k}, v{193+2*k}, v6""")
    A(f"""v_cmp_le_u32 vcc, 28, v2
          s_nop 1
          v_cndmask_b32 v5, 0, 1, vcc
          v_mul_u32_u24 v6, 28, v5
          v_sub_u32 v6, v2, v6
          v_lshlrev_b32 v6, 5, v6
          s_lshl_b32 s3, s18, 1
          v_add_u32 v5, s3, v5
          v_mul_u32_u24 v5, 896, v5
          v_add_u32 v6, v6, v5
          v_add_u32 v6, {L_G + 2*GS}, v6""")
    A("""v_cmp_gt_u32 vcc, 56, v2
         s_and_saveexec_b64 s[44:45], vcc
         ds_write_b128 v6, v[192:195]
         ds_write_b128 v6, v[196:199] offset:16
         s_mov_b64 exec, s[44:45]""")
    EX = L_G + GS - 8192 if False else None
    A(f"""s_lshl_b32 s3, s18, 13
          s_cmp_eq_u32 s18, 3
          s_cselect_b32 s3, {GS + 8192}, s3
          s_add_u32 s3, s3, {L_G + GS}
          v_add_u32 v19, s3, v10
          s_xor_b32 s41, s18, 2
          s_lshl_b32 s3, s41, 13
          s_cmp_eq_u32 s41, 3
          s_cselect_b32 s3, {GS + 8192}, s3
          s_add_u32 s3, s3, {L_G + GS}
          v_add_u32 v25, s3, v10""")
    Lk1 = A.label("k2kh1"); Lk2 = A.label("k2khj")
    A("s_cmp_eq_u32 s21, 1")
    A(f"s_cbranch_scc1 {Lk1}")
    for i in range(8): A(f"ds_write_b128 v19, {v(ACC+32+4*i,4)} offset:{i*1024}")
    A(f"s_branch {Lk2}")
    A(f"{Lk1}:")
    for i in range(8): A(f"ds_write_b128 v19, {v(ACC+4*i,4)} offset:{i*1024}")
    for i in range(32): A(f"v_mov_b32 v{ACC+i}, v{ACC+32+i}")
    A(f"{Lk2}:")
    A("s_waitcnt lgkmcnt(0)")
    A("s_barrier")
    stamp(A, 1)
    for i in range(8): A(f"ds_read_b128 {v(96+4*i,4)}, v25 offset:{i*1024}")
    A(f"""s_lshl_b32 s3, s22, 6
          s_lshl_b32 s41, s21, 5
          s_add_u32 s42, s3, s41
          v_add_u32 v5, s42, v3
          v_lshlrev_b32 v5, 7, v5
          v_lshrrev_b32 v6, 1, v3
          v_lshrrev_b32 v7, 1, v4
          v_xor_b32 v6, v6, v7
          v_lshl_add_u32 v5, v6, 4, v5
          v_and_b32 v7, 1, v4
          v_lshl_add_u32 v5, v7, 3, v5
          v_add_u32 v26, {L_XR}, v5
          v_xor_b32 v27, 32, v26
          v_xor_b32 v28, 64, v26
          v_xor_b32 v29, 96, v26""")
    for tb in range(2):
        for nb in range(4): A(f"ds_read_b64 {v(128+8*tb+2*nb,2)}, v{26+nb} offset:{tb*2048}")
    A(f"""s_lshl_b32 s3, s18, 6
          v_add_u32 v8, s3, v2
          v_lshlrev_b32 v31, 2, v8
          v_add_u32 v30, {L_G + 2*GS}, v31""")
    for i in range(8): A(f"ds_read_b32 v{160+i}, v30 offset:{i*896}")
    A("s_waitcnt lgkmcnt(8)")
    for i in range(32): A(f"v_add_f32 v{ACC+i}, v{ACC+i}, v{96+i}")
    for tb in range(2):
        for nb in range(4):
            a = ACC + 4 * (tb * 4 + nb); xr = 128 + 8 * tb + 2 * nb
            A(f"""v_lshlrev_b32 v5, 16, v{xr}
                  v_and_b32 v6, v9, v{xr}
                  v_lshlrev_b32 v7, 16, v{xr+1}
                  v_and_b32 v8, v9, v{xr+1}
                  v_add_f32 v{a}, v{a}, v5
                  v_add_f32 v{a+1}, v{a+1}, v6
                  v_add_f32 v{a+2}, v{a+2}, v7
                  v_add_f32 v{a+3}, v{a+3}, v8
                  v_cvt_pk_bf16_f32 v{xr}, v{a}, v{a+1}
                  v_cvt_pk_bf16_f32 v{xr+1}, v{a+2}, v{a+3}""")
    A(f"""s_lshl_b32 s41, s19, 18
          s_lshl_b32 s3, s20, 14
          s_add_u32 s41, s41, s3
          s_lshl_b32 s3, s42, 6
          s_add_u32 s41, s41, s3
          s_add_u32 s41, s41, {WS_X1}
          s_add_u32 s47, s41, 8192""")
    for tb in range(2):
        A(f"buffer_store_dwordx4 {v(128+8*tb,4)}, v10, s[24:27], s41 offen offset:{tb*1024}")
        A(f"buffer_store_dwordx4 {v(132+8*tb,4)}, v10, s[24:27], s47 offen offset:{tb*1024}")
    for tb in range(2):
        sm, sq = 40 + 2*tb, 41 + 2*tb
        A(f"v_mov_b32 v{sm}, 0"); A(f"v_mov_b32 v{sq}, 0")
        for i in range(8):
            r = 128 + 8*tb + i
            A(f"""v_lshlrev_b32 v5, 16, v{r}
                  v_and_b32 v6, v9, v{r}
                  v_add_f32 v{sm}, v{sm}, v5
                  v_fmac_f32 v{sq}, v5, v5
                  v_add_f32 v{sm}, v{sm}, v6
                  v_fmac_f32 v{sq}, v6, v6""")
    A("""s_nop 1
         v_permlane32_swap_b32 v40, v41
         v_permlane32_swap_b32 v42, v43
         s_nop 1
         v_add_f32 v40, v40, v41
         v_add_f32 v42, v42, v43
         s_nop 1
         v_permlane16_swap_b32 v40, v42
         s_nop 1
         v_add_f32 v40, v40, v42""")
    A(f"""v_and_b32 v5, 31, v2
          v_lshlrev_b32 v5, 7, v5
          v_lshrrev_b32 v6, 5, v2
          v_lshl_add_u32 v5, v6, 6, v5
          s_lshl_b32 s41, s19, 7
          s_add_u32 s41, s41, s42
          s_lshl_b32 s41, s41, 7
          s_lshl_b32 s3, s20, 2
          s_add_u32 s41, s41, s3
          s_add_u32 s41, s41, {WS_ST}
          buffer_store_dword v40, v5, s[24:27], s41 offen""")
    A("s_waitcnt lgkmcnt(0)")
    for i in range(1, 8): A(f"v_add_f32 v160, v160, v{160+i}")
    A(f"""s_lshr_b32 s3, s2, 4
          s_mul_i32 s41, s3, {F*4}
          s_and_b32 s3, s2, 15
          s_mul_i32 s3, s3, 896
          s_add_u32 s41, s41, s3
          s_add_u32 s41, s41, {WS_CS3}
          v_cmp_gt_u32 vcc, 896, v31
          s_and_saveexec_b64 s[44:45], vcc
          buffer_store_dword v160, v31, s[24:27], s41 offen""")
    if PROF:
        A("s_mov_b64 exec, -1")
        stamp(A, 2)
        A("s_waitcnt vmcnt(0)")
        stamp(A, 3)
        stamp_flush(A, 1, 4, 12, 13, role=1)
    A(f"{Lend}:")
    A("s_endpgm")
    return dict(name=name, grid=256, block=512, lds=LDS_BYTES, vgpr=256)
```

```python
from common import *
SLOT = 16384 + 28672
NS = 3
L_ST = NS * SLOT
L_CS = L_ST + 2048
LDS_BYTES = L_CS + 1024
T = 16

def gen_k3(A, name="k3_kernel"):
    kernel_header(A, name)
    Lend = A.label("k3end"); Lload = A.label("k3load")
    A(f"s_cmp_ge_u32 s2, 256")
    A(f"s_cbranch_scc1 {Lend}")
    stamp(A, 0)
    A(f"s_load_dwordx2 s[8:9], s[0:1], {KA_W3}")
    A(f"s_load_dwordx2 s[12:13], s[0:1], {KA_WS}")
    A("""s_and_b32 s14, s2, 7
         s_lshr_b32 s15, s2, 3
         s_and_b32 s16, s14, 1
         s_lshl_b32 s16, s16, 3
         s_and_b32 s3, s15, 7
         s_add_u32 s16, s16, s3
         s_lshr_b32 s17, s14, 1
         s_lshl_b32 s17, s17, 2
         s_lshr_b32 s3, s15, 3
         s_add_u32 s17, s17, s3""")
    A("""v_lshrrev_b32 v1, 6, v0
         v_and_b32 v2, 63, v0""")
    A("s_nop 0")
    A("v_readfirstlane_b32 s18, v1")
    A("s_waitcnt lgkmcnt(0)")
    srd(A, 24, 12, 13, WS_END)
    A("s_cmp_ge_u32 s18, 4")
    A(f"s_cbranch_scc1 {Lload}")
    ACC, XB0, WB0 = 128, 64, 96
    acc = lambda tb, nb: ACC + 4 * (tb * 7 + nb)
    XB = lambda p, tb: XB0 + 16 * p + 4 * tb
    WB = lambda nb: WB0 + 4 * nb
    A("""s_lshr_b32 s19, s18, 1
         s_and_b32 s20, s18, 1
         v_and_b32 v3, 15, v2
         v_lshrrev_b32 v4, 4, v2""")
    A("""s_lshl_b32 s3, s19, 12
         v_lshl_add_u32 v14, v2, 4, s3""")
    A(f"""v_lshrrev_b32 v5, 2, v3
          v_and_b32 v6, 3, v3
          v_lshl_add_u32 v7, v4, 2, v5
          v_mul_u32_u24 v7, 448, v7
          v_lshl_add_u32 v7, v6, 3, v7
          v_add_u32 v7, 16384, v7
          v_and_b32 v8, 1, v4
          s_mul_i32 s3, s20, 7
          v_xor_b32 v9, s3, v8
          v_lshl_add_u32 v15, v9, 5, v7
          s_add_u32 s3, s3, 1
          v_xor_b32 v9, s3, v8
          v_lshl_add_u32 v16, v9, 5, v7""")
    A("""v_mov_b32 v10, v14
         v_mov_b32 v11, v15
         v_mov_b32 v12, v16
         s_mov_b32 s21, 0""")
    for i in range(112): A(f"v_mov_b32 v{ACC+i}, 0")
    xread = lambda st, tb, dst: f"ds_read_b128 {v(dst,4)}, v10 offset:{st*8192 + tb*1024}"
    wread = lambda st, nb, e, dst: f"ds_read_b64_tr_b16 {v(dst,2)}, v{11+(nb&1)} offset:{(nb>>1)*64 + (st*32 + e*16)*448}"
    def advance():
        return [f"s_add_u32 s21, s21, {SLOT}", f"s_cmp_eq_u32 s21, {NS*SLOT}", "s_cselect_b32 s21, 0, s21",
                "v_add_u32 v10, s21, v14", "v_add_u32 v11, s21, v15", "v_add_u32 v12, s21, v16"]
    A("s_barrier")
    stamp(A, 1)
    if PROF: A("s_waitcnt lgkmcnt(0)")
    compute_loop(A, 4, 7, 2, T, acc, XB, WB, xread, wread, advance, name="k3c")
    stamp(A, 2)
    A(f"""s_lshl_b32 s3, s19, 10
          v_lshl_add_u32 v5, v3, 4, s3
          v_add_u32 v5, {L_ST}, v5
          s_mul_i32 s3, s20, 448
          v_lshl_add_u32 v6, v4, 4, s3
          v_add_u32 v6, {L_CS}, v6
          s_waitcnt lgkmcnt(0)""")
    for tb in range(4): A(f"ds_read_b128 {v(20+4*tb,4)}, v5 offset:{tb*256}")
    for nb in range(7): A(f"ds_read_b128 {v(36+4*nb,4)}, v6 offset:{nb*64}")
    A(f"""s_mul_i32 s28, s16, {HO_PANEL}
          s_mul_i32 s3, s17, {7*8192}
          s_add_u32 s28, s28, s3
          s_lshl_b32 s3, s19, 12
          s_add_u32 s28, s28, s3
          s_add_u32 s28, s28, {WS_HO}
          s_add_u32 s33, s28, {3*8192}
          s_lshl_b32 s3, s20, 15
          s_add_u32 s28, s28, s3
          s_add_u32 s29, s28, 8192
          s_add_u32 s30, s28, 16384
          s_lshl_b32 s3, s20, 3
          s_add_u32 s33, s33, s3
          v_lshlrev_b32 v7, 4, v2
          s_mov_b32 s36, {hexf(GELU_C1)}
          v_mov_b32 v8, {hexf(GELU_C0)}""")
    A("s_waitcnt lgkmcnt(0)")
    Lw1 = A.label("k3wn1");
    def epi(wn):
        groups = [((0,1), 28), ((2,3), 29), ((4,5), 30), ((6,), 33)] if wn == 0 else [((0,), 33), ((1,2), 28), ((3,4), 29), ((5,6), 30)]
        k = 0
        for tb in range(4):
            b = 20 + 4 * tb
            for nbs, sreg in groups:
                regs = [acc(tb, nb) + r for nb in nbs for r in range(4)]
                cs = [36 + 4 * nb + r for nb in nbs for r in range(4)]
                tmp = list(range(64, 64 + len(regs)))
                for r, c in zip(regs, cs): A(f"v_fma_f32 v{r}, -v{b}, v{c}, v{r}")
                for r in regs: A(f"v_mul_f32 v{r}, v{r}, v{b+1}")
                for r, t in zip(regs, tmp): A(f"v_mul_f32 v{t}, v{r}, v{r}")
                for r, t in zip(regs, tmp): A(f"v_fma_f32 v{t}, v{t}, s36, v8")
                for r, t in zip(regs, tmp): A(f"v_mul_f32 v{t}, v{t}, v{r}")
                for r, t in zip(regs, tmp): A(f"v_exp_f32 v{t}, v{t}")
                for r, t in zip(regs, tmp): A(f"v_fma_f32 v{t}, v{t}, v{b+2}, v{b+2}")
                for r, t in zip(regs, tmp): A(f"v_rcp_f32 v{t}, v{t}")
                for r, t in zip(regs, tmp): A(f"v_mul_f32 v{r}, v{r}, v{t}")
                o = 72 + 4 * (k % 8); k += 1
                for i in range(len(regs) // 2): A(f"v_cvt_pk_bf16_f32 v{o+i}, v{regs[2*i]}, v{regs[2*i+1]}")
                if len(nbs) == 2: A(f"buffer_store_dwordx4 {v(o,4)}, v7, s[24:27], s{sreg} offen offset:{tb*1024}")
                else: A(f"buffer_store_dwordx2 {v(o,2)}, v7, s[24:27], s{sreg} offen offset:{tb*1024}")
        stamp(A, 3)
        if PROF: A("s_waitcnt vmcnt(0)")
        stamp(A, 4)
        stamp_flush(A, 2, 5, 12, 13)
        A("s_endpgm")
    A("s_cmp_eq_u32 s20, 1")
    A(f"s_cbranch_scc1 {Lw1}")
    epi(0)
    A(f"{Lw1}:")
    epi(1)
    A(f"{Lload}:")
    A("s_sub_u32 s18, s18, 4")
    srd(A, 28, 8, 9, D * F * 2)
    A("v_lshlrev_b32 v10, 4, v2")
    for i in range(7):
        A(f"""v_add_u32 v3, {i*64}, v2
              v_mul_u32_u24 v4, 2341, v3
              v_lshrrev_b32 v4, 16, v4
              v_mul_u32_u24 v5, 28, v4
              v_sub_u32 v5, v3, v5
              v_bfe_u32 v6, v4, 2, 1
              v_lshlrev_b32 v6, 1, v6
              v_xor_b32 v5, v5, v6
              v_mul_u32_u24 v4, 7168, v4
              v_lshl_add_u32 v{11+i}, v5, 4, v4""")
        if i & 3: A(f"v_subrev_u32 v{11+i}, {(i&3)*1024}, v{11+i}")
    A(f"""s_lshl_b32 s37, s18, 12
          s_lshl_b32 s33, s16, 18
          s_add_u32 s33, s33, s37
          s_add_u32 s33, s33, {WS_X1}
          s_mul_i32 s34, s18, {16*7168}
          s_mul_i32 s3, s17, 448
          s_add_u32 s34, s34, s3
          s_mul_i32 s38, s18, 7168
          s_add_u32 s38, s38, 16384""")
    if "rot3" in EXP:
        A("""s_and_b32 s36, s16, 7
             s_lshl_b32 s36, s36, 1
             s_lshl_b32 s3, s17, 2
             s_add_u32 s36, s36, s3
             s_and_b32 s36, s36, 15""")
    else:
        A("s_mov_b32 s36, 0")
    def issue(slot):
        A(f"""s_add_u32 m0, s37, {slot}
              s_lshl_b32 s41, s36, 14
              s_add_u32 s41, s41, s33""")
        for i in range(4): A(f"buffer_load_dwordx4 v10, s[24:27], s41 offen offset:{i*1024} lds")
        A(f"""s_add_u32 m0, s38, {slot}
              s_mul_i32 s41, s36, {64*7168}
              s_add_u32 s41, s41, s34""")
        for i in range(7):
            if i == 4:
                A("s_add_u32 m0, m0, 4096"); A("s_add_u32 s36, s36, 1")
            A(f"buffer_load_dwordx4 v{11+i}, s[28:31], s41 offen offset:{(i&3)*1024} lds")
        A("s_and_b32 s36, s36, 15")
    issue(0); issue(SLOT)
    A(f"""s_lshl_b32 s3, s18, 6
          v_add_u32 v3, s3, v2
          v_lshlrev_b32 v4, 6, v3
          s_lshl_b32 s41, s16, 14
          s_add_u32 s41, s41, {WS_ST}""")
    for i in range(4): A(f"buffer_load_dwordx4 {v(32+4*i,4)}, v4, s[24:27], s41 offen offset:{i*16}")
    A(f"""v_lshrrev_b32 v5, 1, v3
          v_lshlrev_b32 v5, 2, v5
          s_lshl_b32 s41, s16, 9
          s_add_u32 s41, s41, {WS_G}
          buffer_load_dword v48, v5, s[24:27], s41 offen
          v_lshlrev_b32 v6, 2, v3
          s_mul_i32 s41, s17, 896
          s_add_u32 s41, s41, {WS_CS3}""")
    for i in range(16):
        A(f"buffer_load_dword v{64+i}, v6, s[24:27], s41 offen")
        if i < 15: A(f"s_add_u32 s41, s41, {F*4}")
    A(f"s_waitcnt vmcnt({11+21})")
    A("s_barrier")
    issue(2 * SLOT)
    A("s_waitcnt vmcnt(11)")
    for i in range(1, 16): A(f"v_add_f32 v32, v32, v{32+i}")
    for i in range(1, 16): A(f"v_add_f32 v64, v64, v{64+i}")
    A(f"""v_mul_f32 v32, {hexf(1.0/1024)}, v32
          s_nop 1
          v_mov_b32_dpp v33, v32 quad_perm:[1,0,3,2] row_mask:0xf bank_mask:0xf
          v_mov_b32 v7, {hexf(1e-5)}
          v_fma_f32 v33, -v32, v32, v33
          v_add_f32 v33, v33, v7
          v_max_f32 v33, v33, v7
          v_rsq_f32 v33, v33
          v_sub_f32 v34, 1.0, v48
          v_cvt_pk_bf16_f32 v34, v34, v34
          v_and_b32 v34, 0xffff0000, v34
          v_max_f32 v34, {hexf(2.0**-60)}, v34
          v_rcp_f32 v34, v34
          v_lshlrev_b32 v5, 2, v5
          v_add_u32 v5, {L_ST}, v5
          v_add_u32 v6, {L_CS}, v6
          ds_write_b32 v6, v64
          v_and_b32 v7, 1, v3
          v_cmp_eq_u32 vcc, 0, v7
          s_and_saveexec_b64 s[44:45], vcc
          ds_write_b128 v5, v[32:35]
          s_mov_b64 exec, s[44:45]
          s_waitcnt lgkmcnt(0)
          s_barrier""")
    A(f"s_mov_b32 s44, 0")
    A(f"s_mov_b32 s40, {T-3}")
    L = A.label("k3lloop")
    A(f"{L}:")
    issue("s44")
    A(f"""s_add_u32 s44, s44, {SLOT}
          s_cmp_eq_u32 s44, {NS*SLOT}
          s_cselect_b32 s44, 0, s44
          s_waitcnt vmcnt(11)
          s_barrier
          s_sub_u32 s40, s40, 1
          s_cmp_lg_u32 s40, 0
          s_cbranch_scc1 {L}""")
    A("""s_waitcnt vmcnt(0)
         s_barrier
         s_barrier""")
    A(f"{Lend}:")
    A("s_endpgm")
    return dict(name=name, grid=256, block=512, lds=LDS_BYTES, vgpr=256)
```

```python
from common import *
SLOT = 24576
NS = 6
LDS_BYTES = NS * SLOT
T = 72

def gen_k4(A, name="k4_kernel"):
    kernel_header(A, name)
    Lend = A.label("k4end"); Lload = A.label("k4load")
    A(f"s_cmp_ge_u32 s2, 256")
    A(f"s_cbranch_scc1 {Lend}")
    stamp(A, 0)
    A(f"s_load_dwordx2 s[6:7], s[0:1], {KA_WO}")
    A(f"s_load_dwordx2 s[8:9], s[0:1], {KA_W4}")
    A(f"s_load_dwordx2 s[10:11], s[0:1], {KA_OUT}")
    A(f"s_load_dwordx2 s[12:13], s[0:1], {KA_WS}")
    A("""s_and_b32 s14, s2, 7
         s_lshr_b32 s15, s2, 3
         s_and_b32 s16, s14, 3
         s_lshl_b32 s16, s16, 2
         s_and_b32 s3, s15, 3
         s_add_u32 s16, s16, s3
         s_lshr_b32 s17, s14, 2
         s_lshl_b32 s17, s17, 3
         s_lshr_b32 s3, s15, 2
         s_add_u32 s17, s17, s3""")
    A("""v_lshrrev_b32 v1, 6, v0
         v_and_b32 v2, 63, v0""")
    A("s_nop 0")
    A("v_readfirstlane_b32 s18, v1")
    A("s_waitcnt lgkmcnt(0)")
    srd(A, 24, 12, 13, WS_END)
    A("s_cmp_ge_u32 s18, 4")
    A(f"s_cbranch_scc1 {Lload}")
    ACC, XB0, WB0 = 128, 64, 96
    acc = lambda tb, nb: ACC + 4 * (tb * 4 + nb)
    XB = lambda p, tb: XB0 + 16 * p + 4 * tb
    WB = lambda nb: WB0 + 4 * nb
    A(f"""s_lshr_b32 s19, s18, 1
          s_and_b32 s20, s18, 1
          v_lshlrev_b32 v9, 4, v2
          s_lshl_b32 s3, s19, 13
          s_lshl_b32 s41, s20, 12
          s_add_u32 s3, s3, s41
          v_add_u32 v15, s3, v9
          v_and_b32 v3, 15, v2
          v_lshrrev_b32 v4, 4, v2
          v_lshrrev_b32 v5, 2, v3
          v_and_b32 v6, 3, v3
          v_lshl_add_u32 v7, v4, 2, v5
          v_bfe_u32 v8, v7, 1, 2
          v_lshlrev_b32 v7, 7, v7
          v_lshl_add_u32 v7, v6, 3, v7
          v_lshl_add_u32 v7, v8, 5, v7
          s_lshl_b32 s3, s19, 12
          s_add_u32 s3, s3, 16384
          v_add_u32 v16, s3, v7
          v_xor_b32 v17, 32, v16
          v_xor_b32 v18, 64, v16
          v_xor_b32 v19, 96, v16""")
    for i in range(5): A(f"v_mov_b32 v{10+i}, v{15+i}")
    A("s_mov_b32 s21, 0")
    A(f"""s_lshl_b32 s3, s20, 6
          s_lshl_b32 s42, s19, 5
          s_add_u32 s42, s42, s3
          s_lshl_b32 s41, s16, 18
          s_lshl_b32 s3, s17, 14
          s_add_u32 s41, s41, s3
          s_lshl_b32 s3, s42, 6
          s_add_u32 s41, s41, s3
          s_add_u32 s41, s41, {WS_X1}
          s_add_u32 s43, s41, 8192""")
    for tb in range(2):
        A(f"buffer_load_dwordx4 {v(32+8*tb,4)}, v9, s[24:27], s41 offen offset:{tb*1024}")
        A(f"buffer_load_dwordx4 {v(36+8*tb,4)}, v9, s[24:27], s43 offen offset:{tb*1024}")
    A(f"""s_lshl_b32 s41, s16, 7
          s_add_u32 s42, s42, s41
          s_lshl_b32 s41, s42, 2
          s_add_u32 s41, s41, {WS_G}
          v_lshlrev_b32 v5, 2, v3
          buffer_load_dword v48, v5, s[24:27], s41 offen
          buffer_load_dword v49, v5, s[24:27], s41 offen offset:64""")
    for i in range(64): A(f"v_mov_b32 v{ACC+i}, 0")
    xread = lambda st, tb, dst: f"ds_read_b128 {v(dst,4)}, v10 offset:{tb*1024}"
    wread = lambda st, nb, e, dst: f"ds_read_b64_tr_b16 {v(dst,2)}, v{11+nb} offset:{e*2048}"
    def advance():
        return [f"s_add_u32 s21, s21, {SLOT}", f"s_cmp_eq_u32 s21, {NS*SLOT}", "s_cselect_b32 s21, 0, s21"] + [f"v_add_u32 v{10+i}, s21, v{15+i}" for i in range(5)]
    A("s_barrier")
    stamp(A, 1)
    if PROF: A("s_waitcnt lgkmcnt(0)")
    compute_loop(A, 4, 4, 2, T // 2, acc, XB, WB, xread, wread, advance, name="k4c", bar_after=1, every_step=True)
    stamp(A, 2)
    A(f"""s_lshl_b32 s3, s18, 13
          v_add_u32 v20, s3, v9
          s_xor_b32 s3, s3, 16384
          v_add_u32 v21, s3, v9
          s_waitcnt lgkmcnt(0)
          s_nop 4""")
    Lk1 = A.label("k4kh1"); Lk2 = A.label("k4khj")
    A("s_cmp_eq_u32 s19, 1")
    A(f"s_cbranch_scc1 {Lk1}")
    for i in range(8): A(f"ds_write_b128 v20, {v(ACC+32+4*i,4)} offset:{i*1024}")
    A(f"s_branch {Lk2}")
    A(f"{Lk1}:")
    for i in range(8): A(f"ds_write_b128 v20, {v(ACC+4*i,4)} offset:{i*1024}")
    for i in range(32): A(f"v_mov_b32 v{ACC+i}, v{ACC+32+i}")
    A(f"{Lk2}:")
    A("s_waitcnt lgkmcnt(0) vmcnt(0)")
    A("s_barrier")
    for i in range(8): A(f"ds_read_b128 {v(64+4*i,4)}, v21 offset:{i*1024}")
    srd(A, 28, 10, 11, S * D * 2)
    A(f"""v_sub_f32 v48, 1.0, v48
          v_sub_f32 v49, 1.0, v49
          v_mov_b32 v8, 0xffff0000
          v_cvt_pk_bf16_f32 v48, v48, v48
          v_cvt_pk_bf16_f32 v49, v49, v49
          v_and_b32 v48, v8, v48
          v_and_b32 v49, v8, v49""")
    for tb in range(2):
        for nb in range(4):
            a = ACC + 4 * (tb * 4 + nb); xr = 32 + 8 * tb + 2 * nb
            A(f"""v_lshlrev_b32 v5, 16, v{xr}
                  v_and_b32 v6, v8, v{xr}
                  v_lshlrev_b32 v7, 16, v{xr+1}
                  v_and_b32 v22, v8, v{xr+1}
                  v_fmac_f32 v{a}, v5, v{48+tb}
                  v_fmac_f32 v{a+1}, v6, v{48+tb}
                  v_fmac_f32 v{a+2}, v7, v{48+tb}
                  v_fmac_f32 v{a+3}, v22, v{48+tb}""")
    A(f"""v_lshlrev_b32 v5, 11, v3
          v_and_b32 v6, 1, v4
          v_lshl_add_u32 v5, v6, 5, v5
          v_lshrrev_b32 v6, 1, v4
          v_lshl_add_u32 v5, v6, 4, v5
          s_lshl_b32 s41, s42, 11
          s_lshl_b32 s3, s17, 7
          s_add_u32 s41, s41, s3
          s_add_u32 s43, s41, {16*2048}
          s_waitcnt lgkmcnt(0)""")
    for i in range(32): A(f"v_add_f32 v{ACC+i}, v{ACC+i}, v{64+i}")
    for tb in range(2):
        for p in range(2):
            a0 = ACC + 4 * (tb * 4 + 2 * p); a1 = a0 + 4
            o = 96 + 4 * (tb * 2 + p)
            A(f"""v_cvt_pk_bf16_f32 v{o}, v{a0}, v{a0+1}
                  v_cvt_pk_bf16_f32 v{o+1}, v{a0+2}, v{a0+3}
                  v_cvt_pk_bf16_f32 v{o+2}, v{a1}, v{a1+1}
                  v_cvt_pk_bf16_f32 v{o+3}, v{a1+2}, v{a1+3}
                  s_nop 1
                  v_permlane16_swap_b32 v{o}, v{o+2}
                  v_permlane16_swap_b32 v{o+1}, v{o+3}
                  buffer_store_dwordx4 {v(o,4)}, v5, s[28:31], s{41 if tb == 0 else 43} offen offset:{p*64}""")
    stamp(A, 3)
    if PROF: A("s_waitcnt vmcnt(0)")
    stamp(A, 4)
    stamp_flush(A, 3, 5, 12, 13)
    A("s_endpgm")
    A(f"{Lload}:")
    A("s_sub_u32 s18, s18, 4")
    srd(A, 28, 8, 9, F * D * 2)
    A("s_and_b32 s7, s7, 0xffff")
    A("s_and_b32 s9, s9, 0xffff")
    A("v_lshlrev_b32 v10, 4, v2")
    A(f"""v_lshrrev_b32 v3, 3, v2
          v_and_b32 v4, 7, v2
          v_and_b32 v5, 6, v3
          v_xor_b32 v5, v5, v4
          s_lshl_b32 s3, s18, 4
          v_add_u32 v6, s3, v3
          v_lshlrev_b32 v6, 11, v6
          v_lshl_add_u32 v11, v5, 4, v6
          s_lshl_b32 s3, s17, 7
          v_add_u32 v11, s3, v11
          v_add_u32 v12, {8*2048 - 1024}, v11""")
    A(f"""s_lshl_b32 s37, s18, 12
          s_mul_i32 s33, s16, {HO_PANEL}
          s_add_u32 s33, s33, s37
          s_add_u32 s33, s33, {WS_HO}
          s_lshl_b32 s38, s18, 11
          s_add_u32 s38, s38, 16384
          s_mov_b32 s36, 0
          s_mov_b32 s46, {F*D*2}""")
    def issue(slot):
        A(f"""s_add_u32 m0, s37, {slot}
              s_lshl_b32 s41, s36, 14
              s_add_u32 s41, s41, s33""")
        for i in range(4): A(f"buffer_load_dwordx4 v10, s[24:27], s41 offen offset:{i*1024} lds")
        A(f"""s_add_u32 m0, s38, {slot}
              s_sub_u32 s3, s36, 56
              s_cmp_ge_u32 s36, 56
              s_cselect_b32 s28, s6, s8
              s_cselect_b32 s29, s7, s9
              s_cselect_b32 s30, {D*D*2}, s46
              s_cselect_b32 s3, s3, s36
              s_lshl_b32 s41, s3, 17""")
        A("buffer_load_dwordx4 v11, s[28:31], s41 offen lds")
        A("buffer_load_dwordx4 v12, s[28:31], s41 offen offset:1024 lds")
        A(f"""s_add_u32 s36, s36, 1
              s_cmp_eq_u32 s36, {T}
              s_cselect_b32 s36, 0, s36""")
    for j in range(NS - 1): issue(j * SLOT)
    A(f"s_waitcnt vmcnt({6*(NS-2)})")
    A("s_barrier")
    A(f"s_mov_b32 s44, {(NS-1)*SLOT}")
    A(f"s_mov_b32 s40, {T-NS+1}")
    L = A.label("k4lloop")
    A(f"{L}:")
    issue("s44")
    A(f"""s_add_u32 s44, s44, {SLOT}
          s_cmp_eq_u32 s44, {NS*SLOT}
          s_cselect_b32 s44, 0, s44
          s_waitcnt vmcnt({6*(NS-2)})
          s_barrier
          s_sub_u32 s40, s40, 1
          s_cmp_lg_u32 s40, 0
          s_cbranch_scc1 {L}""")
    for j in range(NS - 1):
        A(f"s_waitcnt vmcnt({max(0, 6*(NS-3-j))})")
        A("s_barrier")
    A(f"{Lend}:")
    A("s_endpgm")
    return dict(name=name, grid=256, block=512, lds=LDS_BYTES, vgpr=256)
```

```python
import sys
from common import *
import k1, k2, k3, k4
HDR = open("gated_mix__softmax_full_mha__mixer_s_mlp__prompt.s.ref").read().split("; Override")[0]
def build(kernels, path):
    A = Asm()
    infos = [k(A) for k in kernels]
    out = HDR
    for i in infos:
        out += f"; @launch kernel={i['name']} grid=({i['grid']},1,1) block=({i['block']},1,1) lds={i['lds']}\n"
    out += '.amdgcn_target "amdgcn-amd-amdhsa--gfx950"\n.text\n'
    out += A.text()
    out += '.section .rodata,"a"\n'
    for i in infos: out += kernel_desc(i['name'], i['vgpr'])
    open(path, "w").write(out)
    import hazard
    for x in hazard.check(out): print(f"HAZARD line {x[0]} -> {x[1]}: need {x[2]} have {x[3]}: [{x[4]}] -> [{x[5]}]")
if __name__ == "__main__":
    build([k1.gen_k1, k2.gen_k2, k3.gen_k3, k4.gen_k4], sys.argv[1])
```

```python
from dsl import *
import os
EXP = os.environ.get('EXP', '').split(',')
S, D, H, DH, F = 2048, 1024, 32, 32, 3584
KA_X, KA_WQKV, KA_WO, KA_BX, KA_W1, KA_W2, KA_W3, KA_W4, KA_G, KA_OUT, KA_DBG, KA_WS = [8*i for i in range(12)]
WS_Q   = 0x0000000
WS_KV  = 0x0400000
WS_H1  = 0x0C00000
WS_X1  = 0x1000000
WS_HO  = 0x1400000
HO_PANEL = 144 * 8192
WS_G   = 0x2600000
WS_ST  = 0x2610000
WS_CS3 = 0x2700000
WS_ST1 = 0x2660000
WS_CS1 = 0x26A0000
WS_FLAG = 0x2680000
WS_EX  = 0x2800000
F_KV = WS_FLAG
F_EX = WS_FLAG + 0x8000
F_H1 = WS_FLAG + 0x10000
F_X1 = WS_FLAG + 0x11000
F_O  = WS_FLAG + 0x12000
F_H2 = WS_FLAG + 0x13000
WS_END = 0x3000000

GELU_C0 = -2.0 * 1.4426950408889634 * 0.7978845608028654
GELU_C1 = GELU_C0 * 0.044715

def kernel_header(A, name):
    A.lines.append(f".p2align 8")
    A.lines.append(f".globl {name}")
    A.lines.append(f".type {name},@function")
    A.lines.append(f"{name}:")

def kernel_desc(name, vgpr, sgpr=96):
    acc = (vgpr + 3) // 4 * 4
    return f""".p2align 6
.amdhsa_kernel {name}
  .amdhsa_next_free_vgpr {vgpr}
  .amdhsa_next_free_sgpr {sgpr}
  .amdhsa_accum_offset {acc}
  .amdhsa_group_segment_fixed_size 0
  .amdhsa_kernarg_size 96
  .amdhsa_user_sgpr_count 2
  .amdhsa_user_sgpr_kernarg_segment_ptr 1
  .amdhsa_system_sgpr_workgroup_id_x 1
  .amdhsa_float_denorm_mode_32 {0 if "nodenorm" in EXP else 3}
.end_amdhsa_kernel
"""

def gelu(A, regs, tmp, sC0, sC1):
    n = len(regs)
    for r, t in zip(regs, tmp): A(f"v_mul_f32 v{t}, v{r}, v{r}")
    for r, t in zip(regs, tmp): A(f"v_fma_f32 v{t}, v{t}, s{sC1}, v{sC0}")
    for r, t in zip(regs, tmp): A(f"v_mul_f32 v{t}, v{t}, v{r}")
    for r, t in zip(regs, tmp): A(f"v_exp_f32 v{t}, v{t}")
    if n < 2: A("s_nop 0")
    for r, t in zip(regs, tmp): A(f"v_add_f32 v{t}, 1.0, v{t}")
    for r, t in zip(regs, tmp): A(f"v_rcp_f32 v{t}, v{t}")
    if n < 2: A("s_nop 0")
    for r, t in zip(regs, tmp): A(f"v_mul_f32 v{r}, v{r}, v{t}")

def compute_loop(A, NT, NN, KS, T, acc, XB, WB, xread, wread, advance, swapped=(), bar_after=2, sCnt=40, name="c", every_step=False, once=None):
    assert KS % 2 == 0
    pre = []
    for tb in range(NT): pre.append(Item(xread(0, tb, XB(0, tb)), gives=("X", 0, tb)))
    for nb in range(NN):
        for e in range(2): pre.append(Item(wread(0, nb, e, WB(nb) + 2*e), gives=("W", nb, e)))
    for it in pre: A(it.text)
    body = []
    for st in range(KS):
        p = st & 1
        last = st == KS - 1 or every_step
        fin = st == KS - 1
        nst = (st + 1) % KS
        pend = []
        xq = [Item(xread(nst, tb, XB(1 - p, tb)), gives=("X", 1 - p, tb)) for tb in range(NT)]
        adv = [Item(t) for t in advance()] if last else []
        tail = [Item(f"s_sub_u32 s{sCnt}, s{sCnt}, 1"), Item(f"s_cmp_lg_u32 s{sCnt}, 0")] if fin else []
        for nb in range(NN):
            for tb in range(NT):
                a = acc(tb, nb)
                if nb in swapped:
                    txt = f"v_mfma_f32_16x16x32_bf16 {v(a,4)}, {v(XB(p,tb),4)}, {v(WB(nb),4)}, {v(a,4)}"
                else:
                    txt = f"v_mfma_f32_16x16x32_bf16 {v(a,4)}, {v(WB(nb),4)}, {v(XB(p,tb),4)}, {v(a,4)}"
                body.append(Item(txt, needs=[("X", p, tb), ("W", nb, 0), ("W", nb, 1)]))
                if last and nb < bar_after:
                    if adv: body.append(adv.pop(0))
                elif pend: body.append(pend.pop(0))
                elif xq: body.append(xq.pop(0))
                elif tail: body.append(tail.pop(0))
            pend += [Item(wread(nst, nb, e, WB(nb) + 2*e), gives=("W", nb, e)) for e in range(2)]
            if last and nb == bar_after - 1:
                for it in adv: body.append(it)
                body.append(Item("s_barrier", drain=True))
        for it in xq + pend + tail: body.append(it)
    lines = insert_lgkm_waits(pre, body, maxcnt=6)
    L = A.label(name + "loop")
    A(f"s_mov_b32 s{sCnt}, {T if once is None else once[0]}")
    if once is not None: A(f"s_mov_b32 s{sCnt+1}, {T - once[0]}")
    A(f"{L}:")
    for l in lines:
        if "noread" in EXP and l.startswith("ds_read"): continue
        if "nomfma" in EXP and l.startswith("v_mfma"): continue
        A(l)
    A(f"s_cbranch_scc1 {L}")
    if once is not None:
        Lx = A.label(name + "exit")
        A(f"s_cmp_eq_u32 s{sCnt+1}, 0")
        A(f"s_cbranch_scc1 {Lx}")
        once[1]()
        A(f"s_mov_b32 s{sCnt}, s{sCnt+1}")
        A(f"s_mov_b32 s{sCnt+1}, 0")
        A(f"s_branch {L}")
        A(f"{Lx}:")

import os
PROF = int(os.environ.get("PROF", "0"))
WS_PROF = 0x2780000
def stamp(A, i):
    if not PROF: return
    A(f"s_memrealtime s[{64+4*i}:{65+4*i}]")
    A(f"s_memtime s[{66+4*i}:{67+4*i}]")
def stamp_flush(A, kidx, n, wslo, wshi, role=0):
    if not PROF: return
    A("s_waitcnt lgkmcnt(0)")
    srd(A, 56, wslo, wshi, WS_END)
    for i in range(n):
        A(f"v_mov_b32 v{2+2*i}, s{64+4*i}")
        A(f"v_mov_b32 v{3+2*i}, s{66+4*i}")
    A(f"s_lshl_b32 s60, s2, 7")
    A(f"s_add_u32 s60, s60, {WS_PROF + kidx*65536 + role*64}")
    A("v_mov_b32 v1, 0")
    A("s_mov_b64 exec, 1")
    for i in range(n):
        A(f"buffer_store_dwordx2 v[{2+2*i}:{3+2*i}], v1, s[56:59], s60 offen offset:{8*i}")

STF = os.environ.get("STF", " sc1")
def touch_linear(A, srdreg, nbytes, vaddr, vdummy, swave, nwaves_total_log2, sidx, stmp):
    per = 8192 << nwaves_total_log2
    n = -(-nbytes // per)
    A(f"s_lshl_b32 s{stmp}, s{sidx}, 13")
    for i in range(n):
        A(f"buffer_load_dword v{vdummy}, v{vaddr}, s[{srdreg}:{srdreg+3}], s{stmp} offen")
        if i < n - 1: A(f"s_add_u32 s{stmp}, s{stmp}, {per}")

OOB = 0x7ffffff0
def gelu_pk(A, zs, css, st, tmps, outs):
    p = lambda r: v(r, 2)
    for z, c in zip(zs, css): A(f"v_pk_fma_f32 {p(z)}, {p(c)}, {p(st)}, {p(z)} op_sel_hi:[1,0,1] neg_lo:[0,1,0] neg_hi:[0,1,0]")
    for z, t in zip(zs, tmps): A(f"v_pk_mul_f32 {p(t)}, {p(z)}, {p(z)}")
    for z, t in zip(zs, tmps): A(f"v_pk_fma_f32 {p(t)}, {p(t)}, {p(st+2)}, {p(st)} op_sel:[0,0,1] op_sel_hi:[1,0,1]")
    for z, t in zip(zs, tmps): A(f"v_pk_mul_f32 {p(t)}, {p(t)}, {p(z)}")
    for t in tmps[:len(zs)]:
        A(f"v_exp_f32 v{t}, v{t}"); A(f"v_exp_f32 v{t+1}, v{t+1}")
    for z, t in zip(zs, tmps): A(f"v_pk_fma_f32 {p(t)}, {p(t)}, {p(st+2)}, {p(st+2)} op_sel:[0,1,1] op_sel_hi:[1,1,1]")
    for t in tmps[:len(zs)]:
        A(f"v_rcp_f32 v{t}, v{t}"); A(f"v_rcp_f32 v{t+1}, v{t+1}")
    for z, t in zip(zs, tmps): A(f"v_pk_mul_f32 {p(z)}, {p(z)}, {p(t)}")
    for z, o in zip(zs, outs): A(f"v_cvt_pk_bf16_f32 v{o}, v{z}, v{z+1}")

def ln_consts(A, b, tmp, wreg=None):
    A(f"""v_fma_f32 v{b+1}, -v{b}, v{b}, v{b+1}
          v_max_f32 v{b+1}, 0, v{b+1}
          v_add_f32 v{b+1}, {hexf(1e-5)}, v{b+1}
          v_rsq_f32 v{tmp}, v{b+1}
          v_sqrt_f32 v{b+3}, v{b+1}""")
    if wreg is not None: A(f"v_rcp_f32 v{wreg}, v{wreg}")
    A(f"""v_mul_f32 v{b+2}, v{tmp}, v{tmp}
          v_mul_f32 v{b+1}, {hexf(GELU_C0)}, v{tmp}
          v_mul_f32 v{b+2}, v{b+2}, v{tmp}
          v_mul_f32 v{b+2}, {hexf(GELU_C1)}, v{b+2}""")
    if wreg is not None: A(f"v_mul_f32 v{b+3}, v{b+3}, v{wreg}")

def spin_until(A, check, reload, name):
    Lok = A.label(name + "ok"); Lsp = A.label(name + "sp")
    A("s_mov_b32 s62, 0x8000")
    A(f"{Lsp}:")
    check()
    A(f"""s_cbranch_vccz {Lok}
          s_sub_u32 s62, s62, 1
          s_cmp_eq_u32 s62, 0
          s_cbranch_scc1 {Lok}
          s_sleep 4""")
    reload()
    A("s_waitcnt vmcnt(0)")
    A(f"s_branch {Lsp}")
    A(f"{Lok}:")

def interleave(A, main, fill):
    n = sum(1 for l in main if "buffer_load" in l)
    k = 0; done = 0
    for l in main:
        A.lines.append(l)
        if "buffer_load" in l:
            k += 1
            e = len(fill) * k // n
            A.lines += fill[done:e]; done = e

class VM:
    def __init__(self, A): self.A = A; self.log = []
    def op(self, text, tag=None):
        for l in text.split("\n"):
            l = l.strip()
            if not l: continue
            self.A(l)
            if l.startswith("buffer_"): self.log.append(tag)
    def note(self, n, tag): self.log += [tag] * n
    def count(self, *tags):
        idx = max(i for i, t in enumerate(self.log) if t in tags)
        return len(self.log) - 1 - idx
    def wait(self, *tags, lg=False):
        self.A(f"s_waitcnt vmcnt({self.count(*tags)})" + (" lgkmcnt(0)" if lg else ""))

def fstamp(A, i):
    if not PROF: return
    A("s_memrealtime s[96:97]")
    A("s_memtime s[98:99]")
    A("s_waitcnt lgkmcnt(0)")
    A(f"v_writelane_b32 v62, s96, {i}")
    A(f"v_writelane_b32 v63, s98, {i}")
def fstamp_flush(A, role):
    if not PROF: return
    A(f"""s_lshl_b32 s3, s2, 9
          s_add_u32 s3, s3, {WS_PROF + role*256}
          v_and_b32 v1, 63, v0
          v_lshlrev_b32 v1, 3, v1
          s_mov_b32 exec_hi, 0
          buffer_store_dwordx2 v[62:63], v1, s[4:7], s3 offen""")
```

```python
from common import *
from k1 import job_stats as _js, job_gate as _jg
import k1
NAME = "gated_mix__softmax_full_mha__mixer_s_mlp__prompt_kernel"
P_X, P_WQKV, P_WO, P_BX, P_W1, P_W2, P_W3, P_W4, P_G, P_OUT, P_DBG, P_WS = [64 + 2*i for i in range(12)]
QSCALE = (DH ** -0.5) * 1.4426950408889634
S1 = 49152
L_MISC = 155648
L_ST = L_MISC
L_CS = L_ST + 2048
L_GT = L_CS + 1024
L_NON = L_GT + 512
L_JOB = L_NON + 64
LDS_BYTES = 163840
k1.L_JOB = L_JOB
KVS = 32768
L_W2W = 65536
L_W2X = 98304
L_XR = 131072
L_C3 = 147456
S3 = 45056; L3 = 20480
S4 = 32768
WOFF = int(os.environ.get("WOFF", "2"))
WS = "s[4:7]"
dppadd = lambda r, sh: f"v_add_f32_dpp v{r}, v{r}, v{r} row_ror:{sh} row_mask:0xf bank_mask:0xf"

def flag_store(A, soff_sreg, vtmp=1):
    A(f"""v_mov_b32 v{vtmp}, s12
          s_mov_b64 exec, 1
          buffer_store_dword v{vtmp}, off, {WS}, s{soff_sreg} sc1
          s_mov_b64 exec, -1""")

def gen(A):
    kernel_header(A, NAME)
    Lend = A.label("end"); Lcomp = A.label("comp")
    A(f"s_cmp_ge_u32 s2, 256")
    A(f"s_cbranch_scc1 {Lend}")
    A("s_load_dwordx16 s[64:79], s[0:1], 0")
    A("s_load_dwordx8 s[80:87], s[0:1], 64")
    A("""v_lshrrev_b32 v1, 6, v0
         v_and_b32 v2, 63, v0
         s_and_b32 s14, s2, 7
         v_readfirstlane_b32 s18, v1
         s_lshr_b32 s15, s2, 3
         s_and_b32 s16, s14, 1
         s_lshl_b32 s16, s16, 3
         s_and_b32 s3, s15, 7
         s_add_u32 s16, s16, s3
         s_lshr_b32 s17, s14, 1
         s_lshl_b32 s17, s17, 2
         s_lshr_b32 s3, s15, 3
         s_add_u32 s17, s17, s3""")
    A(f"""s_add_u32 s13, s17, {WOFF}
          s_and_b32 s13, s13, 15""")
    A("s_cmp_lt_u32 s18, 4")
    A(f"s_cbranch_scc1 {Lcomp}")
    helper(A)
    A(f"{Lend}:")
    A("s_endpgm")
    A(f"{Lcomp}:")
    compute(A)
    return dict(name=NAME, grid=256, block=512, lds=LDS_BYTES, vgpr=256)

def helper(A):
    A("s_sub_u32 s18, s18, 4")
    if PROF: A("v_mov_b64 v[62:63], 0")
    A(f"""v_lshrrev_b32 v3, 3, v2
          v_and_b32 v4, 7, v2
          v_lshrrev_b32 v5, 1, v3
          v_xor_b32 v5, v5, v4
          s_lshl_b32 s3, s16, 7
          s_lshl_b32 s36, s18, 5
          s_add_u32 s3, s3, s36
          v_add_u32 v6, s3, v3
          v_lshlrev_b32 v6, 11, v6
          v_lshl_add_u32 v10, v5, 4, v6
          v_xor_b32 v11, 64, v10
          v_add_u32 v11, {8*2048 - 1024}, v11
          v_add_u32 v12, {16*2048 - 2048}, v10
          v_add_u32 v13, {16*2048 - 2048}, v11""")
    ra, rb = [int(x) for x in os.environ.get("ROT1", "2,0").split(",")]
    A(f"""s_lshl_b32 s3, s18, 11
          s_mov_b32 s30, {D*3*D*2}
          s_mov_b32 s32, 6144
          s_cmp_eq_u32 s18, 3
          s_cselect_b32 s30, {D*D*2}, s30
          s_cselect_b32 s32, 2048, s32
          s_cselect_b32 s33, 0, s3
          s_cselect_b32 s3, s13, s17
          s_mov_b32 s31, 0x20000
          s_lshl_b32 s3, s3, 7
          s_add_u32 s33, s33, s3
          s_lshl_b32 s34, s32, 4
          s_lshl_b32 s35, s32, 6
          s_lshl_b32 s37, s18, 12
          s_lshl_b32 s38, s18, 13
          s_add_u32 s38, s38, 16384
          s_mul_i32 s52, s16, {ra}
          s_mul_i32 s3, s17, {rb}
          s_add_u32 s52, s52, s3
          s_and_b32 s52, s52, 15""")
    A("""v_and_b32 v5, 2, v3
         v_xor_b32 v5, v5, v4
         v_mul_lo_u32 v6, v3, s32
         v_lshl_add_u32 v14, v5, 4, v6
         v_xor_b32 v5, 4, v5
         v_lshl_add_u32 v15, v5, 4, v6
         s_lshl_b32 s3, s32, 3
         s_sub_u32 s3, s3, 1024
         v_add_u32 v15, s3, v15""")
    A("s_waitcnt lgkmcnt(0)")
    srd(A, 24, P_X, P_X + 1, S * D * 2)
    A(f"""s_cmp_eq_u32 s18, 3
          s_cselect_b32 s28, s{P_W1}, s{P_WQKV}
          s_cselect_b32 s29, s{P_W1+1}, s{P_WQKV+1}
          s_and_b32 s29, s29, 0xffff""")
    def issue(slot, mid=None, A=A):
        A(f"s_add_u32 m0, s37, {slot}")
        A("s_lshl_b32 s39, s52, 7")
        for i in range(4):
            A(f"buffer_load_dwordx4 v{10+i}, s[24:27], s39 offen offset:{i*1024} lds")
        if mid: mid()
        A(f"s_add_u32 s45, s38, {slot}")
        A("s_mul_i32 s41, s52, s35")
        A("s_add_u32 s41, s41, s33")
        for i in range(4):
            A(f"s_add_u32 m0, s45, {i*2048}")
            if i: A("s_add_u32 s41, s41, s34")
            else: A("s_add_u32 s52, s52, 1")
            A(f"buffer_load_dwordx4 v14, s[28:31], s41 offen lds")
            A(f"buffer_load_dwordx4 v15, s[28:31], s41 offen offset:1024 lds")
        A("s_and_b32 s52, s52, 15")
    fstamp(A, 0)
    issue(0)
    def barP():
        A("s_waitcnt vmcnt(4)")
        A("s_barrier")
    issue(S1, barP)
    slot = lambda t: (t % 3) * S1
    def endit(n, lg=False):
        A(f"s_waitcnt vmcnt({n})" + (" lgkmcnt(0)" if lg else ""))
        A("s_barrier")
    issue(slot(2))
    A(f"""s_lshl_b32 s46, s16, 7
          s_lshl_b32 s3, s17, 3
          s_add_u32 s46, s46, s3
          s_lshl_b32 s3, s18, 1
          s_add_u32 s46, s46, s3
          s_lshl_b32 s46, s46, 11
          v_lshlrev_b32 v8, 4, v2
          v_lshlrev_b32 v5, 11, v3
          v_lshl_add_u32 v7, v4, 4, v5
          s_lshl_b32 s47, s16, 17
          s_lshl_b32 s3, s17, 7
          s_add_u32 s47, s47, s3
          s_lshl_b32 s3, s18, 15
          s_add_u32 s47, s47, s3
          s_add_u32 s42, s47, 16384
          v_mov_b32 v9, 0xffff0000
          v_lshrrev_b32 v4, 4, v2""")
    srd(A, 8, P_G, P_G + 1, D * 2)
    srd(A, 20, P_W1, P_W1 + 1, D * D * 2)
    endit(12)
    A("""buffer_load_dwordx4 v[64:67], v8, s[24:27], s46 offen
         buffer_load_dwordx4 v[68:71], v8, s[24:27], s46 offen offset:1024
         buffer_load_dwordx4 v[72:75], v8, s[24:27], s46 offen offset:2048
         buffer_load_dwordx4 v[76:79], v8, s[24:27], s46 offen offset:3072
         buffer_load_dwordx4 v[80:83], v8, s[8:11], 0 offen
         buffer_load_dwordx4 v[84:87], v8, s[8:11], 0 offen offset:1024
         buffer_load_dwordx4 v[88:91], v7, s[20:23], s47 offen
         buffer_load_dwordx4 v[92:95], v7, s[20:23], s42 offen""")
    issue(slot(3))
    endit(20)
    srd(A, 8, P_DBG, P_DBG + 1, 256)
    A("buffer_load_dword v19, off, s[8:11], 0 sc1")
    issue(slot(4))
    srd(A, 4, P_WS, P_WS + 1, WS_END)
    A(f"""s_lshl_b32 s19, s16, 4
          s_add_u32 s19, s19, s17
          s_lshl_b32 s21, s19, 7
          s_add_u32 s21, s21, {WS_ST1}
          s_mov_b32 s22, 8
          s_mov_b32 s23, {L_JOB}
          s_lshl_b32 s3, s19, 9
          s_add_u32 s3, s3, {WS_CS1}
          s_cmp_eq_u32 s18, 1
          s_cselect_b32 s21, s3, s21
          s_cselect_b32 s22, 32, s22
          s_cselect_b32 s23, {L_JOB + 256}, s23
          s_cselect_b32 s54, -1, 0
          s_cmp_ge_u32 s18, 2
          s_cselect_b32 s22, 0, s22
          v_and_b32 v5, 31, v2
          v_lshl_add_u32 v17, v5, 3, s23
          v_cmp_gt_u32 vcc, s22, v2
          v_mov_b32 v5, {OOB}
          s_nop 0
          v_cndmask_b32 v16, v5, v8, vcc""")
    endit(12)
    spin_until(A, lambda: A("v_cmp_eq_u32 vcc, 0, v19"), lambda: A("buffer_load_dword v19, off, s[8:11], 0 sc1"), "nonce")
    A("v_readfirstlane_b32 s12, v19")
    fstamp(A, 1)
    J = Asm(); _js(J)
    n = len(J.lines); cuts = [0, n // 3, 2 * n // 3, n]
    for c in range(3):
        I = Asm(); issue(slot(5 + c), None, I)
        interleave(A, I.lines, J.lines[cuts[c]:cuts[c+1]])
        endit(12, c == 2)
    for i in range(4): A(f"ds_read_b64 {v(24+2*i,2)}, v17 offset:{i*256}")
    A("s_waitcnt lgkmcnt(0)")
    for i in range(2):
        A(f"""v_add_f32 v{26+i}, v{26+i}, v{28+i}
              v_add_f32 v{26+i}, v{26+i}, v{30+i}
              v_and_b32 v{26+i}, s54, v{26+i}
              v_add_f32 v{20+2*i}, v{24+i}, v{26+i}
              v_mov_b32 v{21+2*i}, s12""")
    issue(slot(8))
    A(f"buffer_store_dwordx4 v[20:23], v16, {WS}, s21 offen sc1")
    endit(13)
    J = Asm(); _jg(J)
    J(f"""s_lshr_b32 s46, s46, 9
          s_add_u32 s46, s46, {WS_G}
          v_and_b32 v5, 31, v2
          v_cmp_eq_u32 vcc, 0, v5
          v_lshrrev_b32 v30, 3, v2
          v_mov_b32 v6, {OOB}
          v_cndmask_b32 v30, v6, v30, vcc
          v_lshlrev_b32 v16, 4, v5
          s_lshl_b32 s21, s16, 11
          s_lshl_b32 s3, s18, 9
          s_add_u32 s21, s21, s3
          s_add_u32 s21, s21, {WS_ST1}
          v_lshrrev_b32 v7, 3, v2
          v_lshlrev_b32 v7, 14, v7
          v_and_b32 v6, 7, v2
          v_lshl_add_u32 v17, v6, 4, v7
          s_lshl_b32 s22, s13, 9
          s_lshl_b32 s3, s18, 7
          s_add_u32 s22, s22, s3
          s_add_u32 s22, s22, {WS_CS1}
          s_add_u32 s23, s22, 8192""")
    n = len(J.lines)
    for c in range(6):
        I = Asm(); issue(slot(9 + c), None, I)
        interleave(A, I.lines, J.lines[n * c // 6: n * (c + 1) // 6])
        endit(12)
    def payload():
        A(f"""buffer_load_dwordx4 v[20:23], v16, {WS}, s21 offen sc1
              buffer_load_dwordx4 v[32:35], v17, {WS}, s22 offen sc1
              buffer_load_dwordx4 v[36:39], v17, {WS}, s23 offen sc1""")
    payload()
    issue(slot(15))
    A(f"buffer_store_dword v28, v30, {WS}, s46 offen sc1")
    endit(13)
    def chk():
        A("""v_xor_b32 v24, s12, v21
             v_xor_b32 v25, s12, v23
             v_xor_b32 v26, s12, v33
             v_xor_b32 v27, s12, v35
             v_or3_b32 v24, v24, v25, v26
             v_xor_b32 v25, s12, v37
             v_xor_b32 v26, s12, v39
             v_or3_b32 v24, v24, v25, v26
             v_or_b32 v24, v24, v27
             v_cmp_ne_u32 vcc, 0, v24""")
    spin_until(A, chk, payload, "pay")
    srd(A, 28, P_W2, P_W2 + 1, D * D * 2)
    A(f"""v_and_b32 v5, 15, v2
          v_lshlrev_b32 v5, 7, v5
          s_lshl_b32 s3, s2, 2
          s_add_u32 s3, s3, s18
          s_lshl_b32 s3, s3, 11
          buffer_load_dword v60, v5, s[28:31], s3 offen""")
    A(f"""v_add_f32 v32, v32, v36
          v_add_f32 v33, v34, v38
          v_mov_b32 v21, v22
          s_lshl_b32 s3, s18, 9
          s_add_u32 s3, s3, {L_ST}
          v_permlane32_swap_b32 v32, v33
          v_add_u32 v16, s3, v16
          v_add_f32 v32, v32, v33
          v_mov_b32 v33, v32""")
    ln_consts(A, 20, 24)
    A(f"""v_permlane16_swap_b32 v32, v33
          ds_write_b128 v16, v[20:23]
          v_add_f32 v32, v32, v33
          s_lshl_b32 s3, s18, 6
          s_add_u32 s3, s3, {L_CS}
          {dppadd(32, 8)}
          v_lshl_add_u32 v6, v6, 3, s3
          v_lshrrev_b32 v7, 5, v2
          v_lshl_add_u32 v6, v7, 2, v6
          ds_write_b32 v6, v32
          v_mov_b32 v5, {L_NON}
          ds_write_b32 v5, v19""")
    endit(1, True)
    A(f"""s_lshl_b32 s33, s17, 19
          s_lshl_b32 s37, s18, 13
          s_add_u32 s33, s33, s37
          s_add_u32 s33, s33, {WS_KV}
          s_lshl_b32 s34, s17, 11
          s_lshl_b32 s3, s18, 2
          s_add_u32 s34, s34, s3
          s_add_u32 s34, s34, {F_KV}
          v_add_u32 v16, s37, v8
          s_lshr_b32 s21, s18, 1
          s_and_b32 s22, s18, 1""")
    A("s_barrier")
    A("s_barrier")
    fstamp(A, 2)
    V = VM(A)
    for i in range(8): A(f"ds_read_b128 {v(64+4*i,4)}, v16 offset:{i*1024}")
    A("""s_lshl_b32 s41, s16, 15
         s_add_u32 s41, s41, s33
         s_add_u32 s42, s41, 4096""")
    for i in range(8):
        A(f"s_waitcnt lgkmcnt({7-i})")
        A(f"buffer_store_dwordx4 {v(64+4*i,4)}, v8, {WS}, s{41 + (i>>2)} offen offset:{(i&3)*1024} sc1")
    A("""s_lshl_b32 s41, s16, 7
         s_add_u32 s41, s41, s34
         s_add_u32 s35, s16, 1
         s_and_b32 s35, s35, 15
         s_lshl_b32 s42, s35, 7
         s_add_u32 s42, s42, s34
         s_waitcnt vmcnt(0)""")
    flag_store(A, 41)
    fstamp(A, 3)
    ld = lambda: A(f"buffer_load_dword v20, off, {WS}, s42 sc1")
    ld(); A("s_waitcnt vmcnt(0)")
    spin_until(A, lambda: A("v_cmp_ne_u32 vcc, s12, v20"), ld, "kv1")
    def kv_issue(slot, V=None):
        A(f"""s_add_u32 m0, s37, {slot}
              s_lshl_b32 s41, s35, 15
              s_add_u32 s41, s41, s33""")
        for i in range(8):
            if i == 4:
                A("s_add_u32 m0, m0, 4096"); A("s_add_u32 s41, s41, 4096")
            A(f"buffer_load_dwordx4 v8, {WS}, s41 offen offset:{(i&3)*1024} sc1 lds")
        A("s_add_u32 s35, s35, 1"); A("s_and_b32 s35, s35, 15")
        if V: V.note(8, "kv")
    kv_issue(KVS)
    A("""v_and_b32 v3, 15, v2
         v_lshlrev_b32 v21, 7, v3""")
    ldall = lambda: A(f"buffer_load_dword v20, v21, {WS}, s34 offen sc1")
    srd(A, 28, P_W3, P_W3 + 1, D * F * 2)
    A(f"""v_cmp_le_u32 vcc, 28, v2
          s_lshl_b32 s3, s16, 6
          s_lshl_b32 s41, s18, 4
          v_cndmask_b32 v5, 0, 1, vcc
          v_mul_u32_u24 v6, 28, v5
          v_sub_u32 v22, v2, v6
          v_mul_u32_u24 v6, 7168, v5
          v_lshl_add_u32 v30, v22, 4, v6
          v_cmp_le_u32 vcc, 56, v2
          v_mov_b32 v6, {OOB}
          s_add_u32 s3, s3, s41
          v_cndmask_b32 v30, v30, v6, vcc
          s_mul_i32 s47, s3, 7168
          s_mul_i32 s3, s17, 448
          s_add_u32 s47, s47, s3
          v_lshlrev_b32 v22, 5, v22
          s_lshl_b32 s3, s18, 1
          v_add_u32 v5, s3, v5
          v_mul_u32_u24 v5, 896, v5
          v_add_u32 v22, v22, v5
          v_add_u32 v22, {L_C3}, v22""")
    endit(0)
    fstamp(A, 4)
    ldall(); A("s_waitcnt vmcnt(0)")
    spin_until(A, lambda: A("v_cmp_ne_u32 vcc, s12, v20"), ldall, "kvall")
    kv_issue(0)
    for i in range(8):
        A(f"buffer_load_dwordx4 {v(160+4*i,4)}, v30, s[28:31], s47 offen")
        if i < 7: A(f"s_add_u32 s47, s47, {2*7168}")
    ACC, XB, WB = 64, 128, 192
    acc = lambda tb, nb: ACC + 4 * (tb * 4 + nb)
    A(f"""v_lshrrev_b32 v5, 3, v2
          v_and_b32 v6, 7, v2
          v_and_b32 v7, 6, v5
          v_xor_b32 v7, v7, v6
          v_lshlrev_b32 v5, 11, v5
          v_lshl_add_u32 v24, v7, 4, v5
          s_lshl_b32 s3, s17, 7
          v_add_u32 v24, s3, v24
          v_add_u32 v25, {8*2048 - 1024}, v24
          v_add_u32 v26, {16*2048 - 2048}, v24
          v_add_u32 v27, {24*2048 - 3072}, v24
          v_lshrrev_b32 v5, 2, v3
          v_and_b32 v6, 3, v3
          v_lshl_add_u32 v7, v4, 2, v5
          v_bfe_u32 v5, v7, 1, 2
          v_lshlrev_b32 v7, 7, v7
          v_lshl_add_u32 v7, v6, 3, v7
          v_lshl_add_u32 v7, v5, 5, v7
          s_add_u32 s38, s37, {L_W2W}
          v_add_u32 v32, s38, v7
          v_xor_b32 v33, 32, v32
          v_xor_b32 v34, 64, v32
          v_xor_b32 v35, 96, v32
          s_lshl_b32 s43, s16, 18
          s_lshl_b32 s3, s21, 13
          s_add_u32 s43, s43, s3
          s_lshl_b32 s3, s22, 12
          s_add_u32 s43, s43, s3
          s_add_u32 s43, s43, {WS_H1}
          s_lshl_b32 s44, s21, 16
          s_lshl_b32 s3, s21, 11
          v_add_u32 v28, s3, v8
          v_xor_b32 v29, 2048, v28""")
    for i in range(0, 64, 2): A(f"v_mov_b64 {v(ACC+i,2)}, 0")
    endit(8)
    kv_issue(KVS)
    A(f"""v_lshlrev_b32 v21, 2, v2
          s_add_u32 s3, s16, 15
          s_and_b32 s3, s3, 15
          s_lshl_b32 s48, s3, 8
          s_add_u32 s48, s48, {F_H1}
          s_lshl_b32 s49, s16, 8
          s_add_u32 s49, s49, {F_H1}
          s_add_u32 s3, s16, 1
          s_and_b32 s3, s3, 15
          s_lshl_b32 s50, s3, 8
          s_add_u32 s50, s50, {F_H1}
          s_waitcnt vmcnt(8)""")
    for k in range(4):
        A(f"v_lshlrev_b32 v{40+2*k}, 16, v{160+k}")
        A(f"v_and_b32 v{41+2*k}, v9, v{160+k}")
    for i in range(1, 8):
        for k in range(4):
            r = 160 + 4*i + k
            A(f"""v_lshlrev_b32 v5, 16, v{r}
                  v_and_b32 v6, v9, v{r}
                  v_add_f32 v{40+2*k}, v{40+2*k}, v5
                  v_add_f32 v{41+2*k}, v{41+2*k}, v6""")
    A("""s_mov_b32 exec_hi, 0x00ffffff
         ds_write_b128 v22, v[40:43]
         ds_write_b128 v22, v[44:47] offset:16
         s_mov_b32 exec_hi, -1""")
    def ldh1():
        for i in range(3): A(f"buffer_load_dword v{18+i}, v21, {WS}, s{48+i} offen sc1")
    def chkh1():
        A("""v_xor_b32 v18, s12, v18
             v_xor_b32 v19, s12, v19
             v_xor_b32 v20, s12, v20
             v_or3_b32 v18, v18, v19, v20
             v_cmp_ne_u32 vcc, 0, v18""")
    ldh1(); A("s_waitcnt vmcnt(0)")
    spin_until(A, chkh1, ldh1, "h1")
    fstamp(A, 5)
    srd(A, 28, P_W2, P_W2 + 1, D * D * 2)
    def w2_loads():
        for st in range(2):
            for tb in range(4):
                A(f"buffer_load_dwordx4 {v(XB+16*st+4*tb,4)}, v{28+(tb>>1)}, {WS}, s43 offen offset:{(tb&1)*1024} sc1")
            A(f"s_add_u32 m0, s38, {st*4096}")
            A("s_add_u32 s43, s43, 16384")
            for i in range(4): A(f"buffer_load_dwordx4 v{24+i}, s[28:31], s44 offen offset:{i*1024} lds")
            A(f"s_add_u32 s44, s44, {64*2048}")
    def w2_compute():
        for st in range(2):
            for nb in range(4):
                for e in range(2): A(f"ds_read_b64_tr_b16 {v(WB+16*st+4*nb+2*e,2)}, v{32+nb} offset:{st*4096 + e*2048}")
        for st in range(2):
            for nb in range(4):
                A(f"s_waitcnt lgkmcnt({14 - 8*st - 2*nb})")
                for tb in range(4):
                    A(f"v_mfma_f32_16x16x32_bf16 {v(acc(tb,nb),4)}, {v(WB+16*st+4*nb,4)}, {v(XB+16*st+4*tb,4)}, {v(acc(tb,nb),4)}")
    A(f"""v_and_b32 v5, 31, v2
          v_lshlrev_b32 v23, 2, v5
          s_lshl_b32 s41, s16, 9
          s_lshl_b32 s3, s18, 7
          s_add_u32 s41, s41, s3
          s_add_u32 s41, s41, {WS_G}
          buffer_load_dword v36, v23, {WS}, s41 offen sc1""")
    w2_loads()
    A("s_waitcnt lgkmcnt(0)")
    A("s_barrier")
    A("s_mov_b32 s45, 0")
    A("s_mov_b32 s40, 7")
    L = A.label("w2loop")
    A(f"{L}:")
    kv_issue("s45")
    A("s_waitcnt vmcnt(8)")
    w2_compute()
    w2_loads()
    A(f"""s_xor_b32 s45, s45, {KVS}
          s_waitcnt vmcnt(16)
          s_barrier
          s_sub_u32 s40, s40, 1
          s_cmp_lg_u32 s40, 0
          s_cbranch_scc1 {L}""")
    kv_issue(KVS)
    A(f"""s_lshl_b32 s3, s18, 12
          s_add_u32 m0, s3, {L_XR}
          s_lshl_b32 s41, s17, 7""")
    for i in range(4): A(f"buffer_load_dwordx4 v{10+i}, s[24:27], s41 offen offset:{i*1024} lds")
    A("s_waitcnt vmcnt(12)")
    w2_compute()
    A(f"""s_lshl_b32 s3, s18, 7
          s_add_u32 s3, s3, {L_GT}
          v_add_u32 v5, s3, v23
          ds_write_b32 v5, v36
          s_add_u32 s3, s37, {L_W2X}
          v_add_u32 v18, s3, v8
          v_xor_b32 v19, 16384, v18
          s_lshl_b32 s3, s18, 6
          v_add_u32 v5, s3, v2
          v_lshlrev_b32 v31, 2, v5
          v_add_u32 v30, {L_C3}, v31""")
    for i in range(8): A(f"ds_read_b32 v{160+i}, v30 offset:{i*896}")
    for i in range(8): A(f"ds_write_b128 v18, {v(ACC+32+4*i,4)} offset:{i*1024}")
    endit(0, True)
    V = VM(A)
    kv_issue(0, V)
    for i in range(8): A(f"ds_read_b128 {v(96+4*i,4)}, v19 offset:{i*1024}")
    A(f"""s_lshl_b32 s3, s22, 6
          s_lshl_b32 s42, s21, 5
          s_add_u32 s42, s42, s3
          v_add_u32 v5, s42, v3
          v_lshlrev_b32 v5, 7, v5
          v_lshrrev_b32 v6, 1, v3
          v_lshrrev_b32 v7, 1, v4
          v_xor_b32 v6, v6, v7
          v_lshl_add_u32 v5, v6, 4, v5
          v_and_b32 v7, 1, v4
          v_lshl_add_u32 v5, v7, 3, v5
          v_add_u32 v24, {L_XR}, v5
          v_xor_b32 v25, 32, v24
          v_xor_b32 v26, 64, v24
          v_xor_b32 v27, 96, v24""")
    for tb in range(2):
        for nb in range(4): A(f"ds_read_b64 {v(128+8*tb+2*nb,2)}, v{24+nb} offset:{tb*2048}")
    for i in range(1, 8): A(f"v_add_f32 v160, v160, v{160+i}")
    V.op(f"""s_mul_i32 s41, s16, {F*8}
          s_mul_i32 s3, s17, 1792
          s_add_u32 s41, s41, s3
          s_add_u32 s41, s41, {WS_CS3}
          v_cmp_gt_u32 vcc, 896, v31
          v_lshlrev_b32 v31, 1, v31
          v_mov_b32 v5, {OOB}
          v_mov_b32 v161, s12
          v_cndmask_b32 v5, v5, v31, vcc
          buffer_store_dwordx2 v[160:161], v5, {WS}, s41 offen sc1""", "st")
    A("s_waitcnt lgkmcnt(0)")
    for i in range(32): A(f"v_add_f32 v{ACC+i}, v{ACC+i}, v{96+i}")
    for tb in range(2):
        for nb in range(4):
            a = ACC + 4 * (tb * 4 + nb); xr = 128 + 8 * tb + 2 * nb
            A(f"""v_lshlrev_b32 v5, 16, v{xr}
                  v_and_b32 v6, v9, v{xr}
                  v_lshlrev_b32 v7, 16, v{xr+1}
                  v_and_b32 v18, v9, v{xr+1}
                  v_add_f32 v{a}, v{a}, v5
                  v_add_f32 v{a+1}, v{a+1}, v6
                  v_add_f32 v{a+2}, v{a+2}, v7
                  v_add_f32 v{a+3}, v{a+3}, v18
                  v_cvt_pk_bf16_f32 v{xr}, v{a}, v{a+1}
                  v_cvt_pk_bf16_f32 v{xr+1}, v{a+2}, v{a+3}""")
    A(f"""s_lshl_b32 s41, s16, 18
          s_lshl_b32 s3, s17, 14
          s_add_u32 s41, s41, s3
          s_lshl_b32 s3, s42, 6
          s_add_u32 s41, s41, s3
          s_add_u32 s41, s41, {WS_X1}
          s_add_u32 s47, s41, 8192""")
    for tb in range(2):
        V.op(f"buffer_store_dwordx4 {v(128+8*tb,4)}, v8, {WS}, s41 offen offset:{tb*1024} sc1", "st")
        V.op(f"buffer_store_dwordx4 {v(132+8*tb,4)}, v8, {WS}, s47 offen offset:{tb*1024} sc1", "st")
    V.wait("kv")
    A("s_barrier")
    kv_issue(KVS, V)
    for tb in range(2):
        sm, sq = 40 + 2*tb, 41 + 2*tb
        for i in range(8):
            r = 128 + 8*tb + i
            A(f"""v_lshlrev_b32 v5, 16, v{r}
                  v_and_b32 v6, v9, v{r}""")
            if i == 0:
                A(f"v_add_f32 v{sm}, v5, v6"); A(f"v_mul_f32 v{sq}, v5, v5")
            else:
                A(f"""v_add_f32 v{sm}, v{sm}, v5
                      v_fmac_f32 v{sq}, v5, v5
                      v_add_f32 v{sm}, v{sm}, v6""")
            A(f"v_fmac_f32 v{sq}, v6, v6")
    V.op(f"""s_lshl_b32 s41, s19, 10
          v_permlane32_swap_b32 v40, v41
          v_permlane32_swap_b32 v42, v43
          s_lshl_b32 s3, s42, 3
          v_add_f32 v40, v40, v41
          v_add_f32 v42, v42, v43
          s_add_u32 s41, s41, s3
          s_add_u32 s41, s41, {WS_ST}
          v_permlane16_swap_b32 v40, v42
          v_lshlrev_b32 v21, 2, v2
          v_add_f32 v40, v40, v42
          buffer_store_dword v40, v21, {WS}, s41 offen sc1""", "st")
    A(f"""s_lshl_b32 s41, s19, 4
          s_lshl_b32 s3, s18, 2
          s_add_u32 s41, s41, s3
          s_add_u32 s41, s41, {F_X1}
          s_waitcnt vmcnt(0)""")
    flag_store(A, 41)
    fstamp(A, 6)
    A("s_barrier")
    kv_issue(0)
    srd(A, 28, P_W4, P_W4 + 1, F * D * 2)
    srd(A, 20, P_WO, P_WO + 1, D * D * 2)
    A(f"""v_lshlrev_b32 v5, 7, v2
          s_lshl_b32 s3, s2, 2
          s_add_u32 s3, s3, s18
          s_lshl_b32 s41, s3, 13
          buffer_load_dword v60, v5, s[28:31], s41 offen
          v_and_b32 v5, 0x7ff, v5
          s_lshl_b32 s41, s3, 11
          buffer_load_dword v60, v5, s[20:23], s41 offen""")
    for i in range(7):
        A(f"""v_add_u32 v5, {i*64}, v2
              v_mul_u32_u24 v6, 2341, v5
              v_lshrrev_b32 v6, 16, v6
              v_mul_u32_u24 v7, 28, v6
              v_sub_u32 v7, v5, v7
              v_bfe_u32 v5, v6, 2, 1
              v_lshlrev_b32 v5, 1, v5
              v_xor_b32 v7, v7, v5
              v_mul_u32_u24 v6, 7168, v6
              v_lshl_add_u32 v{11+i}, v7, 4, v6""")
        if i & 3: A(f"v_subrev_u32 v{11+i}, {(i&3)*1024}, v{11+i}")
    srd(A, 28, P_W3, P_W3 + 1, D * F * 2)
    A(f"""s_lshl_b32 s46, s18, 12
          s_lshl_b32 s43, s16, 18
          s_add_u32 s43, s43, s46
          s_add_u32 s43, s43, {WS_X1}
          s_mul_i32 s44, s18, {16*7168}
          s_mul_i32 s3, s17, 448
          s_add_u32 s44, s44, s3
          s_mul_i32 s38, s18, 7168
          s_add_u32 s38, s38, 16384
          s_lshl_b32 s48, s16, 8
          s_add_u32 s48, s48, {F_X1}""")
    endit(2)
    kv_issue(KVS)
    ld = lambda: A(f"buffer_load_dword v20, v21, {WS}, s48 offen sc1")
    ld(); A("s_waitcnt vmcnt(0)")
    spin_until(A, lambda: A("v_cmp_ne_u32 vcc, s12, v20"), ld, "x1")
    fstamp(A, 7)
    def p3_issue(slot):
        A(f"s_add_u32 m0, s46, {slot}")
        A("s_nop 0")
        for i in range(4): A(f"buffer_load_dwordx4 v8, {WS}, s43 offen offset:{i*1024} sc1 lds")
        A(f"s_add_u32 m0, s38, {slot}")
        A("s_add_u32 s43, s43, 16384")
        for i in range(7):
            if i == 4:
                A("s_add_u32 m0, m0, 4096"); A("s_nop 0")
            A(f"buffer_load_dwordx4 v{11+i}, s[28:31], s44 offen offset:{(i&3)*1024} lds")
        A(f"s_add_u32 s44, s44, {64*7168}")
    p3_issue(L3 + S3)
    A("s_barrier")
    p3_issue(L3 + 2 * S3)
    A(f"""s_lshl_b32 s41, s16, 14
          s_lshl_b32 s3, s18, 8
          s_add_u32 s41, s41, s3
          s_add_u32 s41, s41, {WS_ST}""")
    for i in range(16):
        A(f"buffer_load_dword v{64+i}, v21, {WS}, s41 offen offset:{(i&3)*1024} sc1")
        if i & 3 == 3: A("s_add_u32 s41, s41, 4096")
    A(f"""s_lshl_b32 s3, s18, 6
          v_add_u32 v5, s3, v2
          v_min_u32 v5, 223, v5
          v_lshlrev_b32 v22, 3, v5
          s_mul_i32 s49, s17, 1792
          s_add_u32 s49, s49, {WS_CS3}""")
    def ldcs():
        A("s_mov_b32 s41, s49")
        for i in range(16):
            A(f"buffer_load_dwordx2 {v(96+2*i,2)}, v22, {WS}, s41 offen sc1")
            if i < 15: A(f"s_add_u32 s41, s41, {F*8}")
    ldcs()
    A("s_barrier")
    A("s_waitcnt vmcnt(0)")
    def chkcs():
        A("v_xor_b32 v5, s12, v97")
        for i in range(1, 16):
            A(f"v_xor_b32 v6, s12, v{97+2*i}"); A("v_or_b32 v5, v5, v6")
        A("v_cmp_ne_u32 vcc, 0, v5")
    spin_until(A, chkcs, ldcs, "cs3")
    fstamp(A, 8)
    A("s_barrier")
    p3_issue(L3)
    for i in range(1, 16): A(f"v_add_f32 v64, v64, v{64+i}")
    for i in range(1, 16): A(f"v_add_f32 v96, v96, v{96+2*i}")
    A(f"""v_mul_f32 v64, {hexf(1.0/1024)}, v64
          v_lshrrev_b32 v22, 1, v22
          v_mov_b32 v65, v64
          v_add_u32 v22, {L_CS}, v22
          v_sub_f32 v37, 1.0, v36
          v_permlane32_swap_b32 v64, v65
          ds_write_b32 v22, v96
          v_cvt_pk_bf16_f32 v37, v37, v37
          v_and_b32 v37, v9, v37
          v_max_f32 v37, {hexf(2.0**-60)}, v37""")
    ln_consts(A, 64, 5, 37)
    A(f"""s_lshl_b32 s3, s18, 9
          s_add_u32 s3, s3, {L_ST}
          v_lshl_add_u32 v5, v23, 2, s3
          ds_write_b128 v5, v[64:67]""")
    endit(11, True)
    A(f"s_mov_b32 s45, {L3 + S3}")
    A("s_mov_b32 s40, 13")
    L = A.label("p3loop")
    A(f"{L}:")
    p3_issue("s45")
    A(f"""s_add_u32 s45, s45, {S3}
          s_cmp_eq_u32 s45, {L3 + 3*S3}
          s_cselect_b32 s45, {L3}, s45
          s_waitcnt vmcnt(11)
          s_barrier
          s_sub_u32 s40, s40, 1
          s_cmp_lg_u32 s40, 0
          s_cbranch_scc1 {L}""")
    A(f"""s_lshl_b32 s48, s16, 8
          s_add_u32 s48, s48, {F_O}""")
    ld()
    A(f"""v_lshrrev_b32 v5, 4, v2
          v_and_b32 v6, 15, v2
          v_lshlrev_b32 v7, 1, v5
          v_xor_b32 v7, v7, v6
          s_lshl_b32 s3, s18, 4
          v_add_u32 v5, s3, v5
          v_lshlrev_b32 v5, 11, v5
          v_lshl_add_u32 v11, v7, 4, v5
          s_and_b32 s3, s17, 7
          s_lshl_b32 s3, s3, 8
          v_add_u32 v11, s3, v11
          v_xor_b32 v12, 128, v11
          v_add_u32 v12, {4*2048 - 1024}, v12
          v_add_u32 v13, {8*2048 - 2048}, v11
          v_add_u32 v14, {8*2048 - 2048}, v12
          s_lshr_b32 s21, s17, 3
          s_mul_i32 s33, s16, {HO_PANEL}
          s_add_u32 s33, s33, s46
          s_add_u32 s33, s33, {WS_HO}
          s_lshl_b32 s3, s21, 17
          s_add_u32 s43, s33, s3
          s_add_u32 s43, s43, {112*8192}
          s_lshl_b32 s44, s21, 20
          s_add_u32 s38, s46, 16384""")
    srd(A, 28, P_WO, P_WO + 1, D * D * 2)
    endit(0)
    spin_until(A, lambda: A("v_cmp_ne_u32 vcc, s12, v20"), ld, "o")
    A("s_barrier")
    fstamp(A, 9)
    def p4_issue(slot):
        A(f"s_add_u32 m0, s46, {slot}")
        A("s_nop 0")
        for i in range(4): A(f"buffer_load_dwordx4 v8, {WS}, s43 offen offset:{i*1024} sc1 lds")
        A(f"s_add_u32 m0, s38, {slot}")
        A("s_add_u32 s43, s43, 16384")
        for i in range(4): A(f"buffer_load_dwordx4 v{11+i}, s[28:31], s44 offen offset:{i*1024} lds")
        A(f"s_add_u32 s44, s44, {64*2048}")
    for j in range(3): p4_issue(j * S4)
    A(f"""s_lshl_b32 s48, s16, 8
          s_lshl_b32 s3, s21, 7
          s_add_u32 s48, s48, s3
          s_add_u32 s48, s48, {F_H2}
          v_and_b32 v21, 31, v2
          v_lshlrev_b32 v21, 2, v21""")
    endit(16)
    def p4_loop(n, name):
        L = A.label(name)
        A(f"s_mov_b32 s40, {n}")
        A(f"{L}:")
        p4_issue("s45")
        A(f"""s_add_u32 s45, s45, {S4}
              s_and_b32 s45, s45, {4*S4 - 1}
              s_waitcnt vmcnt(16)
              s_barrier
              s_sub_u32 s40, s40, 1
              s_cmp_lg_u32 s40, 0
              s_cbranch_scc1 {L}""")
    A(f"s_mov_b32 s45, {3*S4}")
    p4_loop(5, "p4a")
    fstamp(A, 10)
    ld()
    srd(A, 28, P_W4, P_W4 + 1, F * D * 2)
    A(f"""s_mul_i32 s3, s21, {56*8192}
          s_add_u32 s43, s33, s3
          s_mul_i32 s44, s21, {1792*2048}
          s_waitcnt vmcnt(0)""")
    Lfast = A.label("h2fast"); Lgo = A.label("h2go")
    A("v_cmp_ne_u32 vcc, s12, v20")
    A(f"s_cbranch_vccz {Lfast}")
    A("s_barrier")
    A("s_barrier")
    ld(); A("s_waitcnt vmcnt(0)")
    spin_until(A, lambda: A("v_cmp_ne_u32 vcc, s12, v20"), ld, "h2")
    for k in range(3):
        p4_issue(k * S4)
    A(f"""s_mov_b32 s45, {3*S4}
          s_waitcnt vmcnt(16)
          s_barrier
          s_mov_b32 s41, 25
          s_branch {Lgo}""")
    A(f"{Lfast}:")
    A("s_mov_b32 s41, 28")
    A(f"{Lgo}:")
    fstamp(A, 11)
    p4_loop("s41", "p4b")
    endit(8); endit(0)
    A("s_barrier")
    fstamp(A, 12)
    fstamp_flush(A, 1)

def compute(A):
    ACC, XB0, WB0 = 128, 64, 96
    acc = lambda tb, nb: ACC + 4 * (tb * 8 + nb)
    XB = lambda p, tb: XB0 + 16 * p + 4 * tb
    WB = lambda nb: WB0 + 4 * nb
    if PROF: A("v_mov_b64 v[62:63], 0")
    A("""s_lshr_b32 s19, s18, 1
         s_and_b32 s20, s18, 1
         v_and_b32 v3, 15, v2
         v_lshrrev_b32 v4, 4, v2""")
    A("""s_lshl_b32 s3, s19, 6
         v_add_u32 v5, s3, v3
         v_lshlrev_b32 v5, 7, v5
         v_lshrrev_b32 v6, 1, v3
         v_xor_b32 v6, v6, v4
         v_lshlrev_b32 v7, 4, v6
         v_add_u32 v14, v5, v7
         v_xor_b32 v15, 64, v14""")
    A("""v_lshrrev_b32 v5, 2, v3
         v_and_b32 v6, 3, v3
         v_lshl_add_u32 v7, v4, 3, v5
         v_lshlrev_b32 v7, 7, v7
         v_lshl_add_u32 v7, v6, 3, v7
         v_lshrrev_b32 v8, 1, v5
         v_and_b32 v9, 1, v4
         v_lshl_or_b32 v8, v9, 1, v8
         s_lshl_b32 s3, s20, 1
         v_xor_b32 v8, s3, v8
         v_lshl_add_u32 v16, v8, 5, v7
         v_xor_b32 v17, 32, v16""")
    A("""v_mov_b32 v10, v14
         v_mov_b32 v11, v15
         v_mov_b32 v12, v16
         v_mov_b32 v13, v17
         s_mov_b32 s21, 0""")
    Lnn = A.label("nononce")
    A(f"""s_memrealtime s[28:29]
          s_waitcnt lgkmcnt(0)
          s_or_b32 s3, s2, s18
          s_cmp_lg_u32 s3, 0
          s_cbranch_scc1 {Lnn}""")
    srd(A, 24, P_DBG, P_DBG + 1, 4)
    A(f"""s_or_b32 s28, s28, 1
          v_mov_b32 v5, s28
          v_lshlrev_b32 v6, 2, v2
          buffer_store_dword v5, v6, s[24:27], 0 offen sc1""")
    A(f"{Lnn}:")
    srd(A, 4, P_WS, P_WS + 1, WS_END)
    fstamp(A, 0)
    for i in range(0, 128, 2): A(f"v_mov_b64 {v(ACC+i,2)}, 0")
    A(f"""v_and_b32 v5, 1, v4
          v_lshrrev_b32 v6, 1, v4
          v_lshlrev_b32 v5, 10, v5
          v_lshl_add_u32 v5, v6, 9, v5
          v_lshrrev_b32 v6, 2, v3
          v_and_b32 v7, 3, v3
          v_lshl_add_u32 v6, v6, 3, v7
          v_lshl_add_u32 v21, v6, 4, v5
          v_lshlrev_b32 v5, 9, v4
          v_lshrrev_b32 v6, 3, v3
          v_and_b32 v7, 7, v3
          v_lshl_add_u32 v6, v6, 4, v7
          v_lshl_add_u32 v22, v6, 4, v5
          s_lshl_b32 s3, s20, 14
          s_lshl_b32 s22, s19, 13
          s_add_u32 s3, s3, s22
          v_add_u32 v21, s3, v21
          v_add_u32 v22, s3, v22
          s_lshl_b32 s3, s19, 10
          v_lshl_add_u32 v18, v3, 4, s3
          v_add_u32 v18, {L_ST}, v18
          s_lshl_b32 s3, s20, 7
          v_lshl_add_u32 v19, v4, 4, s3
          v_add_u32 v19, {L_CS}, v19
          v_mov_b32 v20, {L_NON}
          s_mov_b32 s38, {hexf(QSCALE)}
          s_lshl_b32 s22, s13, 1
          s_add_u32 s22, s22, s20
          s_lshr_b32 s3, s22, 3
          s_lshr_b32 s32, s3, 1
          s_add_u32 s32, s32, 1
          s_sub_u32 s33, 0, s32
          s_and_b32 s3, s3, 1
          s_cmp_eq_u32 s3, 1
          s_cselect_b32 s32, s33, s32
          s_lshl_b32 s33, s16, 7
          s_lshl_b32 s3, s19, 6
          s_add_u32 s33, s33, s3
          s_add_u32 s33, s33, s32
          s_lshl_b32 s34, s22, 13
          s_add_u32 s34, s34, {WS_H1}
          v_add_u32 v50, s33, v3
          v_and_b32 v49, 15, v50
          v_lshlrev_b32 v49, 4, v49
          v_lshl_add_u32 v49, v4, 8, v49
          v_cmp_gt_u32 vcc, 2048, v50
          s_mov_b64 s[42:43], vcc""")
    for tb in range(4):
        A(f"""v_bfe_u32 v51, v50, 7, 4
              v_bfe_u32 v48, v50, 4, 3
              v_lshl_add_u32 v51, v51, 18, v49
              v_lshl_add_u32 v{56+tb}, v48, 10, v51""")
        if tb < 3: A("v_add_u32 v50, 16, v50")
    A("""v_cmp_gt_u32 vcc, 2048, v50
         s_mov_b64 s[44:45], vcc
         s_lshl_b32 s23, s16, 8
         s_lshl_b32 s3, s17, 4
         s_add_u32 s23, s23, s3
         s_lshl_b32 s3, s18, 2
         s_add_u32 s23, s23, s3""")
    xread = lambda st, tb, dst: f"ds_read_b128 {v(dst,4)}, v{10+st} offset:{tb*2048}"
    wread = lambda st, nb, e, dst: f"ds_read_b64_tr_b16 {v(dst,2)}, v{12+(nb&1)} offset:{16384 + (nb>>1)*8192 + st*4096 + e*512}"
    def advance():
        return [f"s_add_u32 s21, s21, {S1}", f"s_cmp_eq_u32 s21, {3*S1}", "s_cselect_b32 s21, 0, s21",
                "v_add_u32 v10, s21, v14", "v_add_u32 v11, s21, v15", "v_add_u32 v12, s21, v16", "v_add_u32 v13, s21, v17"]
    A("s_barrier")
    fstamp(A, 1)
    compute_loop(A, 4, 8, 2, 16, acc, XB, WB, xread, wread, advance, swapped=(4, 5), name="p1c")
    fstamp(A, 2)
    SB = lambda i: 64 + 16 * (i & 3)
    O = lambda q: 128 + 16 * q
    Lr = lambda q: 160 + 4 * q
    Q = lambda q, b: 168 + 8 * q + 4 * b
    KB = lambda p, b: 184 + 8 * p + 4 * b
    VB = lambda p, b: 200 + 8 * p + 4 * b
    ONES, IDX, VBASE, VL16, H1P = 216, 220, 10, 11, 224
    A("s_waitcnt lgkmcnt(0)")
    for tb in range(4): A(f"ds_read_b128 {v(24+4*tb,4)}, v18 offset:{tb*256}")
    A("ds_read_b128 v[40:43], v19")
    A("ds_read_b128 v[44:47], v19 offset:64")
    A("ds_read_b32 v20, v20")
    def pack(t, a0, a1):
        A(f"v_cvt_pk_bf16_f32 v{t}, v{a0}, v{a0+1}"); A(f"v_cvt_pk_bf16_f32 v{t+1}, v{a0+2}, v{a0+3}")
        A(f"v_cvt_pk_bf16_f32 v{t+2}, v{a1}, v{a1+1}"); A(f"v_cvt_pk_bf16_f32 v{t+3}, v{a1+2}, v{a1+3}")
    t = 64
    for tb in range(4):
        pack(t, acc(tb, 2), acc(tb, 3))
        A(f"ds_write_b128 v21, {v(t,4)} offset:{(tb>>1)*4096 + (tb&1)*64}"); t += 4
    for u in range(2):
        for nbv in range(2):
            pack(t, acc(2*u, 4+nbv), acc(2*u+1, 4+nbv))
            A(f"ds_write_b128 v22, {v(t,4)} offset:{u*4096 + 2048 + nbv*128}"); t += 4
    A("s_waitcnt lgkmcnt(0)")
    A("s_barrier")
    A("v_readfirstlane_b32 s12, v20")
    for tb in range(4):
        a0 = acc(tb, 0)
        for r in range(0, 8, 2): A(f"v_pk_mul_f32 {v(a0+r,2)}, {v(a0+r,2)}, s[38:39] op_sel_hi:[1,0]")
        pack(Q(tb >> 1, tb & 1), a0, a0 + 4)
    for tb in range(4):
        a0 = acc(tb, 6); t = H1P + 4 * tb
        gelu_pk(A, [a0 + 2*i for i in range(4)], [40 + 2*i for i in range(4)], 24 + 4*tb, [48 + 2*i for i in range(4)], [t + i for i in range(4)])
        if tb in (0, 3):
            for r in range(4): A(f"v_cndmask_b32 v{t+r}, 0, v{t+r}, {'s[42:43]' if tb == 0 else 's[44:45]'}")
    for q in range(2):
        for i in range(4): A(f"v_permlane16_swap_b32 v{Q(q,0)+i}, v{Q(q,1)+i}")
    A(f"""v_lshlrev_b32 v{VL16}, 4, v2
          s_lshl_b32 s3, s20, 14
          v_add_u32 v{VBASE}, s3, v{VL16}""")
    rdK = lambda t: [Item(f"ds_read_b128 {v(KB(t&1,b),4)}, v{VBASE} offset:{(t&3)*4096 + b*1024}", gives=("K", t&1, b)) for b in range(2)]
    rdV = lambda t: [Item(f"ds_read_b128 {v(VB(t&1,b),4)}, v{VBASE} offset:{(t&3)*4096 + 2048 + b*1024}", gives=("V", t&1, b)) for b in range(2)]
    pre = [Item("", gives=("V", 1, 0)), Item("", gives=("V", 1, 1))] + rdK(0) + rdV(0)
    for it in pre[2:]: A(it.text)
    A(f"""v_and_b32 v5, 7, v2
          v_cmp_eq_u32 vcc, 0, v5
          v_cmp_eq_u32 s[42:43], 4, v5
          v_mov_b32 v5, 0x3f803f80
          v_mov_b32 v{IDX}, 0xdddddddd
          v_cndmask_b32 v{ONES}, 0, v5, vcc
          v_cndmask_b32 v{ONES+1}, 0, v5, vcc
          v_cndmask_b32 v{ONES+2}, 0, v5, s[42:43]
          v_cndmask_b32 v{ONES+3}, 0, v5, s[42:43]""")
    for i in range(0, 40, 2): A(f"v_mov_b64 {v(128+i,2)}, 0")
    for i in range(0, 16, 2): A(f"v_mov_b64 {v(SB(3)+i,2)}, 0")
    for i in range(0, 8, 2): A(f"v_mov_b64 {v(VB(1,0)+i,2)}, 0")
    def qk(u):
        t, q = u >> 1, u & 1
        d = SB(u)
        return [Item(f"v_mfma_f32_32x32x16_bf16 {v(d,16)}, {v(KB(t&1,0),4)}, {v(Q(q,0),4)}, 0", needs=[("K", t&1, 0), ("K", t&1, 1)]),
                Item(f"v_mfma_f32_32x32x16_bf16 {v(d,16)}, {v(KB(t&1,1),4)}, {v(Q(q,1),4)}, {v(d,16)}")]
    def pv(u, need=True):
        t, q = u >> 1, u & 1
        d = SB(u)
        r = []
        for b in range(2):
            r.append(Item(f"v_smfmac_f32_32x32x32_bf16 {v(O(q),16)}, {v(VB(t&1,b),4)}, {v(d+8*b,8)}, v{IDX}", needs=[("V", t&1, b)] if need else []))
            r.append(Item(f"v_smfmac_f32_16x16x64_bf16 {v(Lr(q),4)}, {v(ONES,4)}, {v(d+8*b,8)}, v{IDX}"))
        return r
    A("s_waitcnt lgkmcnt(2)")
    for it in qk(0): A(it.text)
    fstamp(A, 3)
    A("s_nop 7")
    body = []
    for u in range(8):
        e = [Item(f"v_exp_f32 v{SB(u)+i}, v{SB(u)+i}") for i in range(16)]
        m = qk(u + 1) + pv(u - 1)
        t1 = (u >> 1) + 1
        extra = rdK(t1) if (u & 1) == 0 else rdV(t1)
        if u == 5: extra += [Item(f"v_xor_b32 v{VBASE}, {KVS}, v{VBASE}")]
        if u == 7: extra += [Item("s_sub_u32 s40, s40, 1"), Item("s_cmp_lg_u32 s40, 0")]
        cnt = [3, 3, 3, 1, 3, 3]
        k = 0
        for mi in range(6):
            body.append(m[mi])
            if mi == 0 and u == 6: body.append(Item("s_barrier", drain=True))
            if extra: body.append(extra.pop(0))
            for j in range(cnt[mi]):
                body.append(e[k]); k += 1
    lines = insert_lgkm_waits(pre, body, maxcnt=15)
    L = A.label("aloop"); Lx = A.label("aexit"); L2 = A.label("asecond")
    A("s_mov_b32 s40, 1")
    A("s_mov_b32 s41, 0")
    A(f"{L}:")
    for l in lines: A(l)
    A(f"s_cbranch_scc1 {L}")
    A(f"""s_cmp_eq_u32 s41, 2
          s_cbranch_scc1 {Lx}
          s_cmp_eq_u32 s41, 1
          s_cbranch_scc1 {L2}""")
    for tb in range(4): A(f"buffer_store_dwordx4 {v(H1P+4*tb,4)}, v{56+tb}, {WS}, s34 offen sc1")
    fstamp(A, 4)
    A(f"""s_mov_b32 s40, 1
          s_mov_b32 s41, 1
          s_branch {L}""")
    A(f"{L2}:")
    A(f"""s_add_u32 s3, s23, {F_H1}
          s_waitcnt vmcnt(0)""")
    flag_store(A, 3)
    fstamp(A, 5)
    A(f"""s_mov_b32 s40, 14
          s_mov_b32 s41, 2
          s_branch {L}""")
    A(f"{Lx}:")
    for it in pv(7, False): A(it.text)
    fstamp(A, 6)
    A(f"""v_and_b32 v5, 31, v2
          s_lshl_b32 s3, s19, 8
          s_add_u32 s3, s3, {L_GT}
          v_lshl_add_u32 v5, v5, 2, s3
          ds_read_b32 v12, v5
          ds_read_b32 v13, v5 offset:128
          s_mul_i32 s28, s16, {HO_PANEL}
          s_add_u32 s28, s28, {WS_HO}
          s_lshl_b32 s3, s17, 1
          s_add_u32 s3, s3, s20
          s_add_u32 s3, s3, 112
          s_lshl_b32 s3, s3, 13
          s_add_u32 s29, s28, s3
          s_lshl_b32 s3, s19, 12
          s_add_u32 s29, s29, s3
          v_bfe_u32 v6, v2, 4, 1
          v_lshlrev_b32 v6, 10, v6
          v_lshl_add_u32 v6, v3, 4, v6
          v_lshrrev_b32 v7, 5, v2
          v_lshl_add_u32 v16, v7, 8, v6""")
    Lslow = A.label("slow"); Lfin = A.label("fin")
    A(f"""v_min_f32 v8, v{Lr(0)}, v{Lr(1)}
          v_max_f32 v5, v{Lr(0)}, v{Lr(1)}
          v_pk_mul_f32 v[6:7], v[128:129], 0 op_sel_hi:[1,0]""")
    for i in range(2, 32, 2): A(f"v_pk_fma_f32 v[6:7], {v(128+i,2)}, 0, v[6:7] op_sel_hi:[1,0,1]")
    A(f"""v_add_f32 v7, v6, v7
          v_fmac_f32 v7, 0, v{Lr(0)}
          v_fmac_f32 v7, 0, v{Lr(1)}
          v_cmp_le_f32 vcc, {hexf(2.0**-20)}, v8
          s_mov_b64 s[44:45], vcc
          v_cmp_ge_f32 vcc, {hexf(2.0**60)}, v5
          s_and_b64 s[44:45], s[44:45], vcc
          v_cmp_eq_f32 vcc, 0, v7
          s_and_b64 s[44:45], s[44:45], vcc
          s_cmp_eq_u64 s[44:45], -1""")
    if "forceslow" in EXP: A(f"s_branch {Lslow}")
    A(f"s_cbranch_scc0 {Lslow}")
    A(f"{Lfin}:")
    A(f"""v_rcp_f32 v6, v{Lr(0)}
          v_rcp_f32 v7, v{Lr(1)}
          s_waitcnt lgkmcnt(0)
          v_mul_f32 v6, v6, v12
          v_mul_f32 v7, v7, v13""")
    for q in range(2):
        for i in range(0, 16, 2): A(f"v_pk_mul_f32 {v(O(q)+i,2)}, {v(O(q)+i,2)}, v[6:7] op_sel:[0,{q}] op_sel_hi:[1,{q}]")
        for b in range(2):
            t = 32 + 8 * q + 4 * b
            for i in range(4): A(f"v_cvt_pk_bf16_f32 v{t+i}, v{O(q)+8*b+2*i}, v{O(q)+8*b+2*i+1}")
            A(f"buffer_store_dwordx4 {v(t,4)}, v16, {WS}, s29 offen offset:{q*2048 + b*512} sc1")
    acc = lambda tb, nb: ACC + 4 * (tb * 7 + nb)
    A(f"""s_lshl_b32 s3, s19, 12
          v_add_u32 v14, s3, v{VL16}
          v_mov_b32 v9, v{VL16}
          v_lshrrev_b32 v5, 2, v3
          v_and_b32 v6, 3, v3
          v_lshl_add_u32 v7, v4, 2, v5
          v_mul_u32_u24 v7, 448, v7
          v_add_u32 v7, 16384, v7
          v_and_b32 v8, 1, v4
          v_lshl_add_u32 v5, v6, 3, v7
          s_lshl_b32 s3, s20, 8
          v_add_u32 v5, s3, v5
          v_lshl_add_u32 v15, v8, 5, v5
          v_xor_b32 v18, 1, v8
          v_lshl_add_u32 v18, v18, 5, v5
          v_and_b32 v5, 1, v6
          v_xor_b32 v5, v5, v8
          v_lshl_add_u32 v7, v5, 5, v7
          v_lshrrev_b32 v5, 1, v6
          v_lshl_add_u32 v7, v5, 3, v7
          s_lshl_b32 s3, s20, 4
          s_add_u32 s3, s3, 192
          v_add_u32 v17, s3, v7
          v_mov_b32 v16, v18
          s_mov_b32 s21, {L3 + S3}""")
    for i in range(4): A(f"v_add_u32 v{10+i}, s21, v{14+i}")
    for i in range(0, 112, 2): A(f"v_mov_b64 {v(ACC+i,2)}, 0")
    xread = lambda st, tb, dst: f"ds_read_b128 {v(dst,4)}, v10 offset:{st*8192 + tb*1024}"
    wread = lambda st, nb, e, dst: f"ds_read_b64_tr_b16 {v(dst,2)}, v{13 if nb == 6 else 11+(nb&1)} offset:{(0 if nb == 6 else (nb>>1)*64) + (st*32 + e*16)*448}"
    def advance():
        return [f"s_add_u32 s21, s21, {S3}", f"s_cmp_eq_u32 s21, {L3 + 3*S3}", f"s_cselect_b32 s21, {L3}, s21"] + [f"v_add_u32 v{10+i}, s21, v{14+i}" for i in range(4)]
    fstamp(A, 7)
    A("s_barrier")
    fstamp(A, 8)
    def flagO():
        A(f"""s_add_u32 s3, s23, {F_O}
              s_waitcnt vmcnt(0)""")
        flag_store(A, 3)
    compute_loop(A, 4, 7, 2, 16, acc, XB, WB, xread, wread, advance, name="p3c", once=(3, flagO))
    fstamp(A, 9)
    A(f"""s_lshl_b32 s3, s19, 10
          v_lshl_add_u32 v5, v3, 4, s3
          v_add_u32 v5, {L_ST}, v5
          s_lshl_b32 s3, s20, 9
          v_lshl_add_u32 v6, v4, 4, s3
          v_add_u32 v6, {L_CS}, v6
          v_and_b32 v7, 1, v4
          v_lshlrev_b32 v7, 6, v7
          v_lshrrev_b32 v8, 1, v4
          v_lshl_add_u32 v7, v8, 4, v7
          s_lshl_b32 s3, s20, 5
          s_add_u32 s3, s3, {L_CS + 384}
          v_add_u32 v7, s3, v7
          s_waitcnt lgkmcnt(0)""")
    for tb in range(4): A(f"ds_read_b128 {v(16+4*tb,4)}, v5 offset:{tb*256}")
    for nb in range(6): A(f"ds_read_b128 {v(32+4*nb,4)}, v6 offset:{nb*64}")
    A("ds_read_b128 v[56:59], v7")
    A(f"""s_mul_i32 s29, s17, {7*8192}
          s_add_u32 s29, s29, s28
          s_lshl_b32 s3, s19, 12
          s_add_u32 s29, s29, s3
          s_add_u32 s33, s29, {3*8192}
          s_lshl_b32 s3, s20, 9
          s_add_u32 s33, s33, s3
          s_lshl_b32 s3, s20, 15
          s_add_u32 s29, s29, s3
          s_add_u32 s30, s29, 8192
          s_add_u32 s31, s29, 16384
          v_and_b32 v5, 1, v4
          v_lshlrev_b32 v5, 10, v5
          v_lshl_add_u32 v5, v8, 8, v5
          v_lshl_add_u32 v8, v3, 4, v5
          s_waitcnt lgkmcnt(0)""")
    k = 0
    for tb in range(4):
        st = 16 + 4 * tb
        for pr in range(3):
            a0 = acc(tb, 2 * pr); o = 72 + 4 * (k % 6); k += 1
            gelu_pk(A, [a0 + 2*i for i in range(4)], [32 + 8*pr + 2*i for i in range(4)], st, [64 + 2*i for i in range(4)], [o + i for i in range(4)])
            A(f"buffer_store_dwordx4 {v(o,4)}, v9, {WS}, s{29+pr} offen offset:{tb*1024} sc1")
        a0 = acc(tb, 6); o = 96 + 4 * (tb >> 1) + 2 * (tb & 1)
        gelu_pk(A, [a0, a0 + 2], [56, 58], st, [64, 66], [o, o + 1])
        if tb & 1:
            o = 96 + 4 * (tb >> 1)
            A(f"""s_nop 1
                  v_permlane16_swap_b32 v{o}, v{o+2}
                  v_permlane16_swap_b32 v{o+1}, v{o+3}
                  buffer_store_dwordx4 {v(o,4)}, v8, {WS}, s33 offen offset:{(tb>>1)*2048} sc1""")
    acc = lambda tb, nb: ACC + 4 * (tb * 4 + nb)
    A(f"""s_lshr_b32 s22, s17, 3
          s_lshl_b32 s3, s19, 12
          s_lshl_b32 s41, s22, 11
          s_add_u32 s3, s3, s41
          v_add_u32 v16, s3, v9
          v_xor_b32 v17, 2048, v16
          v_lshrrev_b32 v5, 2, v3
          v_and_b32 v6, 3, v3
          v_lshl_add_u32 v7, v4, 2, v5
          v_and_b32 v8, 7, v7
          v_lshlrev_b32 v7, 8, v7
          v_lshl_add_u32 v7, v6, 3, v7
          s_lshl_b32 s3, s20, 2
          v_xor_b32 v8, s3, v8
          v_lshl_add_u32 v18, v8, 5, v7
          v_xor_b32 v19, 32, v18
          v_xor_b32 v20, 64, v18
          v_xor_b32 v21, 96, v18
          s_mov_b32 s21, 0""")
    for i in range(6): A(f"v_mov_b32 v{10+i}, v{16+i}")
    for i in range(0, 64, 2): A(f"v_mov_b64 {v(ACC+i,2)}, 0")
    xread = lambda st, tb, dst: f"ds_read_b128 {v(dst,4)}, v{10+(tb>>1)} offset:{st*8192 + (tb&1)*1024}"
    wread = lambda st, nb, e, dst: f"ds_read_b64_tr_b16 {v(dst,2)}, v{12+nb} offset:{16384 + st*8192 + e*4096}"
    def advance():
        return [f"s_add_u32 s21, s21, {S4}", f"s_and_b32 s21, s21, {4*S4-1}"] + [f"v_add_u32 v{10+i}, s21, v{16+i}" for i in range(6)]
    fstamp(A, 10)
    A("s_barrier")
    fstamp(A, 11)
    def flagH2():
        A(f"""s_add_u32 s3, s23, {F_H2}
              s_waitcnt vmcnt(0)""")
        flag_store(A, 3)
        fstamp(A, 12)
        A(f"""s_lshl_b32 s3, s19, 6
              s_lshl_b32 s42, s22, 5
              s_add_u32 s42, s42, s3
              s_lshl_b32 s29, s16, 18
              s_and_b32 s3, s17, 7
              s_lshl_b32 s3, s3, 15
              s_add_u32 s29, s29, s3
              s_lshl_b32 s3, s20, 14
              s_add_u32 s29, s29, s3
              s_lshl_b32 s3, s42, 6
              s_add_u32 s29, s29, s3
              s_add_u32 s29, s29, {WS_X1}
              s_add_u32 s30, s29, 8192""")
        for tb in range(2):
            A(f"buffer_load_dwordx4 {v(32+8*tb,4)}, v9, {WS}, s29 offen offset:{tb*1024} sc1")
            A(f"buffer_load_dwordx4 {v(36+8*tb,4)}, v9, {WS}, s30 offen offset:{tb*1024} sc1")
    compute_loop(A, 4, 4, 2, 36, acc, XB, WB, xread, wread, advance, name="p4c", bar_after=1, once=(int(os.environ.get("H2IT", "3")), flagH2))
    fstamp(A, 13)
    A(f"""s_lshl_b32 s3, s16, 4
          s_add_u32 s3, s3, s17
          s_lshl_b32 s29, s3, 14
          s_lshl_b32 s41, s18, 12
          s_add_u32 s29, s29, s41
          s_add_u32 s29, s29, {WS_EX}
          s_xor_b32 s30, s29, {8 << 14}
          s_lshl_b32 s31, s3, 7
          s_lshl_b32 s41, s18, 2
          s_add_u32 s31, s31, s41
          s_add_u32 s31, s31, {F_EX}
          s_xor_b32 s32, s31, {8 << 7}
          s_waitcnt lgkmcnt(0)""")
    for i in range(4):
        a0 = ACC + 32 + 8 * i
        pack(64 + 4 * i, a0, a0 + 4)
        A(f"buffer_store_dwordx4 {v(64+4*i,4)}, v9, {WS}, s29 offen offset:{i*1024} sc1")
    A(f"""s_lshl_b32 s3, s42, 2
          s_add_u32 s3, s3, {L_GT}
          v_lshl_add_u32 v5, v3, 2, s3
          ds_read_b32 v48, v5
          ds_read_b32 v49, v5 offset:64
          v_mov_b32 v8, 0xffff0000""")
    srd(A, 24, P_OUT, P_OUT + 1, S * D * 2)
    A(f"""s_waitcnt lgkmcnt(0) vmcnt(4)
          v_sub_f32 v48, 1.0, v48
          v_sub_f32 v49, 1.0, v49
          v_cvt_pk_bf16_f32 v48, v48, v48
          v_cvt_pk_bf16_f32 v49, v49, v49
          v_and_b32 v48, v8, v48
          v_and_b32 v49, v8, v49""")
    for tb in range(2):
        for nb in range(4):
            a = ACC + 4 * (tb * 4 + nb); xr = 32 + 8 * tb + 2 * nb
            A(f"""v_lshlrev_b32 v22, 16, v{xr}
                  v_and_b32 v23, v8, v{xr}
                  v_lshlrev_b32 v24, 16, v{xr+1}
                  v_and_b32 v25, v8, v{xr+1}
                  v_pk_fma_f32 {v(a,2)}, v[22:23], v[48:49], {v(a,2)} op_sel:[0,{tb},0] op_sel_hi:[1,{tb},1]
                  v_pk_fma_f32 {v(a+2,2)}, v[24:25], v[48:49], {v(a+2,2)} op_sel:[0,{tb},0] op_sel_hi:[1,{tb},1]""")
    A("s_waitcnt vmcnt(0)")
    flag_store(A, 31)
    fstamp(A, 14)
    ld = lambda: A(f"buffer_load_dword v20, off, {WS}, s32 sc1")
    ld()
    A(f"""v_lshlrev_b32 v5, 11, v3
          v_and_b32 v6, 1, v4
          v_lshl_add_u32 v5, v6, 5, v5
          v_lshrrev_b32 v6, 1, v4
          v_lshl_add_u32 v5, v6, 4, v5
          s_lshl_b32 s41, s16, 7
          s_add_u32 s41, s41, s42
          s_lshl_b32 s41, s41, 11
          s_and_b32 s3, s17, 7
          s_lshl_b32 s3, s3, 8
          s_add_u32 s41, s41, s3
          s_lshl_b32 s3, s20, 7
          s_add_u32 s41, s41, s3
          s_add_u32 s43, s41, {16*2048}
          s_waitcnt vmcnt(0)""")
    spin_until(A, lambda: A("v_cmp_ne_u32 vcc, s12, v20"), ld, "ex")
    for i in range(4): A(f"buffer_load_dwordx4 {v(64+4*i,4)}, v9, {WS}, s30 offen offset:{i*1024} sc1")
    fstamp(A, 15)
    for i in range(4):
        tb, pr = i >> 1, i & 1
        a0 = ACC + 8 * i; o = 96 + 4 * i
        A("s_waitcnt vmcnt(3)")
        for k in range(4):
            A(f"""v_lshlrev_b32 v22, 16, v{64+4*i+k}
                  v_and_b32 v23, v8, v{64+4*i+k}
                  v_pk_add_f32 {v(a0+2*k,2)}, {v(a0+2*k,2)}, v[22:23]""")
        pack(o, a0, a0 + 4)
        A(f"""s_nop 1
              v_permlane16_swap_b32 v{o}, v{o+2}
              v_permlane16_swap_b32 v{o+1}, v{o+3}
              buffer_store_dwordx4 {v(o,4)}, v5, s[24:27], s{41 if tb == 0 else 43} offen offset:{pr*64}{os.environ.get("OUTF", "")}""")
    fstamp(A, 16)
    if PROF: A("s_waitcnt vmcnt(0)")
    fstamp(A, 17)
    fstamp_flush(A, 0)
    A("s_endpgm")
    A(f"{Lslow}:")
    A("s_waitcnt lgkmcnt(0)")
    for i in range(0, 40, 2): A(f"v_mov_b64 {v(128+i,2)}, 0")
    A(f"""v_mov_b32 v14, 0xff7fffff
          v_mov_b32 v15, 0xff7fffff
          s_lshl_b32 s41, s17, 19
          s_lshl_b32 s3, s20, 14
          s_add_u32 s41, s41, s3
          s_add_u32 s41, s41, {WS_KV}
          s_mov_b32 s40, 64""")
    Ls = A.label("sloop")
    A(f"{Ls}:")
    for b in range(2): A(f"buffer_load_dwordx4 {v(KB(0,b),4)}, v{VL16}, {WS}, s41 offen offset:{b*1024} sc1")
    for b in range(2): A(f"buffer_load_dwordx4 {v(VB(0,b),4)}, v{VL16}, {WS}, s41 offen offset:{2048 + b*1024} sc1")
    A("s_waitcnt vmcnt(0)")
    for q in range(2):
        for it in qk(q): A(it.text)
    A("s_nop 15")
    for q in range(2):
        d = SB(q); m = 14 + q
        A(f"v_max3_f32 v6, v{d}, v{d+1}, v{m}")
        for i in range(2, 16, 2): A(f"v_max3_f32 v6, v{d+i}, v{d+i+1}, v6")
        A(f"""v_mov_b32 v5, v6
              s_nop 1
              v_permlane32_swap_b32 v5, v6
              s_nop 1
              v_max_f32 v6, v6, v5
              v_sub_f32 v5, v{m}, v6
              v_exp_f32 v5, v5
              v_mov_b32 v{m}, v6""")
        for i in range(16): A(f"v_sub_f32 v{d+i}, v{d+i}, v6")
        for i in range(16): A(f"v_exp_f32 v{d+i}, v{d+i}")
        for i in range(16): A(f"v_mul_f32 v{O(q)+i}, v{O(q)+i}, v5")
        for i in range(4): A(f"v_mul_f32 v{Lr(q)+i}, v{Lr(q)+i}, v5")
        A("s_nop 1")
        for it in pv(q, False): A(it.text)
    A(f"""s_nop 15
          s_sub_u32 s40, s40, 1
          s_and_b32 s3, s40, 3
          s_cmp_eq_u32 s3, 0
          s_cselect_b32 s3, 16384, 0
          s_add_u32 s41, s41, s3
          s_add_u32 s41, s41, 4096
          s_cmp_lg_u32 s40, 0
          s_cbranch_scc1 {Ls}
          s_branch {Lfin}""")
```

```python
import re, sys
TRANS = ("v_exp_", "v_log_", "v_rcp_", "v_rsq_", "v_sqrt_", "v_sin_", "v_cos_")
def regs(tok):
    tok = tok.strip()
    tok = re.sub(r"^-|^abs\(|\)$|^\||\|$", "", tok); tok = re.sub(r"^abs\(", "", tok)
    m = re.fullmatch(r"([vsa])\[(\d+):(\d+)\]", tok)
    if m: return {(m.group(1), i) for i in range(int(m.group(2)), int(m.group(3)) + 1)}
    m = re.fullmatch(r"([vsa])(\d+)", tok)
    if m: return {(m.group(1), int(m.group(2)))}
    if tok in ("vcc", "exec", "m0"): return {(tok, 0)}
    if tok in ("exec_lo", "exec_hi"): return {("exec", 0)}
    if tok in ("vcc_lo", "vcc_hi"): return {("vcc", 0)}
    return set()
class I:
    def __init__(s, line, no):
        s.line = line; s.no = no
        line = re.sub(r"\s(op_sel|op_sel_hi|neg_lo|neg_hi|quad_perm):\[[^\]]*\]", "", line)
        p = line.split(None, 1); s.op = p[0]
        ops = [x.strip() for x in p[1].split(",")] if len(p) > 1 else []
        if ops:
            parts = ops[-1].split(); ops[-1] = parts[0]; s.mods = parts[1:]
        else: s.mods = []
        s.ops = ops
        op = s.op
        s.mfma = op.startswith("v_mfma") or op.startswith("v_smfmac")
        s.valu = op.startswith("v_") and not s.mfma
        s.vmem = op.startswith("buffer_") or op.startswith("global_")
        s.ds = op.startswith("ds_")
        s.salu = op.startswith("s_")
        s.trans = op.startswith(TRANS)
        s.w = set(); s.r = set(); s.cread = set(); s.ab = set()
        R = [regs(x) for x in ops]
        if s.mfma:
            s.w = R[0]; s.ab = R[1] | R[2]
            if op.startswith("v_smfmac"): s.cread = R[0]; s.ab |= R[3]
            else: s.cread = R[3]
            s.r = s.ab | s.cread
            s.passes = 8 if "32x32" in op else 4
        elif s.valu:
            if op.startswith("v_permlane") and "swap" in op: s.w = R[0] | R[1]; s.r = R[0] | R[1]
            elif op.startswith("v_cmp"): s.w = R[0]; s.r = set().union(*R[1:])
            elif "_co_" in op: s.w = R[0] | R[1]; s.r = set().union(*R[2:])
            else:
                s.w = R[0]; s.r = set().union(*R[1:]) if len(R) > 1 else set()
                if op.startswith(("v_fmac", "v_dot2c", "v_pk_fmac")): s.r |= R[0]
        elif s.vmem:
            lds = "lds" in s.mods
            if "load" in op and not lds: s.w = R[0]; s.r = set().union(*R[1:])
            elif lds: s.r = set().union(*R) | {("m0", 0)}
            elif op in ("buffer_wbl2", "buffer_inv"): pass
            else:
                s.r = set().union(*R)
                s.data = R[0] if op.startswith("buffer_") else R[1]
        elif s.ds:
            if "read" in op or "permute" in op or "swizzle" in op: s.w = R[0]; s.r = set().union(*R[1:])
            else: s.r = set().union(*R)
        elif s.salu:
            if op.startswith(("s_cmp", "s_cbranch", "s_branch", "s_waitcnt", "s_barrier", "s_nop", "s_endpgm", "s_setprio", "s_sleep")): s.r = set().union(*R) if R else set()
            else:
                s.w = R[0] if R else set(); s.r = set().union(*R[1:]) if len(R) > 1 else set()
        s.states = int(ops[0]) + 1 if op == "s_nop" else 1
def need(p, c):
    n = 0
    vw = {x for x in p.w if x[0] in "va"}; sw = {x for x in p.w if x[0] in ("s", "vcc", "exec")}
    if p.valu:
        if c.mfma and vw & c.r: n = max(n, 2)
        if c.valu and (c.op.startswith("v_permlane") or "_dpp" in c.op) and vw & c.r: n = max(n, 2)
        if c.op.startswith(("v_readfirstlane", "v_readlane")) and vw & c.r: n = max(n, 1)
        if p.trans and c.valu and not c.trans and vw & c.r: n = max(n, 1)
        if p.trans and (c.valu or c.vmem or c.ds) and vw & c.r: n = max(n, 1)
        if c.valu and sw & c.r: n = max(n, 2)
        if c.vmem and sw & c.r: n = max(n, 5)
        if p.op.startswith("v_permlane") and c.valu and vw & c.r: n = max(n, 0)
    if p.op.startswith("v_dot") and (c.valu or c.mfma or c.vmem or c.ds) and vw & (c.r | c.w):
        if c.op != p.op: n = max(n, 3)
        elif vw & (regs(c.ops[1]) | regs(c.ops[2])): n = max(n, 3)
    if p.mfma:
        big = 12 if p.passes == 8 else 8
        if (c.valu or c.vmem or c.ds) and p.w & (c.r | c.w): n = max(n, big)
        if c.mfma:
            if p.w & c.ab: n = max(n, big)
            if p.w & c.cread and not (p.w == c.cread and p.passes == c.passes): n = max(n, 10 if p.passes == 8 else 6)
            if p.w & c.w and not (p.w & c.cread): n = max(n, 0)
        if c.valu and p.cread & c.w: n = max(n, 7 if p.passes == 8 else 3)
    if p.salu and ("m0", 0) in p.w and c.vmem and ("m0", 0) in c.r: n = max(n, 1)
    if p.vmem and hasattr(p, "data") and ("x4" in p.op or "x3" in p.op) and p.data & c.w: n = max(n, 2 if c.valu else 1)
    return n
def check(text):
    ins = []; labels = {}
    for no, l in enumerate(text.split("\n"), 1):
        l = l.split(";")[0].strip()
        if not l or l.startswith("."): continue
        if l.endswith(":"): labels[l[:-1]] = len(ins); continue
        ins.append(I(l, no))
    bad = []
    def scan(start):
        p = ins[start]
        stack = [(start + 1, 0)] if p.op not in ("s_branch", "s_endpgm") else []
        seen = set()
        while stack:
            i, st = stack.pop()
            if st >= 20 or i >= len(ins) or (i, st) in seen: continue
            seen.add((i, st))
            c = ins[i]
            n = need(p, c)
            if n > st: bad.append((p.no, c.no, n, st, p.line, c.line))
            if c.op == "s_endpgm": continue
            if c.op == "s_branch": stack.append((labels[c.ops[0]], st + 1)); continue
            if c.op.startswith("s_cbranch"): stack.append((labels[c.ops[0]], st + 1))
            stack.append((i + 1, st + c.states))
    for i in range(len(ins)): scan(i)
    return sorted(set(bad))
if __name__ == "__main__":
    b = check(open(sys.argv[1]).read())
    for x in b: print(f"line {x[0]} -> {x[1]}: need {x[2]} have {x[3]}: [{x[4]}] -> [{x[5]}]")
    print(len(b), "hazards")
```

```python
from common import *
SLOT = 49152
NS = 3
L_ST = NS * SLOT
L_CS = L_ST + 2048
L_JOB = L_CS + 256
LDS_BYTES = L_JOB + 1280
T = 16
POFF = int(os.environ.get('POFF', '0'))
QSCALE = (DH ** -0.5) * 1.4426950408889634

def job_stats(A):
    for row in range(2):
        for k in range(8):
            xr = 64 + 8*row + k
            A(f"""v_lshlrev_b32 v34, 16, v{xr}
                  v_and_b32 v35, v9, v{xr}""")
            if k == 0:
                A(f"""v_add_f32 v{24+row}, v34, v35
                      v_mul_f32 v{26+row}, v34, v34""")
            else:
                A(f"""v_add_f32 v{24+row}, v{24+row}, v34
                      v_fmac_f32 v{26+row}, v34, v34
                      v_add_f32 v{24+row}, v{24+row}, v35""")
            A(f"v_fmac_f32 v{26+row}, v35, v35")
    for k in range(4):
        A(f"""v_lshlrev_b32 v{40+2*k}, 16, v{88+k}
              v_and_b32 v{41+2*k}, v9, v{88+k}
              v_lshlrev_b32 v32, 16, v{92+k}
              v_and_b32 v33, v9, v{92+k}
              v_add_f32 v{40+2*k}, v{40+2*k}, v32
              v_add_f32 v{41+2*k}, v{41+2*k}, v33""")
    A("""v_permlane32_swap_b32 v24, v25
         v_permlane32_swap_b32 v26, v27
         v_permlane32_swap_b32 v40, v44
         v_permlane32_swap_b32 v41, v45
         v_permlane32_swap_b32 v42, v46
         v_permlane32_swap_b32 v43, v47
         v_add_f32 v24, v24, v25
         v_add_f32 v26, v26, v27
         v_add_f32 v40, v40, v44
         v_add_f32 v41, v41, v45
         v_add_f32 v42, v42, v46
         v_add_f32 v43, v43, v47
         v_mov_b32 v25, v24
         v_mov_b32 v27, v26
         v_permlane16_swap_b32 v40, v42
         v_permlane16_swap_b32 v41, v43
         v_permlane16_swap_b32 v24, v25
         v_permlane16_swap_b32 v26, v27
         v_add_f32 v40, v40, v42
         v_add_f32 v41, v41, v43
         v_add_f32 v24, v24, v25
         v_add_f32 v25, v26, v27""")
    dpp = lambda r, sh: f"v_add_f32_dpp v{r}, v{r}, v{r} row_ror:{sh} row_mask:0xf bank_mask:0xf"
    A(f"""{dpp(40,8)}
          {dpp(41,8)}
          {dpp(24,8)}
          {dpp(25,8)}
          v_and_b32 v5, 7, v2
          {dpp(24,4)}
          {dpp(25,4)}
          v_lshlrev_b32 v5, 5, v5
          {dpp(24,2)}
          {dpp(25,2)}
          v_lshrrev_b32 v6, 5, v2
          {dpp(24,1)}
          {dpp(25,1)}
          v_lshl_add_u32 v5, v6, 4, v5
          v_and_b32 v7, 1, v4
          v_lshl_add_u32 v5, v7, 3, v5
          s_lshl_b32 s3, s18, 8
          s_add_u32 s3, s3, {L_JOB + 256}
          v_add_u32 v5, s3, v5
          ds_write_b64 v5, v[40:41]
          v_mul_f32 v24, {hexf(1.0/1024)}, v24
          v_mul_f32 v25, {hexf(1.0/1024)}, v25""")
    A(f"""s_lshl_b32 s3, s18, 4
          s_add_u32 s3, s3, {L_JOB}
          v_lshl_add_u32 v5, v6, 3, s3
          ds_write_b64 v5, v[24:25]""")

def job_gate(A):
    A("v_mov_b32 v28, 0"); A("v_mov_b32 v29, 0")
    for k in range(8):
        g = 80 + k
        A(f"v_lshlrev_b32 v32, 16, v{g}")
        A(f"v_and_b32 v33, v9, v{g}")
        for row in range(2):
            xr = 64 + 8*row + k
            A(f"""v_lshlrev_b32 v34, 16, v{xr}
                  v_and_b32 v35, v9, v{xr}
                  v_mul_f32 v34, v34, v32
                  v_mul_f32 v35, v35, v33
                  v_cvt_pk_bf16_f32 v34, v34, v35
                  v_lshlrev_b32 v35, 16, v34
                  v_and_b32 v34, v9, v34
                  v_add_f32 v{28+row}, v{28+row}, v35
                  v_add_f32 v{28+row}, v{28+row}, v34""")
    dpp = lambda r, sh: f"s_nop 1\nv_add_f32_dpp v{r}, v{r}, v{r} row_ror:{sh} row_mask:0xf bank_mask:0xf"
    A(f"""s_nop 1
          v_permlane32_swap_b32 v28, v29
          v_add_f32 v28, v28, v29
          v_mov_b32 v29, v28
          s_nop 1
          v_permlane16_swap_b32 v28, v29
          v_add_f32 v28, v28, v29
          {dpp(28,8)}
          {dpp(28,4)}
          {dpp(28,2)}
          {dpp(28,1)}
          v_cvt_pk_bf16_f32 v28, v28, v28
          v_and_b32 v28, v9, v28
          v_mul_f32 v28, {hexf(-1.4426950408889634)}, v28
          v_exp_f32 v28, v28
          s_nop 0
          v_add_f32 v28, 1.0, v28
          v_rcp_f32 v28, v28
          s_nop 0
          v_cvt_pk_bf16_f32 v28, v28, v28
          v_and_b32 v28, v9, v28""")

def gen_k1(A, name="k1_kernel"):
    kernel_header(A, name)
    Lend = A.label("k1end"); Lcomp = A.label("k1comp")
    A(f"s_cmp_ge_u32 s2, 256")
    A(f"s_cbranch_scc1 {Lend}")
    stamp(A, 0)
    A(f"s_load_dwordx4 s[4:7], s[0:1], {KA_X}")
    A(f"s_load_dwordx2 s[8:9], s[0:1], {KA_W1}")
    A(f"s_load_dwordx2 s[10:11], s[0:1], {KA_G}")
    A(f"s_load_dwordx4 s[48:51], s[0:1], {KA_DBG}")
    A("""v_lshrrev_b32 v1, 6, v0
         v_and_b32 v2, 63, v0
         s_and_b32 s14, s2, 7
         v_readfirstlane_b32 s18, v1
         s_lshr_b32 s15, s2, 3
         s_and_b32 s16, s14, 1
         s_lshl_b32 s16, s16, 3
         s_and_b32 s3, s15, 7
         s_add_u32 s16, s16, s3
         s_lshr_b32 s17, s14, 1
         s_lshl_b32 s17, s17, 2
         s_lshr_b32 s3, s15, 3
         s_add_u32 s17, s17, s3""")
    A("s_cmp_lt_u32 s18, 4")
    A(f"s_cbranch_scc1 {Lcomp}")
    A("s_sub_u32 s18, s18, 4")
    A(f"""v_lshrrev_b32 v3, 3, v2
          v_and_b32 v4, 7, v2
          v_lshrrev_b32 v5, 1, v3
          v_xor_b32 v5, v5, v4
          s_lshl_b32 s3, s16, 7
          s_lshl_b32 s36, s18, 5
          s_add_u32 s3, s3, s36
          v_add_u32 v6, s3, v3
          v_lshlrev_b32 v6, 11, v6
          v_lshl_add_u32 v10, v5, 4, v6
          v_xor_b32 v11, 64, v10
          v_add_u32 v11, {8*2048 - 1024}, v11
          v_add_u32 v12, {16*2048 - 2048}, v10
          v_add_u32 v13, {16*2048 - 2048}, v11""")
    ra, rb = [int(x) for x in os.environ.get("ROT1", "2,0").split(",")]
    A(f"""s_lshl_b32 s3, s18, 11
          s_mov_b32 s30, {D*3*D*2}
          s_mov_b32 s32, 6144
          s_cmp_eq_u32 s18, 3
          s_cselect_b32 s30, {D*D*2}, s30
          s_cselect_b32 s32, 2048, s32
          s_cselect_b32 s33, 0, s3
          s_mov_b32 s31, 0x20000
          s_add_u32 s3, s18, 1
          s_and_b32 s3, s3, 3
          s_mul_i32 s3, s3, {POFF}
          s_add_u32 s3, s3, s17
          s_and_b32 s3, s3, 15
          s_lshl_b32 s3, s3, 7
          s_add_u32 s33, s33, s3
          s_lshl_b32 s34, s32, 4
          s_lshl_b32 s35, s32, 6
          s_lshl_b32 s37, s18, 12
          s_lshl_b32 s38, s18, 13
          s_add_u32 s38, s38, 16384
          s_mul_i32 s52, s16, {ra}
          s_mul_i32 s3, s17, {rb}
          s_add_u32 s52, s52, s3
          s_and_b32 s52, s52, 15""")
    A("""v_and_b32 v5, 2, v3
         v_xor_b32 v5, v5, v4
         v_mul_lo_u32 v6, v3, s32
         v_lshl_add_u32 v14, v5, 4, v6
         v_xor_b32 v5, 4, v5
         v_lshl_add_u32 v15, v5, 4, v6
         s_lshl_b32 s3, s32, 3
         s_sub_u32 s3, s3, 1024
         v_add_u32 v15, s3, v15""")
    A("s_waitcnt lgkmcnt(0)")
    srd(A, 24, 4, 5, S * D * 2)
    A("""s_cmp_eq_u32 s18, 3
         s_cselect_b32 s28, s8, s6
         s_cselect_b32 s29, s9, s7
         s_and_b32 s29, s29, 0xffff""")
    def issue(slot, mid=None, A=A):
        A(f"s_add_u32 m0, s37, {slot}")
        A("s_lshl_b32 s39, s52, 7")
        for i in range(4):
            A(f"buffer_load_dwordx4 v{10+i}, s[24:27], s39 offen offset:{i*1024} lds")
        if mid: mid()
        A(f"s_add_u32 s45, s38, {slot}")
        A("s_mul_i32 s41, s52, s35")
        A("s_add_u32 s41, s41, s33")
        for i in range(4):
            A(f"s_add_u32 m0, s45, {i*2048}")
            if i: A("s_add_u32 s41, s41, s34")
            else: A("s_add_u32 s52, s52, 1")
            A(f"buffer_load_dwordx4 v14, s[28:31], s41 offen lds")
            A(f"buffer_load_dwordx4 v15, s[28:31], s41 offen offset:1024 lds")
        A("s_and_b32 s52, s52, 15")
    stamp(A, 1)
    issue(0)
    def barP():
        stamp(A, 2)
        A("s_waitcnt vmcnt(4)")
        A("s_barrier")
        stamp(A, 3)
    issue(SLOT, barP)
    slot = lambda t: (t % NS) * SLOT
    def endit(n, lg=False):
        A(f"s_waitcnt vmcnt({n})" + (" lgkmcnt(0)" if lg else ""))
        A("s_barrier")
    issue(slot(2))
    A(f"""s_lshl_b32 s46, s16, 7
          s_lshl_b32 s3, s17, 3
          s_add_u32 s46, s46, s3
          s_lshl_b32 s3, s18, 1
          s_add_u32 s46, s46, s3
          s_lshl_b32 s46, s46, 11
          v_lshlrev_b32 v8, 4, v2
          v_lshlrev_b32 v5, 11, v3
          v_lshl_add_u32 v7, v4, 4, v5
          s_lshl_b32 s47, s16, 17
          s_lshl_b32 s3, s17, 7
          s_add_u32 s47, s47, s3
          s_lshl_b32 s3, s18, 15
          s_add_u32 s47, s47, s3
          s_add_u32 s42, s47, 16384
          v_mov_b32 v9, 0xffff0000
          v_lshrrev_b32 v4, 4, v2""")
    srd(A, 12, 10, 11, D * 2)
    srd(A, 20, 8, 9, D * D * 2)
    endit(12)
    A("""buffer_load_dwordx4 v[64:67], v8, s[24:27], s46 offen
         buffer_load_dwordx4 v[68:71], v8, s[24:27], s46 offen offset:1024
         buffer_load_dwordx4 v[72:75], v8, s[24:27], s46 offen offset:2048
         buffer_load_dwordx4 v[76:79], v8, s[24:27], s46 offen offset:3072
         buffer_load_dwordx4 v[80:83], v8, s[12:15], 0 offen
         buffer_load_dwordx4 v[84:87], v8, s[12:15], 0 offen offset:1024
         buffer_load_dwordx4 v[88:91], v7, s[20:23], s47 offen
         buffer_load_dwordx4 v[92:95], v7, s[20:23], s42 offen""")
    issue(slot(3))
    endit(20)
    srd(A, 8, 48, 49, 256)
    A("v_mov_b32 v18, 0")
    A("buffer_load_dword v19, v18, s[8:11], 0 offen sc1")
    issue(slot(4))
    srd(A, 4, 50, 51, WS_END)
    A(f"""s_lshl_b32 s19, s16, 4
          s_add_u32 s19, s19, s17
          s_lshl_b32 s20, s19, 7
          s_add_u32 s21, s20, {WS_ST1}
          s_mov_b32 s22, 8
          s_mov_b32 s23, {L_JOB}
          s_lshl_b32 s3, s19, 9
          s_add_u32 s3, s3, {WS_CS1}
          s_cmp_eq_u32 s18, 1
          s_cselect_b32 s21, s3, s21
          s_cselect_b32 s22, 32, s22
          s_cselect_b32 s23, {L_JOB + 256}, s23
          s_cselect_b32 s54, -1, 0
          s_cmp_eq_u32 s18, 2
          s_cselect_b32 s22, 0, s22
          s_add_u32 s3, s20, {WS_FLAG}
          s_cmp_eq_u32 s18, 3
          s_cselect_b32 s21, s3, s21
          s_cselect_b32 s53, 0, -1
          v_and_b32 v5, 31, v2
          v_lshlrev_b32 v16, 4, v2
          v_lshl_add_u32 v17, v5, 3, s23
          v_cmp_gt_u32 vcc, s22, v2
          v_mov_b32 v5, {OOB}
          s_nop 0
          v_cndmask_b32 v16, v5, v16, vcc""")
    endit(12)
    spin_until(A, lambda: A("v_cmp_eq_u32 vcc, 0, v19"), lambda: A("buffer_load_dword v19, v18, s[8:11], 0 offen sc1"), "k1nonce")
    stamp(A, 4)
    J = Asm()
    job_stats(J)
    n = len(J.lines); cuts = [0, n // 3, 2 * n // 3, n]
    for c in range(3):
        I = Asm(); issue(slot(5 + c), None, I)
        interleave(A, I.lines, J.lines[cuts[c]:cuts[c+1]])
        endit(12, c == 2)
        if c == 2: stamp(A, 5)
    for i in range(4): A(f"ds_read_b64 {v(24+2*i,2)}, v17 offset:{i*256}")
    A("s_waitcnt lgkmcnt(0)")
    for i in range(2):
        A(f"""v_add_f32 v{26+i}, v{26+i}, v{28+i}
              v_add_f32 v{26+i}, v{26+i}, v{30+i}
              v_and_b32 v{26+i}, s54, v{26+i}
              v_add_f32 v{20+2*i}, v{24+i}, v{26+i}
              v_and_b32 v{20+2*i}, s53, v{20+2*i}
              v_and_b32 v{21+2*i}, s53, v19""")
    issue(slot(8))
    A("buffer_store_dwordx4 v[20:23], v16, s[4:7], s21 offen sc1")
    endit(13)
    J = Asm(); job_gate(J)
    J(f"""s_lshr_b32 s46, s46, 9
          s_add_u32 s46, s46, {WS_G}
          v_and_b32 v5, 31, v2
          v_cmp_eq_u32 vcc, 0, v5
          v_lshrrev_b32 v30, 3, v2
          v_mov_b32 v6, {OOB}
          v_cndmask_b32 v30, v6, v30, vcc
          v_lshlrev_b32 v16, 4, v5
          s_lshl_b32 s21, s16, 11
          s_lshl_b32 s3, s18, 9
          s_add_u32 s21, s21, s3
          s_add_u32 s21, s21, {WS_ST1}
          v_lshrrev_b32 v7, 3, v2
          v_lshlrev_b32 v7, 14, v7
          v_and_b32 v6, 7, v2
          v_lshl_add_u32 v17, v6, 4, v7
          s_lshl_b32 s22, s17, 9
          s_lshl_b32 s3, s18, 7
          s_add_u32 s22, s22, s3
          s_add_u32 s22, s22, {WS_CS1}
          s_add_u32 s23, s22, 8192""")
    n = len(J.lines)
    for c in range(6):
        I = Asm(); issue(slot(9 + c), None, I)
        interleave(A, I.lines, J.lines[n * c // 6: n * (c + 1) // 6])
        endit(12)
    stamp(A, 6)
    def payload():
        A("""buffer_load_dwordx4 v[20:23], v16, s[4:7], s21 offen sc1
             buffer_load_dwordx4 v[32:35], v17, s[4:7], s22 offen sc1
             buffer_load_dwordx4 v[36:39], v17, s[4:7], s23 offen sc1""")
    A("buffer_store_dword v28, v30, s[4:7], s46 offen")
    payload()
    issue(slot(15))
    endit(12)
    def chk():
        A("""v_xor_b32 v24, v19, v21
             v_xor_b32 v25, v19, v23
             v_xor_b32 v26, v19, v33
             v_xor_b32 v27, v19, v35
             v_or3_b32 v24, v24, v25, v26
             v_xor_b32 v25, v19, v37
             v_xor_b32 v26, v19, v39
             v_or3_b32 v24, v24, v25, v26
             v_or_b32 v24, v24, v27
             v_cmp_ne_u32 vcc, 0, v24""")
    spin_until(A, chk, payload, "k1pay")
    A(f"""v_add_f32 v32, v32, v36
          v_add_f32 v33, v34, v38
          v_mov_b32 v21, v22
          s_lshl_b32 s3, s18, 9
          s_add_u32 s3, s3, {L_ST}
          v_permlane32_swap_b32 v32, v33
          v_add_u32 v16, s3, v16
          v_add_f32 v32, v32, v33
          v_mov_b32 v33, v32""")
    ln_consts(A, 20, 24)
    A(f"""v_permlane16_swap_b32 v32, v33
          ds_write_b128 v16, v[20:23]
          v_add_f32 v32, v32, v33
          s_lshl_b32 s3, s18, 6
          s_add_u32 s3, s3, {L_CS}
          v_add_f32_dpp v32, v32, v32 row_ror:8 row_mask:0xf bank_mask:0xf
          v_lshl_add_u32 v6, v6, 3, s3
          v_lshrrev_b32 v7, 5, v2
          v_lshl_add_u32 v6, v7, 2, v6
          ds_write_b32 v6, v32""")
    endit(0, True)
    A("s_barrier")
    stamp(A, 7)
    if PROF:
        stamp_flush(A, 0, 8, 50, 51, role=1)
    A(f"{Lend}:")
    A("s_endpgm")
    A(f"{Lcomp}:")
    ACC, XB0, WB0 = 128, 64, 96
    acc = lambda tb, nb: ACC + 4 * (tb * 8 + nb)
    XB = lambda p, tb: XB0 + 16 * p + 4 * tb
    WB = lambda nb: WB0 + 4 * nb
    A("""s_lshr_b32 s19, s18, 1
         s_and_b32 s20, s18, 1
         v_and_b32 v3, 15, v2
         v_lshrrev_b32 v4, 4, v2""")
    A("""s_lshl_b32 s3, s19, 6
         v_add_u32 v5, s3, v3
         v_lshlrev_b32 v5, 7, v5
         v_lshrrev_b32 v6, 1, v3
         v_xor_b32 v6, v6, v4
         v_lshlrev_b32 v7, 4, v6
         v_add_u32 v14, v5, v7
         v_xor_b32 v15, 64, v14""")
    A("""v_lshrrev_b32 v5, 2, v3
         v_and_b32 v6, 3, v3
         v_lshl_add_u32 v7, v4, 3, v5
         v_lshlrev_b32 v7, 7, v7
         v_lshl_add_u32 v7, v6, 3, v7
         v_lshrrev_b32 v8, 1, v5
         v_and_b32 v9, 1, v4
         v_lshl_or_b32 v8, v9, 1, v8
         s_lshl_b32 s3, s20, 1
         v_xor_b32 v8, s3, v8
         v_lshl_add_u32 v16, v8, 5, v7
         v_xor_b32 v17, 32, v16""")
    A("""v_mov_b32 v10, v14
         v_mov_b32 v11, v15
         v_mov_b32 v12, v16
         v_mov_b32 v13, v17
         s_mov_b32 s21, 0""")
    for i in range(0, 128, 2): A(f"v_mov_b64 {v(ACC+i,2)}, 0")
    xread = lambda st, tb, dst: f"ds_read_b128 {v(dst,4)}, v{10+st} offset:{tb*2048}"
    wread = lambda st, nb, e, dst: f"ds_read_b64_tr_b16 {v(dst,2)}, v{12+(nb&1)} offset:{16384 + (nb>>1)*8192 + st*4096 + e*512}"
    def advance():
        return [f"s_add_u32 s21, s21, {SLOT}", f"s_cmp_eq_u32 s21, {NS*SLOT}", "s_cselect_b32 s21, 0, s21",
                "v_add_u32 v10, s21, v14", "v_add_u32 v11, s21, v15", "v_add_u32 v12, s21, v16", "v_add_u32 v13, s21, v17"]
    Lnn = A.label("k1nononce")
    A(f"""s_memrealtime s[28:29]
          s_waitcnt lgkmcnt(0)
          s_or_b32 s3, s2, s18
          s_cmp_lg_u32 s3, 0
          s_cbranch_scc1 {Lnn}""")
    srd(A, 24, 48, 49, 4)
    A(f"""s_or_b32 s28, s28, 1
          v_mov_b32 v5, s28
          v_lshlrev_b32 v6, 2, v2
          buffer_store_dword v5, v6, s[24:27], 0 offen sc1""")
    A(f"{Lnn}:")
    stamp(A, 1)
    A("s_barrier")
    stamp(A, 2)
    if PROF: A("s_waitcnt lgkmcnt(0)")
    compute_loop(A, 4, 8, 2, T, acc, XB, WB, xread, wread, advance, swapped=(4, 5), name="k1c")
    stamp(A, 3)
    A(f"""s_lshl_b32 s3, s19, 10
          v_lshl_add_u32 v5, v3, 4, s3
          v_add_u32 v5, {L_ST}, v5
          s_lshl_b32 s3, s20, 7
          v_lshl_add_u32 v6, v4, 4, s3
          v_add_u32 v6, {L_CS}, v6""")
    for tb in range(4): A(f"ds_read_b128 {v(24+4*tb,4)}, v5 offset:{tb*256}")
    A("ds_read_b128 v[40:43], v6")
    A("ds_read_b128 v[44:47], v6 offset:64")
    srd(A, 24, 50, 51, WS_END)
    A("""s_lshl_b32 s22, s17, 1
         s_add_u32 s22, s22, s20
         s_lshl_b32 s23, s16, 2
         s_lshl_b32 s3, s19, 1
         s_add_u32 s23, s23, s3""")
    A("""v_lshlrev_b32 v5, 9, v4
         v_lshl_add_u32 v20, v3, 4, v5
         v_lshrrev_b32 v6, 2, v3
         v_and_b32 v7, 3, v3
         v_lshl_add_u32 v6, v6, 3, v7
         v_lshl_add_u32 v21, v6, 4, v5
         v_lshrrev_b32 v6, 3, v3
         v_and_b32 v7, 7, v3
         v_lshl_add_u32 v6, v6, 4, v7
         v_lshl_add_u32 v22, v6, 4, v5""")
    A(f"""s_add_u32 s28, s22, {2*POFF}
          s_and_b32 s28, s28, 31
          s_lshl_b32 s28, s28, 17
          s_lshl_b32 s3, s23, 11
          s_add_u32 s28, s28, s3
          s_add_u32 s28, s28, {WS_Q}
          s_lshl_b32 s3, s23, 12
          s_add_u32 s3, s3, {WS_KV}
          s_add_u32 s29, s22, {4*POFF}
          s_and_b32 s29, s29, 31
          s_lshl_b32 s29, s29, 18
          s_add_u32 s29, s29, s3
          s_add_u32 s30, s29, 4096
          s_add_u32 s31, s22, {6*POFF}
          s_and_b32 s31, s31, 31
          s_lshl_b32 s31, s31, 18
          s_add_u32 s31, s31, s3
          s_add_u32 s32, s31, 4096
          s_mov_b32 s38, {hexf(QSCALE)}""")
    A("s_waitcnt lgkmcnt(0)")
    tmp = [64, 68, 72, 76, 80, 84, 88, 92, 96, 100, 104, 108]
    ti = 0
    def pack(t, a0, a1):
        A(f"v_cvt_pk_bf16_f32 v{t}, v{a0}, v{a0+1}"); A(f"v_cvt_pk_bf16_f32 v{t+1}, v{a0+2}, v{a0+3}")
        A(f"v_cvt_pk_bf16_f32 v{t+2}, v{a1}, v{a1+1}"); A(f"v_cvt_pk_bf16_f32 v{t+3}, v{a1+2}, v{a1+3}")
    for tb in range(4):
        t = tmp[ti]; ti += 1
        pack(t, acc(tb, 2), acc(tb, 3))
        A(f"buffer_store_dwordx4 {v(t,4)}, v21, s[24:27], s{29 + (tb>>1)} offen offset:{(tb&1)*64}{STF}")
    for u in range(2):
        for nbv in range(2):
            t = tmp[ti]; ti += 1
            pack(t, acc(2*u, 4+nbv), acc(2*u+1, 4+nbv))
            A(f"buffer_store_dwordx4 {v(t,4)}, v22, s[24:27], s{31 + u} offen offset:{2048 + nbv*128}{STF}")
    for tb in range(4):
        t = tmp[ti]; ti += 1
        a0 = acc(tb, 0)
        for r in range(0, 8, 2): A(f"v_pk_mul_f32 {v(a0+r,2)}, {v(a0+r,2)}, s[38:39] op_sel_hi:[1,0]")
        pack(t, a0, a0 + 4)
        A(f"buffer_store_dwordx4 {v(t,4)}, v20, s[24:27], s28 offen offset:{(tb>>1)*2048 + (tb&1)*256}{STF}")
    A(f"""s_lshr_b32 s3, s22, 3
          s_lshr_b32 s32, s3, 1
          s_add_u32 s32, s32, 1
          s_sub_u32 s33, 0, s32
          s_and_b32 s3, s3, 1
          s_cmp_eq_u32 s3, 1
          s_cselect_b32 s32, s33, s32
          s_lshl_b32 s33, s16, 7
          s_lshl_b32 s3, s19, 6
          s_add_u32 s33, s33, s3
          s_add_u32 s33, s33, s32
          s_lshl_b32 s34, s22, 13
          s_add_u32 s34, s34, {WS_H1}
          v_add_u32 v50, s33, v3
          v_and_b32 v49, 15, v50
          v_lshlrev_b32 v49, 4, v49
          v_lshl_add_u32 v49, v4, 8, v49""")
    for tb in range(4):
        b = 24 + 4 * tb
        a0 = acc(tb, 6)
        t = 112 + 4 * tb
        A(f"""v_cmp_gt_u32 vcc, 2048, v50
              v_bfe_u32 v51, v50, 7, 4
              v_bfe_u32 v48, v50, 4, 3
              v_lshl_add_u32 v51, v51, 18, v49
              v_lshl_add_u32 v51, v48, 10, v51""")
        if tb < 3: A("v_add_u32 v50, 16, v50")
        gelu_pk(A, [a0 + 2*i for i in range(4)], [40 + 2*i for i in range(4)], b, [52 + 2*i for i in range(4)], [t + i for i in range(4)])
        if tb in (0, 3):
            for r in range(4): A(f"v_cndmask_b32 v{t+r}, 0, v{t+r}, vcc")
        A(f"buffer_store_dwordx4 {v(t,4)}, v51, s[24:27], s34 offen{STF}")
    stamp(A, 4)
    if PROF: A("s_waitcnt vmcnt(0)")
    stamp(A, 5)
    stamp_flush(A, 0, 6, 50, 51)
    A("s_endpgm")
    return dict(name=name, grid=256, block=512, lds=LDS_BYTES, vgpr=256)
```

```python
import sys
from common import *
import fused, hazard
HDR = open("gated_mix__softmax_full_mha__mixer_s_mlp__prompt.s.ref").read().split("; Override")[0]
A = Asm()
i = fused.gen(A)
out = HDR + f"; @launch grid=({i['grid']},1,1) block=({i['block']},1,1) lds={i['lds']}\n"
out += '.amdgcn_target "amdgcn-amd-amdhsa--gfx950"\n.text\n' + A.text() + '.section .rodata,"a"\n' + kernel_desc(i['name'], i['vgpr'], 102)
open(sys.argv[1], "w").write(out)
for x in hazard.check(out): print(f"HAZARD line {x[0]} -> {x[1]}: need {x[2]} have {x[3]}: [{x[4]}] -> [{x[5]}]")
import json; json.dump(STAMPS, open('stamps.json', 'w'))
```

```python
from dsl import *
import os
EXP = os.environ.get('EXP', '').split(',')
S, D, H, DH, F = 2048, 1024, 32, 32, 3584
KA_X, KA_WQKV, KA_WO, KA_BX, KA_W1, KA_W2, KA_W3, KA_W4, KA_G, KA_OUT, KA_DBG, KA_WS = [8*i for i in range(12)]
WS_Q   = 0x0000000
WS_KV  = 0x0400000
WS_H1  = 0x0C00000
WS_X1  = 0x1000000
WS_HO  = 0x1400000
HO_PANEL = 144 * 8192
WS_G   = 0x2600000
WS_ST  = 0x2610000
WS_CS3 = 0x2700000
WS_ST1 = 0x2660000
WS_CS1 = 0x26A0000
WS_FLAG = 0x2680000
WS_EX  = 0x2800000
F_KV = WS_FLAG
F_EX = WS_FLAG + 0x8000
F_H1 = WS_FLAG + 0x10000
F_X1 = WS_FLAG + 0x11000
F_O  = WS_FLAG + 0x12000
F_H2 = WS_FLAG + 0x13000
WS_END = 0x3000000

GELU_C0 = -2.0 * 1.4426950408889634 * 0.7978845608028654
GELU_C1 = GELU_C0 * 0.044715

def kernel_header(A, name):
    A.lines.append(f".p2align 8")
    A.lines.append(f".globl {name}")
    A.lines.append(f".type {name},@function")
    A.lines.append(f"{name}:")

def kernel_desc(name, vgpr, sgpr=96):
    acc = (vgpr + 3) // 4 * 4
    return f""".p2align 6
.amdhsa_kernel {name}
  .amdhsa_next_free_vgpr {vgpr}
  .amdhsa_next_free_sgpr {sgpr}
  .amdhsa_accum_offset {acc}
  .amdhsa_group_segment_fixed_size 0
  .amdhsa_kernarg_size 96
  .amdhsa_user_sgpr_count 2
  .amdhsa_user_sgpr_kernarg_segment_ptr 1
  .amdhsa_system_sgpr_workgroup_id_x 1
  .amdhsa_float_denorm_mode_32 {0 if "nodenorm" in EXP else 3}
.end_amdhsa_kernel
"""

def gelu(A, regs, tmp, sC0, sC1):
    n = len(regs)
    for r, t in zip(regs, tmp): A(f"v_mul_f32 v{t}, v{r}, v{r}")
    for r, t in zip(regs, tmp): A(f"v_fma_f32 v{t}, v{t}, s{sC1}, v{sC0}")
    for r, t in zip(regs, tmp): A(f"v_mul_f32 v{t}, v{t}, v{r}")
    for r, t in zip(regs, tmp): A(f"v_exp_f32 v{t}, v{t}")
    if n < 2: A("s_nop 0")
    for r, t in zip(regs, tmp): A(f"v_add_f32 v{t}, 1.0, v{t}")
    for r, t in zip(regs, tmp): A(f"v_rcp_f32 v{t}, v{t}")
    if n < 2: A("s_nop 0")
    for r, t in zip(regs, tmp): A(f"v_mul_f32 v{r}, v{r}, v{t}")

def compute_loop(A, NT, NN, KS, T, acc, XB, WB, xread, wread, advance, swapped=(), bar_after=2, sCnt=40, name="c", every_step=False, once=None):
    assert KS % 2 == 0
    pre = []
    for tb in range(NT): pre.append(Item(xread(0, tb, XB(0, tb)), gives=("X", 0, tb)))
    for nb in range(NN):
        for e in range(2): pre.append(Item(wread(0, nb, e, WB(nb) + 2*e), gives=("W", nb, e)))
    for it in pre: A(it.text)
    body = []
    for st in range(KS):
        p = st & 1
        last = st == KS - 1 or every_step
        fin = st == KS - 1
        nst = (st + 1) % KS
        pend = []
        xq = [Item(xread(nst, tb, XB(1 - p, tb)), gives=("X", 1 - p, tb)) for tb in range(NT)]
        adv = [Item(t) for t in advance()] if last else []
        tail = [Item(f"s_sub_u32 s{sCnt}, s{sCnt}, 1"), Item(f"s_cmp_lg_u32 s{sCnt}, 0")] if fin else []
        for nb in range(NN):
            for tb in range(NT):
                a = acc(tb, nb)
                if nb in swapped:
                    txt = f"v_mfma_f32_16x16x32_bf16 {v(a,4)}, {v(XB(p,tb),4)}, {v(WB(nb),4)}, {v(a,4)}"
                else:
                    txt = f"v_mfma_f32_16x16x32_bf16 {v(a,4)}, {v(WB(nb),4)}, {v(XB(p,tb),4)}, {v(a,4)}"
                body.append(Item(txt, needs=[("X", p, tb), ("W", nb, 0), ("W", nb, 1)]))
                if last and nb < bar_after:
                    if adv: body.append(adv.pop(0))
                elif pend: body.append(pend.pop(0))
                elif xq: body.append(xq.pop(0))
                elif tail: body.append(tail.pop(0))
            pend += [Item(wread(nst, nb, e, WB(nb) + 2*e), gives=("W", nb, e)) for e in range(2)]
            if last and nb == bar_after - 1:
                for it in adv: body.append(it)
                body.append(Item("s_barrier", drain=True))
        for it in xq + pend + tail: body.append(it)
    lines = insert_lgkm_waits(pre, body, maxcnt=6)
    L = A.label(name + "loop")
    A(f"s_mov_b32 s{sCnt}, {T if once is None else once[0]}")
    if once is not None: A(f"s_mov_b32 s{sCnt+1}, {T - once[0]}")
    A(f"{L}:")
    for l in lines:
        if "noread" in EXP and l.startswith("ds_read"): continue
        if "nomfma" in EXP and l.startswith("v_mfma"): continue
        A(l)
    A(f"s_cbranch_scc1 {L}")
    if once is not None:
        Lx = A.label(name + "exit")
        A(f"s_cmp_eq_u32 s{sCnt+1}, 0")
        A(f"s_cbranch_scc1 {Lx}")
        once[1]()
        A(f"s_mov_b32 s{sCnt}, s{sCnt+1}")
        A(f"s_mov_b32 s{sCnt+1}, 0")
        A(f"s_branch {L}")
        A(f"{Lx}:")

import os
PROF = int(os.environ.get("PROF", "0"))
WS_PROF = 0x2780000
def stamp(A, i):
    if not PROF: return
    A(f"s_memrealtime s[{64+4*i}:{65+4*i}]")
    A(f"s_memtime s[{66+4*i}:{67+4*i}]")
def stamp_flush(A, kidx, n, wslo, wshi, role=0):
    if not PROF: return
    A("s_waitcnt lgkmcnt(0)")
    srd(A, 56, wslo, wshi, WS_END)
    for i in range(n):
        A(f"v_mov_b32 v{2+2*i}, s{64+4*i}")
        A(f"v_mov_b32 v{3+2*i}, s{66+4*i}")
    A(f"s_lshl_b32 s60, s2, 7")
    A(f"s_add_u32 s60, s60, {WS_PROF + kidx*65536 + role*64}")
    A("v_mov_b32 v1, 0")
    A("s_mov_b64 exec, 1")
    for i in range(n):
        A(f"buffer_store_dwordx2 v[{2+2*i}:{3+2*i}], v1, s[56:59], s60 offen offset:{8*i}")

STF = os.environ.get("STF", " sc1")
def touch_linear(A, srdreg, nbytes, vaddr, vdummy, swave, nwaves_total_log2, sidx, stmp):
    per = 8192 << nwaves_total_log2
    n = -(-nbytes // per)
    A(f"s_lshl_b32 s{stmp}, s{sidx}, 13")
    for i in range(n):
        A(f"buffer_load_dword v{vdummy}, v{vaddr}, s[{srdreg}:{srdreg+3}], s{stmp} offen")
        if i < n - 1: A(f"s_add_u32 s{stmp}, s{stmp}, {per}")

OOB = 0x7ffffff0
def gelu_pk(A, zs, css, st, tmps, outs):
    p = lambda r: v(r, 2)
    for z, c in zip(zs, css): A(f"v_pk_fma_f32 {p(z)}, {p(c)}, {p(st)}, {p(z)} op_sel_hi:[1,0,1] neg_lo:[0,1,0] neg_hi:[0,1,0]")
    for z, t in zip(zs, tmps): A(f"v_pk_mul_f32 {p(t)}, {p(z)}, {p(z)}")
    for z, t in zip(zs, tmps): A(f"v_pk_fma_f32 {p(t)}, {p(t)}, {p(st+2)}, {p(st)} op_sel:[0,0,1] op_sel_hi:[1,0,1]")
    for z, t in zip(zs, tmps): A(f"v_pk_mul_f32 {p(t)}, {p(t)}, {p(z)}")
    for t in tmps[:len(zs)]:
        A(f"v_exp_f32 v{t}, v{t}"); A(f"v_exp_f32 v{t+1}, v{t+1}")
    for z, t in zip(zs, tmps): A(f"v_pk_fma_f32 {p(t)}, {p(t)}, {p(st+2)}, {p(st+2)} op_sel:[0,1,1] op_sel_hi:[1,1,1]")
    for t in tmps[:len(zs)]:
        A(f"v_rcp_f32 v{t}, v{t}"); A(f"v_rcp_f32 v{t+1}, v{t+1}")
    for z, t in zip(zs, tmps): A(f"v_pk_mul_f32 {p(z)}, {p(z)}, {p(t)}")
    for z, o in zip(zs, outs): A(f"v_cvt_pk_bf16_f32 v{o}, v{z}, v{z+1}")

def ln_consts(A, b, tmp, wreg=None):
    A(f"""v_fma_f32 v{b+1}, -v{b}, v{b}, v{b+1}
          v_max_f32 v{b+1}, 0, v{b+1}
          v_add_f32 v{b+1}, {hexf(1e-5)}, v{b+1}
          v_rsq_f32 v{tmp}, v{b+1}
          v_sqrt_f32 v{b+3}, v{b+1}""")
    if wreg is not None: A(f"v_rcp_f32 v{wreg}, v{wreg}")
    A(f"""v_mul_f32 v{b+2}, v{tmp}, v{tmp}
          v_mul_f32 v{b+1}, {hexf(GELU_C0)}, v{tmp}
          v_mul_f32 v{b+2}, v{b+2}, v{tmp}
          v_mul_f32 v{b+2}, {hexf(GELU_C1)}, v{b+2}""")
    if wreg is not None: A(f"v_mul_f32 v{b+3}, v{b+3}, v{wreg}")

def spin_until(A, check, reload, name):
    Lok = A.label(name + "ok"); Lsp = A.label(name + "sp")
    A("s_mov_b32 s62, 0x8000")
    A(f"{Lsp}:")
    check()
    A(f"""s_cbranch_vccz {Lok}
          s_sub_u32 s62, s62, 1
          s_cmp_eq_u32 s62, 0
          s_cbranch_scc1 {Lok}
          s_sleep 4""")
    reload()
    A("s_waitcnt vmcnt(0)")
    A(f"s_branch {Lsp}")
    A(f"{Lok}:")

def interleave(A, main, fill):
    n = sum(1 for l in main if "buffer_load" in l)
    k = 0; done = 0
    for l in main:
        A.lines.append(l)
        if "buffer_load" in l:
            k += 1
            e = len(fill) * k // n
            A.lines += fill[done:e]; done = e

class VM:
    def __init__(self, A): self.A = A; self.log = []
    def op(self, text, tag=None):
        for l in text.split("\n"):
            l = l.strip()
            if not l: continue
            self.A(l)
            if l.startswith("buffer_"): self.log.append(tag)
    def note(self, n, tag): self.log += [tag] * n
    def count(self, *tags):
        idx = max(i for i, t in enumerate(self.log) if t in tags)
        return len(self.log) - 1 - idx
    def wait(self, *tags, lg=False):
        self.A(f"s_waitcnt vmcnt({self.count(*tags)})" + (" lgkmcnt(0)" if lg else ""))

STAMPS = {0: ["entry"], 1: ["entry"]}
ROLE = [0]
def fstamp(A, name):
    if not PROF: return
    lst = STAMPS[ROLE[0]]
    i = len(lst); lst.append(str(name))
    assert i < 32
    A("s_memrealtime s[96:97]")
    A("s_memtime s[98:99]")
    A("s_waitcnt lgkmcnt(0)")
    A(f"v_writelane_b32 v62, s96, {i}")
    A(f"v_writelane_b32 v63, s98, {i}")
    if i == 1:
        A(f"v_writelane_b32 v62, s92, 0")
        A(f"v_writelane_b32 v63, s94, 0")
def fstamp_flush(A, role):
    if not PROF: return
    A(f"""s_lshl_b32 s3, s2, 9
          s_add_u32 s3, s3, {WS_PROF + role*256}
          v_and_b32 v1, 63, v0
          v_lshlrev_b32 v1, 3, v1
          s_mov_b32 exec_hi, 0
          buffer_store_dwordx2 v[62:63], v1, s[4:7], s3 offen""")

def code_touch(A, lab_from, lab_to, n, vaddr=58, vdummy=60, stmp=90, lanereg=2, swave=18):
    if "notouch" in EXP: return 0
    Lh = A.label("pc")
    A(f"s_getpc_b64 s[{stmp}:{stmp+1}]")
    A(f"{Lh}:")
    A(f"""s_add_u32 s{stmp}, s{stmp}, {lab_from}-{Lh}
          s_addc_u32 s{stmp+1}, s{stmp+1}, 0
          v_lshl_add_u32 v{vaddr}, v{lanereg}, 2, s{swave}
          v_lshlrev_b32 v{vaddr}, 7, v{vaddr}
          v_min_u32 v{vaddr}, {lab_to}-{lab_from}-4, v{vaddr}
          v_mov_b32 v{vaddr+1}, s{stmp+1}
          v_add_co_u32 v{vaddr}, vcc, s{stmp}, v{vaddr}
          s_nop 1
          v_addc_co_u32 v{vaddr+1}, vcc, 0, v{vaddr+1}, vcc
          global_load_dword v{vdummy}, v[{vaddr}:{vaddr+1}], off""")
    return 1
```

```python
from common import *
from k1 import job_stats as _js, job_gate as _jg
import k1
NAME = "gated_mix__softmax_full_mha__mixer_s_mlp__prompt_kernel"
P_X, P_WQKV, P_WO, P_BX, P_W1, P_W2, P_W3, P_W4, P_G, P_OUT, P_DBG, P_WS = [64 + 2*i for i in range(12)]
QSCALE = (DH ** -0.5) * 1.4426950408889634
S1 = 49152
L_MISC = 155648
L_ST = L_MISC
L_CS = L_ST + 2048
L_GT = L_CS + 1024
L_NON = L_GT + 512
L_JOB = L_NON + 64
LDS_BYTES = 163840
k1.L_JOB = L_JOB
KVS = 32768
L_W2W = 65536
L_W2X = 98304
L_XR = 131072
L_C3 = 147456
S3 = 45056; L3 = 20480
S4 = 32768
WOFF = int(os.environ.get("WOFF", "2"))
WS = "s[4:7]"
dppadd = lambda r, sh: f"v_add_f32_dpp v{r}, v{r}, v{r} row_ror:{sh} row_mask:0xf bank_mask:0xf"

def flag_store(A, soff_sreg, vtmp=1):
    A(f"""v_mov_b32 v{vtmp}, s12
          s_mov_b64 exec, 1
          buffer_store_dword v{vtmp}, off, {WS}, s{soff_sreg} sc1
          s_mov_b64 exec, -1""")

def gen(A):
    kernel_header(A, NAME)
    Lend = A.label("end"); Lcomp = A.label("comp")
    A(f"s_cmp_ge_u32 s2, 256")
    A(f"s_cbranch_scc1 {Lend}")
    if PROF:
        A("s_memrealtime s[92:93]"); A("s_memtime s[94:95]")
    A("s_load_dwordx16 s[64:79], s[0:1], 0")
    A("s_load_dwordx8 s[80:87], s[0:1], 64")
    A("""v_lshrrev_b32 v1, 6, v0
         v_and_b32 v2, 63, v0
         s_and_b32 s14, s2, 7
         v_readfirstlane_b32 s18, v1
         s_lshr_b32 s15, s2, 3
         s_and_b32 s16, s14, 1
         s_lshl_b32 s16, s16, 3
         s_and_b32 s3, s15, 7
         s_add_u32 s16, s16, s3
         s_lshr_b32 s17, s14, 1
         s_lshl_b32 s17, s17, 2
         s_lshr_b32 s3, s15, 3
         s_add_u32 s17, s17, s3""")
    A(f"""s_add_u32 s13, s17, {WOFF}
          s_and_b32 s13, s13, 15""")
    A("s_cmp_lt_u32 s18, 4")
    A(f"s_cbranch_scc1 {Lcomp}")
    helper(A)
    A(f"{Lend}:")
    A("s_endpgm")
    A("H_end:")
    A(f"{Lcomp}:")
    compute(A)
    return dict(name=NAME, grid=256, block=512, lds=LDS_BYTES, vgpr=256)

def helper(A):
    ROLE[0] = 1
    A("s_sub_u32 s18, s18, 4")
    if PROF: A("v_mov_b64 v[62:63], 0")
    A(f"""v_lshrrev_b32 v3, 3, v2
          v_and_b32 v4, 7, v2
          v_lshrrev_b32 v5, 1, v3
          v_xor_b32 v5, v5, v4
          s_lshl_b32 s3, s16, 7
          s_lshl_b32 s36, s18, 5
          s_add_u32 s3, s3, s36
          v_add_u32 v6, s3, v3
          v_lshlrev_b32 v6, 11, v6
          v_lshl_add_u32 v10, v5, 4, v6
          v_xor_b32 v11, 64, v10
          v_add_u32 v11, {8*2048 - 1024}, v11
          v_add_u32 v12, {16*2048 - 2048}, v10
          v_add_u32 v13, {16*2048 - 2048}, v11""")
    ra, rb = [int(x) for x in os.environ.get("ROT1", "2,0").split(",")]
    A(f"""s_lshl_b32 s3, s18, 11
          s_mov_b32 s30, {D*3*D*2}
          s_mov_b32 s32, 6144
          s_cmp_eq_u32 s18, 3
          s_cselect_b32 s30, {D*D*2}, s30
          s_cselect_b32 s32, 2048, s32
          s_cselect_b32 s33, 0, s3
          s_cselect_b32 s3, s13, s17
          s_mov_b32 s31, 0x20000
          s_lshl_b32 s3, s3, 7
          s_add_u32 s33, s33, s3
          s_lshl_b32 s34, s32, 4
          s_lshl_b32 s35, s32, 6
          s_lshl_b32 s37, s18, 12
          s_lshl_b32 s38, s18, 13
          s_add_u32 s38, s38, 16384
          s_mul_i32 s52, s16, {ra}
          s_mul_i32 s3, s17, {rb}
          s_add_u32 s52, s52, s3
          s_and_b32 s52, s52, 15""")
    A("""v_and_b32 v5, 2, v3
         v_xor_b32 v5, v5, v4
         v_mul_lo_u32 v6, v3, s32
         v_lshl_add_u32 v14, v5, 4, v6
         v_xor_b32 v5, 4, v5
         v_lshl_add_u32 v15, v5, 4, v6
         s_lshl_b32 s3, s32, 3
         s_sub_u32 s3, s3, 1024
         v_add_u32 v15, s3, v15""")
    A("s_waitcnt lgkmcnt(0)")
    srd(A, 24, P_X, P_X + 1, S * D * 2)
    A(f"""s_cmp_eq_u32 s18, 3
          s_cselect_b32 s28, s{P_W1}, s{P_WQKV}
          s_cselect_b32 s29, s{P_W1+1}, s{P_WQKV+1}
          s_and_b32 s29, s29, 0xffff""")
    def issue(slot, mid=None, A=A):
        A(f"s_add_u32 m0, s37, {slot}")
        A("s_lshl_b32 s39, s52, 7")
        for i in range(4):
            A(f"buffer_load_dwordx4 v{10+i}, s[24:27], s39 offen offset:{i*1024} lds")
        if mid: mid()
        A(f"s_add_u32 s45, s38, {slot}")
        A("s_mul_i32 s41, s52, s35")
        A("s_add_u32 s41, s41, s33")
        for i in range(4):
            A(f"s_add_u32 m0, s45, {i*2048}")
            if i: A("s_add_u32 s41, s41, s34")
            else: A("s_add_u32 s52, s52, 1")
            A(f"buffer_load_dwordx4 v14, s[28:31], s41 offen lds")
            A(f"buffer_load_dwordx4 v15, s[28:31], s41 offen offset:1024 lds")
        A("s_and_b32 s52, s52, 15")
    fstamp(A, "start")
    issue(0)
    def barP():
        A("s_waitcnt vmcnt(4)")
        A("s_barrier")
    issue(S1, barP)
    slot = lambda t: (t % 3) * S1
    def endit(n, lg=False):
        A(f"s_waitcnt vmcnt({n})" + (" lgkmcnt(0)" if lg else ""))
        A("s_barrier")
    issue(slot(2))
    A(f"""s_lshl_b32 s46, s16, 7
          s_lshl_b32 s3, s17, 3
          s_add_u32 s46, s46, s3
          s_lshl_b32 s3, s18, 1
          s_add_u32 s46, s46, s3
          s_lshl_b32 s46, s46, 11
          v_lshlrev_b32 v8, 4, v2
          v_lshlrev_b32 v5, 11, v3
          v_lshl_add_u32 v7, v4, 4, v5
          s_lshl_b32 s47, s16, 17
          s_lshl_b32 s3, s17, 7
          s_add_u32 s47, s47, s3
          s_lshl_b32 s3, s18, 15
          s_add_u32 s47, s47, s3
          s_add_u32 s42, s47, 16384
          v_mov_b32 v9, 0xffff0000
          v_lshrrev_b32 v4, 4, v2""")
    srd(A, 8, P_G, P_G + 1, D * 2)
    srd(A, 20, P_W1, P_W1 + 1, D * D * 2)
    endit(12)
    A("""buffer_load_dwordx4 v[64:67], v8, s[24:27], s46 offen
         buffer_load_dwordx4 v[68:71], v8, s[24:27], s46 offen offset:1024
         buffer_load_dwordx4 v[72:75], v8, s[24:27], s46 offen offset:2048
         buffer_load_dwordx4 v[76:79], v8, s[24:27], s46 offen offset:3072
         buffer_load_dwordx4 v[80:83], v8, s[8:11], 0 offen
         buffer_load_dwordx4 v[84:87], v8, s[8:11], 0 offen offset:1024
         buffer_load_dwordx4 v[88:91], v7, s[20:23], s47 offen
         buffer_load_dwordx4 v[92:95], v7, s[20:23], s42 offen""")
    issue(slot(3))
    endit(20)
    srd(A, 8, P_DBG, P_DBG + 1, 256)
    A("buffer_load_dword v19, off, s[8:11], 0 sc1")
    issue(slot(4))
    srd(A, 4, P_WS, P_WS + 1, WS_END)
    A(f"""s_lshl_b32 s19, s16, 4
          s_add_u32 s19, s19, s17
          s_lshl_b32 s21, s19, 7
          s_add_u32 s21, s21, {WS_ST1}
          s_mov_b32 s22, 8
          s_mov_b32 s23, {L_JOB}
          s_lshl_b32 s3, s19, 9
          s_add_u32 s3, s3, {WS_CS1}
          s_cmp_eq_u32 s18, 1
          s_cselect_b32 s21, s3, s21
          s_cselect_b32 s22, 32, s22
          s_cselect_b32 s23, {L_JOB + 256}, s23
          s_cselect_b32 s54, -1, 0
          s_cmp_ge_u32 s18, 2
          s_cselect_b32 s22, 0, s22
          v_and_b32 v5, 31, v2
          v_lshl_add_u32 v17, v5, 3, s23
          v_cmp_gt_u32 vcc, s22, v2
          v_mov_b32 v5, {OOB}
          s_nop 0
          v_cndmask_b32 v16, v5, v8, vcc""")
    endit(12)
    spin_until(A, lambda: A("v_cmp_eq_u32 vcc, 0, v19"), lambda: A("buffer_load_dword v19, off, s[8:11], 0 sc1"), "nonce")
    A("v_readfirstlane_b32 s12, v19")
    fstamp(A, "p1j2")
    J = Asm(); _js(J)
    n = len(J.lines); cuts = [0, n // 3, 2 * n // 3, n]
    for c in range(3):
        I = Asm(); issue(slot(5 + c), None, I)
        interleave(A, I.lines, J.lines[cuts[c]:cuts[c+1]])
        endit(12, c == 2)
    for i in range(4): A(f"ds_read_b64 {v(24+2*i,2)}, v17 offset:{i*256}")
    A("s_waitcnt lgkmcnt(0)")
    for i in range(2):
        A(f"""v_add_f32 v{26+i}, v{26+i}, v{28+i}
              v_add_f32 v{26+i}, v{26+i}, v{30+i}
              v_and_b32 v{26+i}, s54, v{26+i}
              v_add_f32 v{20+2*i}, v{24+i}, v{26+i}
              v_mov_b32 v{21+2*i}, s12""")
    issue(slot(8))
    A(f"buffer_store_dwordx4 v[20:23], v16, {WS}, s21 offen sc1")
    endit(13)
    J = Asm(); _jg(J)
    J(f"""s_lshr_b32 s46, s46, 9
          s_add_u32 s46, s46, {WS_G}
          v_and_b32 v5, 31, v2
          v_cmp_eq_u32 vcc, 0, v5
          v_lshrrev_b32 v30, 3, v2
          v_mov_b32 v6, {OOB}
          v_cndmask_b32 v30, v6, v30, vcc
          v_lshlrev_b32 v16, 4, v5
          s_lshl_b32 s21, s16, 11
          s_lshl_b32 s3, s18, 9
          s_add_u32 s21, s21, s3
          s_add_u32 s21, s21, {WS_ST1}
          v_lshrrev_b32 v7, 3, v2
          v_lshlrev_b32 v7, 14, v7
          v_and_b32 v6, 7, v2
          v_lshl_add_u32 v17, v6, 4, v7
          s_lshl_b32 s22, s13, 9
          s_lshl_b32 s3, s18, 7
          s_add_u32 s22, s22, s3
          s_add_u32 s22, s22, {WS_CS1}
          s_add_u32 s23, s22, 8192""")
    n = len(J.lines)
    for c in range(6):
        I = Asm(); issue(slot(9 + c), None, I)
        interleave(A, I.lines, J.lines[n * c // 6: n * (c + 1) // 6])
        k = 0
        if c == 2: k = code_touch(A, "H_p1j14", "H_end", 1)
        if c == 4: k = code_touch(A, "C_p1end", "C_slow", 1)
        endit(12 + k)
    def payload():
        A(f"""buffer_load_dwordx4 v[20:23], v16, {WS}, s21 offen sc1
              buffer_load_dwordx4 v[32:35], v17, {WS}, s22 offen sc1
              buffer_load_dwordx4 v[36:39], v17, {WS}, s23 offen sc1""")
    payload()
    issue(slot(15))
    A(f"buffer_store_dword v28, v30, {WS}, s46 offen sc1")
    endit(13)
    def chk():
        A("""v_xor_b32 v24, s12, v21
             v_xor_b32 v25, s12, v23
             v_xor_b32 v26, s12, v33
             v_xor_b32 v27, s12, v35
             v_or3_b32 v24, v24, v25, v26
             v_xor_b32 v25, s12, v37
             v_xor_b32 v26, s12, v39
             v_or3_b32 v24, v24, v25, v26
             v_or_b32 v24, v24, v27
             v_cmp_ne_u32 vcc, 0, v24""")
    A("H_p1j14:")
    spin_until(A, chk, payload, "pay")
    srd(A, 28, P_W2, P_W2 + 1, D * D * 2)
    A(f"""v_and_b32 v5, 15, v2
          v_lshlrev_b32 v5, 7, v5
          s_lshl_b32 s3, s2, 2
          s_add_u32 s3, s3, s18
          s_lshl_b32 s3, s3, 11
          buffer_load_dword v60, v5, s[28:31], s3 offen""")
    A(f"""v_add_f32 v32, v32, v36
          v_add_f32 v33, v34, v38
          v_mov_b32 v21, v22
          s_lshl_b32 s3, s18, 9
          s_add_u32 s3, s3, {L_ST}
          v_permlane32_swap_b32 v32, v33
          v_add_u32 v16, s3, v16
          v_add_f32 v32, v32, v33
          v_mov_b32 v33, v32""")
    ln_consts(A, 20, 24)
    A(f"""v_permlane16_swap_b32 v32, v33
          ds_write_b128 v16, v[20:23]
          v_add_f32 v32, v32, v33
          s_lshl_b32 s3, s18, 6
          s_add_u32 s3, s3, {L_CS}
          {dppadd(32, 8)}
          v_lshl_add_u32 v6, v6, 3, s3
          v_lshrrev_b32 v7, 5, v2
          v_lshl_add_u32 v6, v7, 2, v6
          ds_write_b32 v6, v32
          v_mov_b32 v5, {L_NON}
          ds_write_b32 v5, v19""")
    endit(1, True)
    A(f"""s_lshl_b32 s33, s17, 19
          s_lshl_b32 s37, s18, 13
          s_add_u32 s33, s33, s37
          s_add_u32 s33, s33, {WS_KV}
          s_lshl_b32 s34, s17, 11
          s_lshl_b32 s3, s18, 2
          s_add_u32 s34, s34, s3
          s_add_u32 s34, s34, {F_KV}
          s_lshr_b32 s21, s18, 1
          s_and_b32 s22, s18, 1""")
    A("""v_and_b32 v3, 15, v2
         v_add_u32 v5, s16, v3
         v_and_b32 v5, 15, v5
         v_lshlrev_b32 v17, 7, v5
         s_mov_b32 s35, 1
         s_mov_b32 s36, 0""")
    V = VM(A)
    kvpoll = f"buffer_load_dword v20, v17, {WS}, s34 offen sc1"
    def kv_ready():
        A("v_cmp_eq_u32 vcc, s12, v20")
        A("s_and_b32 s36, vcc_lo, 0xffff")
    def kv_issue(slot):
        Lr_ = A.label("kvr"); Lok = A.label("kvok")
        A(f"""s_andn2_b32 s3, s36, s35
              s_cbranch_scc1 {Lok}
              s_mov_b32 s62, 0x8000""")
        A(f"{Lr_}:")
        A(kvpoll)
        A("s_waitcnt vmcnt(0)")
        kv_ready()
        A(f"""s_andn2_b32 s3, s36, s35
              s_cbranch_scc1 {Lok}
              s_sleep 2
              s_sub_u32 s62, s62, 1
              s_cmp_lg_u32 s62, 0
              s_cbranch_scc1 {Lr_}
              s_andn2_b32 s3, 0xffff, s35""")
        A(f"{Lok}:")
        A(f"""s_ff1_i32_b32 s3, s3
              s_bitset1_b32 s35, s3
              s_add_u32 s3, s3, s16
              s_and_b32 s3, s3, 15
              s_add_u32 m0, s37, {slot}
              s_lshl_b32 s41, s3, 15
              s_add_u32 s41, s41, s33""")
        for i in range(8):
            if i == 4:
                A("s_add_u32 m0, m0, 4096"); A("s_add_u32 s41, s41, 4096")
            A(f"buffer_load_dwordx4 v8, {WS}, s41 offen offset:{(i&3)*1024} sc1 lds")
        V.note(8, "kv")
    ACC, XB, WB, C3B = 64, 128, 192, 224
    acc = lambda tb, nb: ACC + 4 * (tb * 4 + nb)
    A(f"""v_cmp_le_u32 vcc, 28, v2
          s_lshl_b32 s3, s16, 6
          s_lshl_b32 s41, s18, 4
          v_cndmask_b32 v5, 0, 1, vcc
          v_mul_u32_u24 v6, 28, v5
          v_sub_u32 v22, v2, v6
          v_mul_u32_u24 v6, 7168, v5
          v_lshl_add_u32 v30, v22, 4, v6
          v_cmp_le_u32 vcc, 56, v2
          v_mov_b32 v6, {OOB}
          s_add_u32 s3, s3, s41
          v_cndmask_b32 v30, v30, v6, vcc
          s_mul_i32 s47, s3, 7168
          s_mul_i32 s3, s17, 448
          s_add_u32 s47, s47, s3
          v_lshlrev_b32 v22, 5, v22
          s_lshl_b32 s3, s18, 1
          v_add_u32 v5, s3, v5
          v_mul_u32_u24 v5, 896, v5
          v_add_u32 v22, v22, v5
          v_add_u32 v22, {L_C3}, v22""")
    A(f"""v_lshrrev_b32 v5, 3, v2
          v_and_b32 v6, 7, v2
          v_and_b32 v7, 6, v5
          v_xor_b32 v7, v7, v6
          v_lshlrev_b32 v5, 11, v5
          v_lshl_add_u32 v24, v7, 4, v5
          s_lshl_b32 s3, s17, 7
          v_add_u32 v24, s3, v24
          v_add_u32 v25, {8*2048 - 1024}, v24
          v_add_u32 v26, {16*2048 - 2048}, v24
          v_add_u32 v27, {24*2048 - 3072}, v24
          v_lshrrev_b32 v5, 2, v3
          v_and_b32 v6, 3, v3
          v_lshl_add_u32 v7, v4, 2, v5
          v_bfe_u32 v5, v7, 1, 2
          v_lshlrev_b32 v7, 7, v7
          v_lshl_add_u32 v7, v6, 3, v7
          v_lshl_add_u32 v7, v5, 5, v7
          s_lshl_b32 s46, s18, 12
          s_add_u32 s38, s46, {L_W2W}
          s_lshl_b32 s3, s21, 12
          s_add_u32 s3, s3, {L_W2W}
          v_add_u32 v32, s3, v7
          v_xor_b32 v33, 32, v32
          v_xor_b32 v34, 64, v32
          v_xor_b32 v35, 96, v32
          s_lshl_b32 s43, s16, 18
          s_lshl_b32 s3, s21, 13
          s_add_u32 s43, s43, s3
          s_lshl_b32 s3, s22, 12
          s_add_u32 s43, s43, s3
          s_add_u32 s43, s43, {WS_H1}
          s_lshl_b32 s44, s18, 16
          s_lshl_b32 s3, s21, 11
          v_add_u32 v28, s3, v8
          v_xor_b32 v29, 2048, v28""")
    A("s_barrier")
    for i in range(0, 64, 2): A(f"v_mov_b64 {v(ACC+i,2)}, 0")
    for i in range(40, 48, 2): A(f"v_mov_b64 {v(i,2)}, 0")
    A(f"""v_lshlrev_b32 v21, 2, v2
          s_add_u32 s3, s16, 15
          s_and_b32 s3, s3, 15
          s_lshl_b32 s48, s3, 8
          s_add_u32 s48, s48, {F_H1}
          s_lshl_b32 s49, s16, 8
          s_add_u32 s49, s49, {F_H1}
          s_add_u32 s3, s16, 1
          s_and_b32 s3, s3, 15
          s_lshl_b32 s50, s3, 8
          s_add_u32 s50, s50, {F_H1}
          v_and_b32 v5, 31, v2
          v_lshlrev_b32 v23, 2, v5
          v_and_b32 v5, 7, v2
          v_lshlrev_b32 v31, 7, v5
          s_lshl_b32 s3, s2, 2
          s_add_u32 s3, s3, s18
          s_lshl_b32 s51, s3, 10""")
    srd(A, 28, P_W2, P_W2 + 1, D * D * 2)
    srd(A, 8, P_W3, P_W3 + 1, D * F * 2)
    srd(A, 52, P_W4, P_W4 + 1, F * D * 2)
    srd(A, 56, P_WO, P_WO + 1, D * D * 2)
    A(f"s_setprio {os.environ.get('HPRIO', '2')}")
    A("s_barrier")
    fstamp(A, "T")
    kv_issue(KVS)
    fstamp(A, "j0iss")
    V.op(kvpoll, "poll")
    V.wait("kv")
    fstamp(A, "j0land")
    A("s_barrier")
    fstamp(A, "B0")
    side = [0]
    def side_loads(Z):
        k = side[0]; side[0] += 1
        if k < 8:
            Z(f"buffer_load_dwordx4 {v(C3B+4*(k&1),4)}, v30, s[8:11], s47 offen")
            Z(f"s_add_u32 s47, s47, {2*7168}")
            V.note(1, "side")
        if k < 9:
            if k == 7: Z(f"s_sub_u32 s51, s51, {7 << 20}")
            Z(f"buffer_load_dword v60, v31, {'s[52:55]' if k < 7 else 's[56:59]'}, s51 offen")
            Z(f"s_add_u32 s51, s51, {1 << 20}")
            V.note(1, "side")
    def cs3_acc(k):
        for q in range(4):
            r = C3B + 4*(k&1) + q
            A(f"""v_lshlrev_b32 v5, 16, v{r}
                  v_and_b32 v6, v9, v{r}
                  v_add_f32 v{40+2*q}, v{40+2*q}, v5
                  v_add_f32 v{41+2*q}, v{41+2*q}, v6""")
    V.wait("poll"); kv_ready()
    kv_issue(0)
    V.op(kvpoll, "poll")
    V.wait("kv")
    fstamp(A, "j1land")
    A("s_barrier")
    fstamp(A, "B1")
    V.wait("poll"); kv_ready()
    kv_issue(KVS)
    V.op(kvpoll, "poll")
    side_loads(A)
    V.wait("kv")
    fstamp(A, "j2land")
    A("s_barrier")
    fstamp(A, "B2")
    V.wait("poll"); kv_ready()
    A("H_j3:")
    def ldh1():
        for i in range(3): A(f"buffer_load_dword v{18+i}, v21, {WS}, s{48+i} offen sc1")
    def chkh1():
        A("""v_xor_b32 v18, s12, v18
             v_xor_b32 v19, s12, v19
             v_xor_b32 v20, s12, v20
             v_or3_b32 v18, v18, v19, v20
             v_cmp_ne_u32 vcc, 0, v18""")
    def w2_w(Z, b):
        Z(f"s_add_u32 m0, s38, {b*16384}")
        Z("s_nop 0")
        for i in range(4): Z(f"buffer_load_dwordx4 v{24+i}, s[28:31], s44 offen offset:{i*1024} lds")
        Z(f"s_add_u32 s44, s44, {128*2048}")
        V.note(4, "w")
    def w2_x(Z, b):
        for st in range(2):
            for tb in range(4):
                Z(f"buffer_load_dwordx4 {v(XB+32*b+16*st+4*tb,4)}, v{28+(tb>>1)}, {WS}, s43 offen offset:{(tb&1)*1024} sc1")
            Z("s_add_u32 s43, s43, 16384")
        V.note(8, "x")
    def w2_loads(Z, b):
        w2_w(Z, b); w2_x(Z, b)
    kv_issue(0)
    w2_w(A, 0)
    ldh1(); V.note(3, "poll"); V.wait("poll")
    spin_until(A, chkh1, ldh1, "h1")
    fstamp(A, "h1ok")
    def w2_reads(b):
        for st in range(2):
            for nb in range(4):
                for e in range(2): A(f"ds_read_b64_tr_b16 {v(WB+16*st+4*nb+2*e,2)}, v{32+nb} offset:{b*16384 + st*8192 + e*2048}")
    def w2_mfma(Z, b):
        for st in range(2):
            for nb in range(4):
                for tb in range(4):
                    Z(f"v_mfma_f32_16x16x32_bf16 {v(acc(tb,nb),4)}, {v(WB+16*st+4*nb,4)}, {v(XB+32*b+16*st+4*tb,4)}, {v(acc(tb,nb),4)}")
    V.op(f"""s_lshl_b32 s41, s16, 9
          s_lshl_b32 s3, s18, 7
          s_add_u32 s41, s41, s3
          s_add_u32 s41, s41, {WS_G}
          buffer_load_dword v36, v23, {WS}, s41 offen sc1""", "g")
    w2_x(A, 0)
    side_loads(A)
    cs3_acc(0)
    V.wait("kv", "w")
    A("s_barrier")
    fstamp(A, "B3")
    for j in range(4, 11):
        b = (j - 4) & 1
        w2_reads(b)
        kv_issue(KVS if (j + 1) & 1 else 0)
        V.wait("x", lg=True)
        I = Asm(); M = Asm()
        w2_loads(I, 1 - b); side_loads(I)
        w2_mfma(M, b)
        interleave(A, I.lines, M.lines)
        V.wait("kv", "w")
        cs3_acc(j - 3)
        if j in (5, 6): fstamp(A, f"j{j}done")
        A("s_barrier")
        if j in (4, 5, 6): fstamp(A, f"B{j}")
    w2_reads(1)
    kv_issue(0)
    A(f"""s_add_u32 m0, s46, {L_XR}
          s_lshl_b32 s41, s17, 7""")
    for i in range(4): V.op(f"buffer_load_dwordx4 v{10+i}, s[24:27], s41 offen offset:{i*1024} lds", "xr")
    V.wait("x", lg=True)
    w2_mfma(A, 1)
    A(f"""s_mov_b32 exec_hi, 0x00ffffff
          ds_write_b128 v22, v[40:43]
          ds_write_b128 v22, v[44:47] offset:16
          s_mov_b32 exec_hi, -1
          s_lshl_b32 s3, s18, 7
          s_add_u32 s3, s3, {L_GT}
          v_add_u32 v5, s3, v23
          ds_write_b32 v5, v36
          s_add_u32 s3, s37, {L_W2X}
          v_add_u32 v18, s3, v8
          v_xor_b32 v19, 16384, v18
          s_lshl_b32 s3, s18, 6
          v_add_u32 v5, s3, v2
          v_lshlrev_b32 v31, 2, v5
          v_add_u32 v30, {L_C3}, v31""")
    for i in range(8): A(f"ds_write_b128 v18, {v(ACC+32+4*i,4)} offset:{i*1024}")
    A(f"""s_lshl_b32 s3, s22, 6
          s_lshl_b32 s42, s21, 5
          s_add_u32 s42, s42, s3
          v_add_u32 v5, s42, v3
          v_lshlrev_b32 v5, 7, v5
          v_lshrrev_b32 v6, 1, v3
          v_lshrrev_b32 v7, 1, v4
          v_xor_b32 v6, v6, v7
          v_lshl_add_u32 v5, v6, 4, v5
          v_and_b32 v7, 1, v4
          v_lshl_add_u32 v5, v7, 3, v5
          v_add_u32 v24, {L_XR}, v5
          v_xor_b32 v25, 32, v24
          v_xor_b32 v26, 64, v24
          v_xor_b32 v27, 96, v24""")
    endit(0, True)
    fstamp(A, "B11")
    for i in range(8): A(f"ds_read_b128 {v(96+4*i,4)}, v19 offset:{i*1024}")
    for tb in range(2):
        for nb in range(4): A(f"ds_read_b64 {v(128+8*tb+2*nb,2)}, v{24+nb} offset:{tb*2048}")
    kv_issue(KVS)
    A("s_waitcnt lgkmcnt(0)")
    for i in range(8): A(f"ds_read_b32 v{160+i}, v30 offset:{i*896}")
    A(f"""s_lshl_b32 s45, s16, 18
          s_lshl_b32 s3, s17, 14
          s_add_u32 s45, s45, s3
          s_lshl_b32 s3, s42, 6
          s_add_u32 s45, s45, s3
          s_add_u32 s45, s45, {WS_X1}
          s_add_u32 s47, s45, 8192""")
    for tb in range(2):
        sm, sq = 40 + 2*tb, 41 + 2*tb
        for nb in range(4):
            a = ACC + 4 * (tb * 4 + nb); xr = 128 + 8 * tb + 2 * nb
            for r in range(4): A(f"v_add_f32 v{a+r}, v{a+r}, v{a+r+32}")
            A(f"""v_lshlrev_b32 v5, 16, v{xr}
                  v_and_b32 v6, v9, v{xr}
                  v_lshlrev_b32 v7, 16, v{xr+1}
                  v_and_b32 v18, v9, v{xr+1}
                  v_add_f32 v{a}, v{a}, v5
                  v_add_f32 v{a+1}, v{a+1}, v6
                  v_add_f32 v{a+2}, v{a+2}, v7
                  v_add_f32 v{a+3}, v{a+3}, v18
                  v_cvt_pk_bf16_f32 v{xr}, v{a}, v{a+1}
                  v_cvt_pk_bf16_f32 v{xr+1}, v{a+2}, v{a+3}""")
        V.op(f"buffer_store_dwordx4 {v(128+8*tb,4)}, v8, {WS}, s45 offen offset:{tb*1024} sc1", "st")
        V.op(f"buffer_store_dwordx4 {v(132+8*tb,4)}, v8, {WS}, s47 offen offset:{tb*1024} sc1", "st")
        for i in range(8):
            r = 128 + 8*tb + i
            A(f"""v_lshlrev_b32 v5, 16, v{r}
                  v_and_b32 v6, v9, v{r}""")
            if i == 0:
                A(f"v_add_f32 v{sm}, v5, v6"); A(f"v_mul_f32 v{sq}, v5, v5")
            else:
                A(f"""v_add_f32 v{sm}, v{sm}, v5
                      v_fmac_f32 v{sq}, v5, v5
                      v_add_f32 v{sm}, v{sm}, v6""")
            A(f"v_fmac_f32 v{sq}, v6, v6")
    V.op(f"""s_lshl_b32 s41, s19, 10
          v_permlane32_swap_b32 v40, v41
          v_permlane32_swap_b32 v42, v43
          s_lshl_b32 s3, s42, 3
          v_add_f32 v40, v40, v41
          v_add_f32 v42, v42, v43
          s_add_u32 s41, s41, s3
          s_add_u32 s41, s41, {WS_ST}
          v_permlane16_swap_b32 v40, v42
          s_nop 0
          v_add_f32 v40, v40, v42
          buffer_store_dword v40, v21, {WS}, s41 offen sc1""", "st")
    V.wait("kv", lg=True)
    A("s_barrier")
    kv_issue(0)
    A(f"""s_lshl_b32 s45, s19, 4
          s_lshl_b32 s3, s18, 2
          s_add_u32 s45, s45, s3
          s_add_u32 s45, s45, {F_X1}""")
    V.wait("st")
    flag_store(A, 45); V.note(1, "st")
    fstamp(A, "x1flag")
    for i in range(1, 8): A(f"v_add_f32 v160, v160, v{160+i}")
    V.op(f"""s_mul_i32 s41, s16, {F*8}
          s_mul_i32 s3, s17, 1792
          s_add_u32 s41, s41, s3
          s_add_u32 s41, s41, {WS_CS3}
          v_cmp_gt_u32 vcc, 896, v31
          v_lshlrev_b32 v31, 1, v31
          v_mov_b32 v5, {OOB}
          v_mov_b32 v161, s12
          v_cndmask_b32 v5, v5, v31, vcc
          buffer_store_dwordx2 v[160:161], v5, {WS}, s41 offen sc1""", "st")
    for i in range(7):
        A(f"""v_add_u32 v5, {i*64}, v2
              v_mul_u32_u24 v6, 2341, v5
              v_lshrrev_b32 v6, 16, v6
              v_mul_u32_u24 v7, 28, v6
              v_sub_u32 v7, v5, v7
              v_bfe_u32 v5, v6, 2, 1
              v_lshlrev_b32 v5, 1, v5
              v_xor_b32 v7, v7, v5
              v_mul_u32_u24 v6, 7168, v6
              v_lshl_add_u32 v{10+i}, v7, 4, v6""")
        if i & 3: A(f"v_subrev_u32 v{10+i}, {(i&3)*1024}, v{10+i}")
    srd(A, 28, P_W3, P_W3 + 1, D * F * 2)
    A(f"""s_lshl_b32 s43, s16, 18
          s_add_u32 s43, s43, s46
          s_add_u32 s43, s43, {WS_X1}
          s_mul_i32 s44, s18, {16*7168}
          s_mul_i32 s3, s17, 448
          s_add_u32 s44, s44, s3
          s_mul_i32 s38, s18, 7168
          s_add_u32 s38, s38, 16384
          s_lshl_b32 s48, s16, 8
          s_add_u32 s48, s48, {F_X1}""")
    V.wait("kv")
    A("s_barrier")
    r3a, r3b = [int(x) for x in os.environ.get("ROT3", "2,4").split(",")]
    A(f"""s_mul_i32 s50, s16, {r3a}
          s_mul_i32 s3, s17, {r3b}
          s_add_u32 s50, s50, s3
          s_and_b32 s50, s50, 15
          s_mov_b32 s51, s50""")
    def p3_x(slot):
        A(f"s_add_u32 m0, s46, {slot}")
        A("s_lshl_b32 s41, s50, 14")
        A("s_add_u32 s41, s41, s43")
        for i in range(4): A(f"buffer_load_dwordx4 v8, {WS}, s41 offen offset:{i*1024} sc1 lds")
        A("s_add_u32 s50, s50, 1"); A("s_and_b32 s50, s50, 15")
    def p3_w(slot):
        A(f"s_add_u32 m0, s38, {slot}")
        A(f"s_mul_i32 s41, s51, {64*7168}")
        A("s_add_u32 s41, s41, s44")
        for i in range(7):
            if i == 4:
                A("s_add_u32 m0, m0, 4096"); A("s_add_u32 s51, s51, 1")
            A(f"buffer_load_dwordx4 v{10+i}, s[28:31], s41 offen offset:{(i&3)*1024} lds")
        A("s_and_b32 s51, s51, 15")
    def p3_issue(slot):
        p3_x(slot); p3_w(slot)
    kv_issue(KVS)
    p3_w(L3 + S3)
    k = code_touch(A, "C_attend", "C_p3end", 1)
    endit(7 + k)
    ld = lambda: A(f"buffer_load_dword v20, v21, {WS}, s48 offen sc1")
    ld()
    p3_w(L3 + 2 * S3)
    A("s_waitcnt vmcnt(7)")
    spin_until(A, lambda: A("v_cmp_ne_u32 vcc, s12, v20"), ld, "x1")
    fstamp(A, "x1ok")
    p3_x(L3 + S3); p3_x(L3 + 2 * S3)
    A("s_barrier")
    A(f"""s_lshl_b32 s41, s16, 14
          s_lshl_b32 s3, s18, 8
          s_add_u32 s41, s41, s3
          s_add_u32 s41, s41, {WS_ST}""")
    for i in range(16):
        A(f"buffer_load_dword v{64+i}, v21, {WS}, s41 offen offset:{(i&3)*1024} sc1")
        if i & 3 == 3: A("s_add_u32 s41, s41, 4096")
    A(f"""s_lshl_b32 s3, s18, 6
          v_add_u32 v5, s3, v2
          v_min_u32 v5, 223, v5
          v_lshlrev_b32 v22, 3, v5
          s_mul_i32 s49, s17, 1792
          s_add_u32 s49, s49, {WS_CS3}""")
    def ldcs():
        A("s_mov_b32 s41, s49")
        for i in range(16):
            A(f"buffer_load_dwordx2 {v(96+2*i,2)}, v22, {WS}, s41 offen sc1")
            if i < 15: A(f"s_add_u32 s41, s41, {F*8}")
    ldcs()
    endit(36)
    p3_issue(L3)
    endit(11)
    p3_issue(L3 + S3)
    def chkcs():
        A("v_xor_b32 v5, s12, v97")
        for i in range(1, 16):
            A(f"v_xor_b32 v6, s12, v{97+2*i}"); A("v_or_b32 v5, v5, v6")
        A("v_cmp_ne_u32 vcc, 0, v5")
    spin_until(A, chkcs, ldcs, "cs3")
    for i in range(1, 16): A(f"v_add_f32 v64, v64, v{64+i}")
    for i in range(1, 16): A(f"v_add_f32 v96, v96, v{96+2*i}")
    A(f"""v_mul_f32 v64, {hexf(1.0/1024)}, v64
          v_lshrrev_b32 v22, 1, v22
          v_mov_b32 v65, v64
          v_add_u32 v22, {L_CS}, v22
          v_sub_f32 v37, 1.0, v36
          v_permlane32_swap_b32 v64, v65
          ds_write_b32 v22, v96
          v_cvt_pk_bf16_f32 v37, v37, v37
          v_and_b32 v37, v9, v37
          v_max_f32 v37, {hexf(2.0**-60)}, v37""")
    ln_consts(A, 64, 5, 37)
    A(f"""s_lshl_b32 s3, s18, 9
          s_add_u32 s3, s3, {L_ST}
          v_lshl_add_u32 v5, v23, 2, s3
          ds_write_b128 v5, v[64:67]""")
    endit(11, True)
    A(f"s_mov_b32 s45, {L3 + 2*S3}")
    A("s_mov_b32 s40, 12")
    L = A.label("p3loop")
    A(f"{L}:")
    p3_issue("s45")
    A(f"""s_add_u32 s45, s45, {S3}
          s_cmp_eq_u32 s45, {L3 + 3*S3}
          s_cselect_b32 s45, {L3}, s45
          s_waitcnt vmcnt(11)
          s_barrier
          s_sub_u32 s40, s40, 1
          s_cmp_lg_u32 s40, 0
          s_cbranch_scc1 {L}""")
    A(f"""s_lshl_b32 s48, s16, 8
          s_add_u32 s48, s48, {F_O}""")
    ld()
    A(f"""v_lshrrev_b32 v5, 4, v2
          v_and_b32 v6, 15, v2
          v_lshlrev_b32 v7, 1, v5
          v_xor_b32 v7, v7, v6
          s_lshl_b32 s3, s18, 4
          v_add_u32 v5, s3, v5
          v_lshlrev_b32 v5, 11, v5
          v_lshl_add_u32 v11, v7, 4, v5
          s_and_b32 s3, s17, 7
          s_lshl_b32 s3, s3, 8
          v_add_u32 v11, s3, v11
          v_xor_b32 v12, 128, v11
          v_add_u32 v12, {4*2048 - 1024}, v12
          v_add_u32 v13, {8*2048 - 2048}, v11
          v_add_u32 v14, {8*2048 - 2048}, v12
          s_lshr_b32 s21, s17, 3
          s_mul_i32 s33, s16, {HO_PANEL}
          s_add_u32 s33, s33, s46
          s_add_u32 s33, s33, {WS_HO}
          s_lshl_b32 s3, s21, 17
          s_add_u32 s43, s33, s3
          s_add_u32 s43, s43, {112*8192}
          s_lshl_b32 s44, s21, 20
          s_add_u32 s38, s46, 16384""")
    srd(A, 28, P_WO, P_WO + 1, D * D * 2)
    k = code_touch(A, "C_p3end", "C_p4end", 1)
    endit(k)
    spin_until(A, lambda: A("v_cmp_ne_u32 vcc, s12, v20"), ld, "o")
    A("s_barrier")
    fstamp(A, "p3B15")
    def p4_issue(slot):
        A(f"s_add_u32 m0, s46, {slot}")
        A("s_nop 0")
        for i in range(4): A(f"buffer_load_dwordx4 v8, {WS}, s43 offen offset:{i*1024} sc1 lds")
        A(f"s_add_u32 m0, s38, {slot}")
        A("s_add_u32 s43, s43, 16384")
        for i in range(4): A(f"buffer_load_dwordx4 v{11+i}, s[28:31], s44 offen offset:{i*1024} lds")
        A(f"s_add_u32 s44, s44, {64*2048}")
    for j in range(3): p4_issue(j * S4)
    A(f"""s_lshl_b32 s48, s16, 8
          s_lshl_b32 s3, s21, 7
          s_add_u32 s48, s48, s3
          s_add_u32 s48, s48, {F_H2}
          v_and_b32 v21, 31, v2
          v_lshlrev_b32 v21, 2, v21""")
    endit(16)
    def p4_loop(n, name):
        L = A.label(name)
        A(f"s_mov_b32 s40, {n}")
        A(f"{L}:")
        p4_issue("s45")
        A(f"""s_add_u32 s45, s45, {S4}
              s_and_b32 s45, s45, {4*S4 - 1}
              s_waitcnt vmcnt(16)
              s_barrier
              s_sub_u32 s40, s40, 1
              s_cmp_lg_u32 s40, 0
              s_cbranch_scc1 {L}""")
    A(f"s_mov_b32 s45, {3*S4}")
    p4_loop(5, "p4a")
    fstamp(A, "p4j5")
    ld()
    srd(A, 28, P_W4, P_W4 + 1, F * D * 2)
    A(f"""s_mul_i32 s3, s21, {56*8192}
          s_add_u32 s43, s33, s3
          s_mul_i32 s44, s21, {1792*2048}
          s_waitcnt vmcnt(0)""")
    Lfast = A.label("h2fast"); Lgo = A.label("h2go")
    A("v_cmp_ne_u32 vcc, s12, v20")
    A(f"s_cbranch_vccz {Lfast}")
    A("s_barrier")
    A("s_barrier")
    ld(); A("s_waitcnt vmcnt(0)")
    spin_until(A, lambda: A("v_cmp_ne_u32 vcc, s12, v20"), ld, "h2")
    for k in range(3):
        p4_issue(k * S4)
    A(f"""s_mov_b32 s45, {3*S4}
          s_waitcnt vmcnt(16)
          s_barrier
          s_mov_b32 s41, 25
          s_branch {Lgo}""")
    A(f"{Lfast}:")
    A("s_mov_b32 s41, 28")
    A(f"{Lgo}:")
    fstamp(A, "h2ok")
    p4_loop("s41", "p4b")
    k = code_touch(A, "C_p4end", "C_slow", 1)
    endit(8 + k); endit(k)
    A("s_barrier")
    fstamp(A, "end")
    fstamp_flush(A, 1)

def compute(A):
    ROLE[0] = 0
    ACC, XB0, WB0 = 128, 64, 96
    acc = lambda tb, nb: ACC + 4 * (tb * 8 + nb)
    XB = lambda p, tb: XB0 + 16 * p + 4 * tb
    WB = lambda nb: WB0 + 4 * nb
    if PROF: A("v_mov_b64 v[62:63], 0")
    A("""s_lshr_b32 s19, s18, 1
         s_and_b32 s20, s18, 1
         v_and_b32 v3, 15, v2
         v_lshrrev_b32 v4, 4, v2""")
    A("""s_lshl_b32 s3, s19, 6
         v_add_u32 v5, s3, v3
         v_lshlrev_b32 v5, 7, v5
         v_lshrrev_b32 v6, 1, v3
         v_xor_b32 v6, v6, v4
         v_lshlrev_b32 v7, 4, v6
         v_add_u32 v14, v5, v7
         v_xor_b32 v15, 64, v14""")
    A("""v_lshrrev_b32 v5, 2, v3
         v_and_b32 v6, 3, v3
         v_lshl_add_u32 v7, v4, 3, v5
         v_lshlrev_b32 v7, 7, v7
         v_lshl_add_u32 v7, v6, 3, v7
         v_lshrrev_b32 v8, 1, v5
         v_and_b32 v9, 1, v4
         v_lshl_or_b32 v8, v9, 1, v8
         s_lshl_b32 s3, s20, 1
         v_xor_b32 v8, s3, v8
         v_lshl_add_u32 v16, v8, 5, v7
         v_xor_b32 v17, 32, v16""")
    A("""v_mov_b32 v10, v14
         v_mov_b32 v11, v15
         v_mov_b32 v12, v16
         v_mov_b32 v13, v17
         s_mov_b32 s21, 0""")
    Lnn = A.label("nononce")
    A(f"""s_memrealtime s[28:29]
          s_waitcnt lgkmcnt(0)
          s_or_b32 s3, s2, s18
          s_cmp_lg_u32 s3, 0
          s_cbranch_scc1 {Lnn}""")
    srd(A, 24, P_DBG, P_DBG + 1, 4)
    A(f"""s_or_b32 s28, s28, 1
          v_mov_b32 v5, s28
          v_lshlrev_b32 v6, 2, v2
          buffer_store_dword v5, v6, s[24:27], 0 offen sc1""")
    A(f"{Lnn}:")
    srd(A, 4, P_WS, P_WS + 1, WS_END)
    fstamp(A, "start")
    for i in range(0, 128, 2): A(f"v_mov_b64 {v(ACC+i,2)}, 0")
    A(f"""v_and_b32 v5, 1, v4
          v_lshrrev_b32 v6, 1, v4
          v_lshlrev_b32 v5, 10, v5
          v_lshl_add_u32 v5, v6, 9, v5
          v_lshrrev_b32 v6, 2, v3
          v_and_b32 v7, 3, v3
          v_lshl_add_u32 v6, v6, 3, v7
          v_lshl_add_u32 v21, v6, 4, v5
          v_lshlrev_b32 v5, 9, v4
          v_lshrrev_b32 v6, 3, v3
          v_and_b32 v7, 7, v3
          v_lshl_add_u32 v6, v6, 4, v7
          v_lshl_add_u32 v22, v6, 4, v5
          s_lshl_b32 s3, s20, 14
          s_lshl_b32 s22, s19, 13
          s_add_u32 s3, s3, s22
          v_add_u32 v21, s3, v21
          v_add_u32 v22, s3, v22
          s_lshl_b32 s3, s19, 10
          v_lshl_add_u32 v18, v3, 4, s3
          v_add_u32 v18, {L_ST}, v18
          s_lshl_b32 s3, s20, 7
          v_lshl_add_u32 v19, v4, 4, s3
          v_add_u32 v19, {L_CS}, v19
          v_mov_b32 v20, {L_NON}
          s_mov_b32 s38, {hexf(QSCALE)}
          s_lshl_b32 s22, s13, 1
          s_add_u32 s22, s22, s20
          s_lshr_b32 s3, s22, 3
          s_lshr_b32 s32, s3, 1
          s_add_u32 s32, s32, 1
          s_sub_u32 s33, 0, s32
          s_and_b32 s3, s3, 1
          s_cmp_eq_u32 s3, 1
          s_cselect_b32 s32, s33, s32
          s_lshl_b32 s33, s16, 7
          s_lshl_b32 s3, s19, 6
          s_add_u32 s33, s33, s3
          s_add_u32 s33, s33, s32
          s_lshl_b32 s34, s22, 13
          s_add_u32 s34, s34, {WS_H1}
          v_add_u32 v50, s33, v3
          v_and_b32 v49, 15, v50
          v_lshlrev_b32 v49, 4, v49
          v_lshl_add_u32 v49, v4, 8, v49
          v_cmp_gt_u32 vcc, 2048, v50
          s_mov_b64 s[42:43], vcc""")
    for tb in range(4):
        A(f"""v_bfe_u32 v51, v50, 7, 4
              v_bfe_u32 v48, v50, 4, 3
              v_lshl_add_u32 v51, v51, 18, v49
              v_lshl_add_u32 v{56+tb}, v48, 10, v51""")
        if tb < 3: A("v_add_u32 v50, 16, v50")
    A("""v_cmp_gt_u32 vcc, 2048, v50
         s_mov_b64 s[44:45], vcc
         s_lshl_b32 s23, s16, 8
         s_lshl_b32 s3, s17, 4
         s_add_u32 s23, s23, s3
         s_lshl_b32 s3, s18, 2
         s_add_u32 s23, s23, s3""")
    A(f"""s_lshl_b32 s3, s17, 4
          s_add_u32 s3, s3, s16
          s_lshl_b32 s46, s3, 15
          s_add_u32 s46, s46, {WS_KV}
          s_add_u32 s47, s46, 4096
          s_lshl_b32 s48, s3, 7
          s_lshl_b32 s3, s20, 3
          s_add_u32 s48, s48, s3
          s_lshl_b32 s3, s19, 2
          s_add_u32 s48, s48, s3
          s_add_u32 s48, s48, {F_KV}
          s_mov_b32 s49, 0""")
    def try_flag(Z, soff, block=False):
        Ls = A.label("tf")
        if block:
            Z("s_cmp_lg_u32 s49, 0")
        else:
            Z("s_getreg_b32 s3, hwreg(HW_REG_IB_STS)")
            Z("s_and_b32 s3, s3, 0xc0000f")
            Z("s_or_b32 s3, s3, s49")
        Z(f"s_cbranch_scc1 {Ls}")
        Z("s_waitcnt vmcnt(0)")
        flag_store(Z, soff)
        Z("s_mov_b32 s49, 1")
        Z(f"{Ls}:")
    xread = lambda st, tb, dst: f"ds_read_b128 {v(dst,4)}, v{10+st} offset:{tb*2048}"
    wread = lambda st, nb, e, dst: f"ds_read_b64_tr_b16 {v(dst,2)}, v{12+(nb&1)} offset:{16384 + (nb>>1)*8192 + st*4096 + e*512}"
    def advance():
        return [f"s_add_u32 s21, s21, {S1}", f"s_cmp_eq_u32 s21, {3*S1}", "s_cselect_b32 s21, 0, s21",
                "v_add_u32 v10, s21, v14", "v_add_u32 v11, s21, v15", "v_add_u32 v12, s21, v16", "v_add_u32 v13, s21, v17"]
    A("s_barrier")
    fstamp(A, "P")
    compute_loop(A, 4, 8, 2, 16, acc, XB, WB, xread, wread, advance, swapped=(4, 5), name="p1c")
    A("C_p1end:")
    fstamp(A, "p1end")
    SB = lambda i: 64 + 16 * (i & 3)
    O = lambda q: 128 + 16 * q
    Lr = lambda q: 160 + 4 * q
    Q = lambda q, b: 168 + 8 * q + 4 * b
    KB = lambda p, b: 184 + 8 * p + 4 * b
    VB = lambda p, b: 200 + 8 * p + 4 * b
    ONES, IDX, VBASE, VL16, H1P = 216, 220, 10, 11, 224
    A("s_waitcnt lgkmcnt(0)")
    for tb in range(4): A(f"ds_read_b128 {v(24+4*tb,4)}, v18 offset:{tb*256}")
    A("ds_read_b128 v[40:43], v19")
    A("ds_read_b128 v[44:47], v19 offset:64")
    A("ds_read_b32 v20, v20")
    def pack(t, a0, a1):
        A(f"v_cvt_pk_bf16_f32 v{t}, v{a0}, v{a0+1}"); A(f"v_cvt_pk_bf16_f32 v{t+1}, v{a0+2}, v{a0+3}")
        A(f"v_cvt_pk_bf16_f32 v{t+2}, v{a1}, v{a1+1}"); A(f"v_cvt_pk_bf16_f32 v{t+3}, v{a1+2}, v{a1+3}")
    t = 64
    for tb in range(4):
        pack(t, acc(tb, 2), acc(tb, 3))
        A(f"ds_write_b128 v21, {v(t,4)} offset:{(tb>>1)*4096 + (tb&1)*64}")
        A(f"buffer_store_dwordx4 {v(t,4)}, v21, {WS}, s{46 + (tb>>1)} offen offset:{(tb&1)*64} sc1"); t += 4
    for u in range(2):
        for nbv in range(2):
            pack(t, acc(2*u, 4+nbv), acc(2*u+1, 4+nbv))
            A(f"ds_write_b128 v22, {v(t,4)} offset:{u*4096 + 2048 + nbv*128}")
            A(f"buffer_store_dwordx4 {v(t,4)}, v22, {WS}, s{46 + u} offen offset:{2048 + nbv*128} sc1"); t += 4
    A("s_waitcnt lgkmcnt(0)")
    A("s_barrier")
    A("v_readfirstlane_b32 s12, v20")
    for tb in range(4):
        a0 = acc(tb, 0)
        for r in range(0, 8, 2): A(f"v_pk_mul_f32 {v(a0+r,2)}, {v(a0+r,2)}, s[38:39] op_sel_hi:[1,0]")
        pack(Q(tb >> 1, tb & 1), a0, a0 + 4)
    for tb in range(4):
        a0 = acc(tb, 6); t = H1P + 4 * tb
        gelu_pk(A, [a0 + 2*i for i in range(4)], [40 + 2*i for i in range(4)], 24 + 4*tb, [48 + 2*i for i in range(4)], [t + i for i in range(4)])
        if tb in (0, 3):
            for r in range(4): A(f"v_cndmask_b32 v{t+r}, 0, v{t+r}, {'s[42:43]' if tb == 0 else 's[44:45]'}")
        try_flag(A, 48)
    for q in range(2):
        for i in range(4): A(f"v_permlane16_swap_b32 v{Q(q,0)+i}, v{Q(q,1)+i}")
    A(f"""v_lshlrev_b32 v{VL16}, 4, v2
          s_lshl_b32 s3, s20, 14
          v_add_u32 v{VBASE}, s3, v{VL16}""")
    rdK = lambda t: [Item(f"ds_read_b128 {v(KB(t&1,b),4)}, v{VBASE} offset:{(t&3)*4096 + b*1024}", gives=("K", t&1, b)) for b in range(2)]
    rdV = lambda t: [Item(f"ds_read_b128 {v(VB(t&1,b),4)}, v{VBASE} offset:{(t&3)*4096 + 2048 + b*1024}", gives=("V", t&1, b)) for b in range(2)]
    pre = [Item("", gives=("V", 1, 0)), Item("", gives=("V", 1, 1))] + rdK(0) + rdV(0)
    for it in pre[2:]: A(it.text)
    A(f"""v_and_b32 v5, 7, v2
          v_cmp_eq_u32 vcc, 0, v5
          v_cmp_eq_u32 s[42:43], 4, v5
          v_mov_b32 v5, 0x3f803f80
          v_mov_b32 v{IDX}, 0xdddddddd
          v_cndmask_b32 v{ONES}, 0, v5, vcc
          v_cndmask_b32 v{ONES+1}, 0, v5, vcc
          v_cndmask_b32 v{ONES+2}, 0, v5, s[42:43]
          v_cndmask_b32 v{ONES+3}, 0, v5, s[42:43]""")
    for i in range(0, 40, 2): A(f"v_mov_b64 {v(128+i,2)}, 0")
    for i in range(0, 16, 2): A(f"v_mov_b64 {v(SB(3)+i,2)}, 0")
    for i in range(0, 8, 2): A(f"v_mov_b64 {v(VB(1,0)+i,2)}, 0")
    def qk(u):
        t, q = u >> 1, u & 1
        d = SB(u)
        return [Item(f"v_mfma_f32_32x32x16_bf16 {v(d,16)}, {v(KB(t&1,0),4)}, {v(Q(q,0),4)}, 0", needs=[("K", t&1, 0), ("K", t&1, 1)]),
                Item(f"v_mfma_f32_32x32x16_bf16 {v(d,16)}, {v(KB(t&1,1),4)}, {v(Q(q,1),4)}, {v(d,16)}")]
    def pv(u, need=True):
        t, q = u >> 1, u & 1
        d = SB(u)
        r = []
        for b in range(2):
            r.append(Item(f"v_smfmac_f32_32x32x32_bf16 {v(O(q),16)}, {v(VB(t&1,b),4)}, {v(d+8*b,8)}, v{IDX}", needs=[("V", t&1, b)] if need else []))
            r.append(Item(f"v_smfmac_f32_16x16x64_bf16 {v(Lr(q),4)}, {v(ONES,4)}, {v(d+8*b,8)}, v{IDX}"))
        return r
    A("s_waitcnt lgkmcnt(2)")
    for it in qk(0): A(it.text)
    fstamp(A, "att0")
    A("s_nop 9")
    body = []
    for u in range(8):
        e = [Item(f"v_exp_f32 v{SB(u)+i}, v{SB(u)+i}") for i in range(16)]
        m = qk(u + 1) + pv(u - 1)
        t1 = (u >> 1) + 1
        extra = rdK(t1) if (u & 1) == 0 else rdV(t1)
        if u == 5: extra += [Item(f"v_xor_b32 v{VBASE}, {KVS}, v{VBASE}")]
        if u == 7: extra += [Item("s_sub_u32 s40, s40, 1"), Item("s_cmp_lg_u32 s40, 0")]
        cnt = [3, 3, 3, 1, 3, 3]
        k = 0
        for mi in range(6):
            body.append(m[mi])
            if mi == 0 and u == 6: body.append(Item("s_barrier", drain=True))
            if extra: body.append(extra.pop(0))
            for j in range(cnt[mi]):
                body.append(e[k]); k += 1
    lines = insert_lgkm_waits(pre, body, maxcnt=15)
    nq = 0
    for l in lines:
        if l.startswith("s_barrier"): try_flag(A, 48, block=True)
        if l.startswith(("s_sub_u32 s40", "s_cmp_lg_u32 s40")): continue
        A(l)
        if l.startswith("v_mfma") and l.endswith(", 0"):
            nq += 1
            if nq <= 6: try_flag(A, 48)
    for tb in range(4): A(f"buffer_store_dwordx4 {v(H1P+4*tb,4)}, v{56+tb}, {WS}, s34 offen sc1")
    fstamp(A, "st0end")
    L = A.label("aloop"); Lx = A.label("aexit")
    A("s_mov_b32 s40, 1")
    A("s_mov_b32 s41, 14")
    A(f"{L}:")
    for l in lines: A(l)
    A(f"s_cbranch_scc1 {L}")
    A(f"""s_cmp_eq_u32 s41, 0
          s_cbranch_scc1 {Lx}
          s_add_u32 s3, s23, {F_H1}
          s_waitcnt vmcnt(0)""")
    flag_store(A, 3)
    fstamp(A, "st1end")
    A(f"""s_mov_b32 s40, s41
          s_mov_b32 s41, 0
          s_branch {L}""")
    A(f"{Lx}:")
    A("C_attend:")
    for it in pv(7, False): A(it.text)
    fstamp(A, "attend")
    A(f"""v_and_b32 v5, 31, v2
          s_lshl_b32 s3, s19, 8
          s_add_u32 s3, s3, {L_GT}
          v_lshl_add_u32 v5, v5, 2, s3
          ds_read_b32 v12, v5
          ds_read_b32 v13, v5 offset:128
          s_mul_i32 s28, s16, {HO_PANEL}
          s_add_u32 s28, s28, {WS_HO}
          s_lshl_b32 s3, s17, 1
          s_add_u32 s3, s3, s20
          s_add_u32 s3, s3, 112
          s_lshl_b32 s3, s3, 13
          s_add_u32 s29, s28, s3
          s_lshl_b32 s3, s19, 12
          s_add_u32 s29, s29, s3
          v_bfe_u32 v6, v2, 4, 1
          v_lshlrev_b32 v6, 10, v6
          v_lshl_add_u32 v6, v3, 4, v6
          v_lshrrev_b32 v7, 5, v2
          v_lshl_add_u32 v16, v7, 8, v6""")
    Lslow = A.label("slow"); Lfin = A.label("fin")
    A(f"""v_min_f32 v8, v{Lr(0)}, v{Lr(1)}
          v_max_f32 v5, v{Lr(0)}, v{Lr(1)}
          v_pk_mul_f32 v[6:7], v[128:129], 0 op_sel_hi:[1,0]""")
    for i in range(2, 32, 2): A(f"v_pk_fma_f32 v[6:7], {v(128+i,2)}, 0, v[6:7] op_sel_hi:[1,0,1]")
    A(f"""v_add_f32 v7, v6, v7
          v_fmac_f32 v7, 0, v{Lr(0)}
          v_fmac_f32 v7, 0, v{Lr(1)}
          v_cmp_le_f32 vcc, {hexf(2.0**-20)}, v8
          s_mov_b64 s[44:45], vcc
          v_cmp_ge_f32 vcc, {hexf(2.0**60)}, v5
          s_and_b64 s[44:45], s[44:45], vcc
          v_cmp_eq_f32 vcc, 0, v7
          s_and_b64 s[44:45], s[44:45], vcc
          s_cmp_eq_u64 s[44:45], -1""")
    if "forceslow" in EXP: A(f"s_branch {Lslow}")
    A(f"s_cbranch_scc0 {Lslow}")
    A(f"{Lfin}:")
    A(f"""v_rcp_f32 v6, v{Lr(0)}
          v_rcp_f32 v7, v{Lr(1)}
          s_waitcnt lgkmcnt(0)
          v_mul_f32 v6, v6, v12
          v_mul_f32 v7, v7, v13""")
    for q in range(2):
        for i in range(0, 16, 2): A(f"v_pk_mul_f32 {v(O(q)+i,2)}, {v(O(q)+i,2)}, v[6:7] op_sel:[0,{q}] op_sel_hi:[1,{q}]")
        for b in range(2):
            t = 32 + 8 * q + 4 * b
            for i in range(4): A(f"v_cvt_pk_bf16_f32 v{t+i}, v{O(q)+8*b+2*i}, v{O(q)+8*b+2*i+1}")
            A(f"buffer_store_dwordx4 {v(t,4)}, v16, {WS}, s29 offen offset:{q*2048 + b*512} sc1")
    acc = lambda tb, nb: ACC + 4 * (tb * 7 + nb)
    A(f"""s_lshl_b32 s3, s19, 12
          v_add_u32 v14, s3, v{VL16}
          v_mov_b32 v9, v{VL16}
          v_lshrrev_b32 v5, 2, v3
          v_and_b32 v6, 3, v3
          v_lshl_add_u32 v7, v4, 2, v5
          v_mul_u32_u24 v7, 448, v7
          v_add_u32 v7, 16384, v7
          v_and_b32 v8, 1, v4
          v_lshl_add_u32 v5, v6, 3, v7
          s_lshl_b32 s3, s20, 8
          v_add_u32 v5, s3, v5
          v_lshl_add_u32 v15, v8, 5, v5
          v_xor_b32 v18, 1, v8
          v_lshl_add_u32 v18, v18, 5, v5
          v_and_b32 v5, 1, v6
          v_xor_b32 v5, v5, v8
          v_lshl_add_u32 v7, v5, 5, v7
          v_lshrrev_b32 v5, 1, v6
          v_lshl_add_u32 v7, v5, 3, v7
          s_lshl_b32 s3, s20, 4
          s_add_u32 s3, s3, 192
          v_add_u32 v17, s3, v7
          v_mov_b32 v16, v18
          s_mov_b32 s21, {L3 + S3}""")
    for i in range(4): A(f"v_add_u32 v{10+i}, s21, v{14+i}")
    for i in range(0, 112, 2): A(f"v_mov_b64 {v(ACC+i,2)}, 0")
    xread = lambda st, tb, dst: f"ds_read_b128 {v(dst,4)}, v10 offset:{st*8192 + tb*1024}"
    wread = lambda st, nb, e, dst: f"ds_read_b64_tr_b16 {v(dst,2)}, v{13 if nb == 6 else 11+(nb&1)} offset:{(0 if nb == 6 else (nb>>1)*64) + (st*32 + e*16)*448}"
    def advance():
        return [f"s_add_u32 s21, s21, {S3}", f"s_cmp_eq_u32 s21, {L3 + 3*S3}", f"s_cselect_b32 s21, {L3}, s21"] + [f"v_add_u32 v{10+i}, s21, v{14+i}" for i in range(4)]
    fstamp(A, "p3rdy")
    A("s_barrier")
    fstamp(A, "P3")
    def flagO():
        A(f"""s_add_u32 s3, s23, {F_O}
              s_waitcnt vmcnt(0)""")
        flag_store(A, 3)
    compute_loop(A, 4, 7, 2, 16, acc, XB, WB, xread, wread, advance, name="p3c", once=(3, flagO))
    A("C_p3end:")
    fstamp(A, "p3end")
    A(f"""s_lshl_b32 s3, s19, 10
          v_lshl_add_u32 v5, v3, 4, s3
          v_add_u32 v5, {L_ST}, v5
          s_lshl_b32 s3, s20, 9
          v_lshl_add_u32 v6, v4, 4, s3
          v_add_u32 v6, {L_CS}, v6
          v_and_b32 v7, 1, v4
          v_lshlrev_b32 v7, 6, v7
          v_lshrrev_b32 v8, 1, v4
          v_lshl_add_u32 v7, v8, 4, v7
          s_lshl_b32 s3, s20, 5
          s_add_u32 s3, s3, {L_CS + 384}
          v_add_u32 v7, s3, v7
          s_waitcnt lgkmcnt(0)""")
    for tb in range(4): A(f"ds_read_b128 {v(16+4*tb,4)}, v5 offset:{tb*256}")
    for nb in range(6): A(f"ds_read_b128 {v(32+4*nb,4)}, v6 offset:{nb*64}")
    A("ds_read_b128 v[56:59], v7")
    A(f"""s_mul_i32 s29, s17, {7*8192}
          s_add_u32 s29, s29, s28
          s_lshl_b32 s3, s19, 12
          s_add_u32 s29, s29, s3
          s_add_u32 s33, s29, {3*8192}
          s_lshl_b32 s3, s20, 9
          s_add_u32 s33, s33, s3
          s_lshl_b32 s3, s20, 15
          s_add_u32 s29, s29, s3
          s_add_u32 s30, s29, 8192
          s_add_u32 s31, s29, 16384
          v_and_b32 v5, 1, v4
          v_lshlrev_b32 v5, 10, v5
          v_lshl_add_u32 v5, v8, 8, v5
          v_lshl_add_u32 v8, v3, 4, v5
          s_waitcnt lgkmcnt(0)""")
    k = 0
    for tb in range(4):
        st = 16 + 4 * tb
        for pr in range(3):
            a0 = acc(tb, 2 * pr); o = 72 + 4 * (k % 6); k += 1
            gelu_pk(A, [a0 + 2*i for i in range(4)], [32 + 8*pr + 2*i for i in range(4)], st, [64 + 2*i for i in range(4)], [o + i for i in range(4)])
            A(f"buffer_store_dwordx4 {v(o,4)}, v9, {WS}, s{29+pr} offen offset:{tb*1024} sc1")
        a0 = acc(tb, 6); o = 96 + 4 * (tb >> 1) + 2 * (tb & 1)
        gelu_pk(A, [a0, a0 + 2], [56, 58], st, [64, 66], [o, o + 1])
        if tb & 1:
            o = 96 + 4 * (tb >> 1)
            A(f"""s_nop 1
                  v_permlane16_swap_b32 v{o}, v{o+2}
                  v_permlane16_swap_b32 v{o+1}, v{o+3}
                  buffer_store_dwordx4 {v(o,4)}, v8, {WS}, s33 offen offset:{(tb>>1)*2048} sc1""")
    acc = lambda tb, nb: ACC + 4 * (tb * 4 + nb)
    A(f"""s_lshr_b32 s22, s17, 3
          s_lshl_b32 s3, s19, 12
          s_lshl_b32 s41, s22, 11
          s_add_u32 s3, s3, s41
          v_add_u32 v16, s3, v9
          v_xor_b32 v17, 2048, v16
          v_lshrrev_b32 v5, 2, v3
          v_and_b32 v6, 3, v3
          v_lshl_add_u32 v7, v4, 2, v5
          v_and_b32 v8, 7, v7
          v_lshlrev_b32 v7, 8, v7
          v_lshl_add_u32 v7, v6, 3, v7
          s_lshl_b32 s3, s20, 2
          v_xor_b32 v8, s3, v8
          v_lshl_add_u32 v18, v8, 5, v7
          v_xor_b32 v19, 32, v18
          v_xor_b32 v20, 64, v18
          v_xor_b32 v21, 96, v18
          s_mov_b32 s21, 0""")
    for i in range(6): A(f"v_mov_b32 v{10+i}, v{16+i}")
    for i in range(0, 64, 2): A(f"v_mov_b64 {v(ACC+i,2)}, 0")
    xread = lambda st, tb, dst: f"ds_read_b128 {v(dst,4)}, v{10+(tb>>1)} offset:{st*8192 + (tb&1)*1024}"
    wread = lambda st, nb, e, dst: f"ds_read_b64_tr_b16 {v(dst,2)}, v{12+nb} offset:{16384 + st*8192 + e*4096}"
    def advance():
        return [f"s_add_u32 s21, s21, {S4}", f"s_and_b32 s21, s21, {4*S4-1}"] + [f"v_add_u32 v{10+i}, s21, v{16+i}" for i in range(6)]
    fstamp(A, "p4rdy")
    A("s_barrier")
    fstamp(A, "P4")
    def flagH2():
        A(f"""s_add_u32 s3, s23, {F_H2}
              s_waitcnt vmcnt(0)""")
        flag_store(A, 3)
        fstamp(A, "h2flag")
        A(f"""s_lshl_b32 s3, s19, 6
              s_lshl_b32 s42, s22, 5
              s_add_u32 s42, s42, s3
              s_lshl_b32 s29, s16, 18
              s_and_b32 s3, s17, 7
              s_lshl_b32 s3, s3, 15
              s_add_u32 s29, s29, s3
              s_lshl_b32 s3, s20, 14
              s_add_u32 s29, s29, s3
              s_lshl_b32 s3, s42, 6
              s_add_u32 s29, s29, s3
              s_add_u32 s29, s29, {WS_X1}
              s_add_u32 s30, s29, 8192""")
        for tb in range(2):
            A(f"buffer_load_dwordx4 {v(32+8*tb,4)}, v9, {WS}, s29 offen offset:{tb*1024} sc1")
            A(f"buffer_load_dwordx4 {v(36+8*tb,4)}, v9, {WS}, s30 offen offset:{tb*1024} sc1")
    compute_loop(A, 4, 4, 2, 36, acc, XB, WB, xread, wread, advance, name="p4c", bar_after=1, once=(int(os.environ.get("H2IT", "3")), flagH2))
    A("C_p4end:")
    fstamp(A, "p4end")
    A(f"""s_lshl_b32 s3, s16, 4
          s_add_u32 s3, s3, s17
          s_lshl_b32 s29, s3, 14
          s_lshl_b32 s41, s18, 12
          s_add_u32 s29, s29, s41
          s_add_u32 s29, s29, {WS_EX}
          s_xor_b32 s30, s29, {8 << 14}
          s_lshl_b32 s31, s3, 7
          s_lshl_b32 s41, s18, 2
          s_add_u32 s31, s31, s41
          s_add_u32 s31, s31, {F_EX}
          s_xor_b32 s32, s31, {8 << 7}
          s_waitcnt lgkmcnt(0)""")
    for i in range(4):
        a0 = ACC + 32 + 8 * i
        pack(64 + 4 * i, a0, a0 + 4)
        A(f"buffer_store_dwordx4 {v(64+4*i,4)}, v9, {WS}, s29 offen offset:{i*1024} sc1")
    A(f"""s_lshl_b32 s3, s42, 2
          s_add_u32 s3, s3, {L_GT}
          v_lshl_add_u32 v5, v3, 2, s3
          ds_read_b32 v48, v5
          ds_read_b32 v49, v5 offset:64
          v_mov_b32 v8, 0xffff0000""")
    srd(A, 24, P_OUT, P_OUT + 1, S * D * 2)
    A(f"""s_waitcnt lgkmcnt(0) vmcnt(4)
          v_sub_f32 v48, 1.0, v48
          v_sub_f32 v49, 1.0, v49
          v_cvt_pk_bf16_f32 v48, v48, v48
          v_cvt_pk_bf16_f32 v49, v49, v49
          v_and_b32 v48, v8, v48
          v_and_b32 v49, v8, v49""")
    for tb in range(2):
        for nb in range(4):
            a = ACC + 4 * (tb * 4 + nb); xr = 32 + 8 * tb + 2 * nb
            A(f"""v_lshlrev_b32 v22, 16, v{xr}
                  v_and_b32 v23, v8, v{xr}
                  v_lshlrev_b32 v24, 16, v{xr+1}
                  v_and_b32 v25, v8, v{xr+1}
                  v_pk_fma_f32 {v(a,2)}, v[22:23], v[48:49], {v(a,2)} op_sel:[0,{tb},0] op_sel_hi:[1,{tb},1]
                  v_pk_fma_f32 {v(a+2,2)}, v[24:25], v[48:49], {v(a+2,2)} op_sel:[0,{tb},0] op_sel_hi:[1,{tb},1]""")
    A("s_waitcnt vmcnt(0)")
    flag_store(A, 31)
    fstamp(A, "exflag")
    ld = lambda: A(f"buffer_load_dword v20, off, {WS}, s32 sc1")
    ld()
    A(f"""v_lshlrev_b32 v5, 11, v3
          v_and_b32 v6, 1, v4
          v_lshl_add_u32 v5, v6, 5, v5
          v_lshrrev_b32 v6, 1, v4
          v_lshl_add_u32 v5, v6, 4, v5
          s_lshl_b32 s41, s16, 7
          s_add_u32 s41, s41, s42
          s_lshl_b32 s41, s41, 11
          s_and_b32 s3, s17, 7
          s_lshl_b32 s3, s3, 8
          s_add_u32 s41, s41, s3
          s_lshl_b32 s3, s20, 7
          s_add_u32 s41, s41, s3
          s_add_u32 s43, s41, {16*2048}
          s_waitcnt vmcnt(0)""")
    spin_until(A, lambda: A("v_cmp_ne_u32 vcc, s12, v20"), ld, "ex")
    for i in range(4): A(f"buffer_load_dwordx4 {v(64+4*i,4)}, v9, {WS}, s30 offen offset:{i*1024} sc1")
    fstamp(A, "exok")
    for i in range(4):
        tb, pr = i >> 1, i & 1
        a0 = ACC + 8 * i; o = 96 + 4 * i
        A("s_waitcnt vmcnt(3)")
        for k in range(4):
            A(f"""v_lshlrev_b32 v22, 16, v{64+4*i+k}
                  v_and_b32 v23, v8, v{64+4*i+k}
                  v_pk_add_f32 {v(a0+2*k,2)}, {v(a0+2*k,2)}, v[22:23]""")
        pack(o, a0, a0 + 4)
        A(f"""s_nop 1
              v_permlane16_swap_b32 v{o}, v{o+2}
              v_permlane16_swap_b32 v{o+1}, v{o+3}
              buffer_store_dwordx4 {v(o,4)}, v5, s[24:27], s{41 if tb == 0 else 43} offen offset:{pr*64}{os.environ.get("OUTF", "")}""")
    fstamp(A, "stored")
    if PROF: A("s_waitcnt vmcnt(0)")
    fstamp(A, "drained")
    fstamp_flush(A, 0)
    A("s_endpgm")
    A("C_slow:")
    A(f"{Lslow}:")
    A("s_waitcnt lgkmcnt(0)")
    for i in range(0, 40, 2): A(f"v_mov_b64 {v(128+i,2)}, 0")
    A(f"""v_mov_b32 v14, 0xff7fffff
          v_mov_b32 v15, 0xff7fffff
          s_lshl_b32 s41, s17, 19
          s_lshl_b32 s3, s20, 14
          s_add_u32 s41, s41, s3
          s_add_u32 s41, s41, {WS_KV}
          s_mov_b32 s40, 64""")
    Ls = A.label("sloop")
    A(f"{Ls}:")
    for b in range(2): A(f"buffer_load_dwordx4 {v(KB(0,b),4)}, v{VL16}, {WS}, s41 offen offset:{b*1024} sc1")
    for b in range(2): A(f"buffer_load_dwordx4 {v(VB(0,b),4)}, v{VL16}, {WS}, s41 offen offset:{2048 + b*1024} sc1")
    A("s_waitcnt vmcnt(0)")
    for q in range(2):
        for it in qk(q): A(it.text)
    A("s_nop 15")
    for q in range(2):
        d = SB(q); m = 14 + q
        A(f"v_max3_f32 v6, v{d}, v{d+1}, v{m}")
        for i in range(2, 16, 2): A(f"v_max3_f32 v6, v{d+i}, v{d+i+1}, v6")
        A(f"""v_mov_b32 v5, v6
              s_nop 1
              v_permlane32_swap_b32 v5, v6
              s_nop 1
              v_max_f32 v6, v6, v5
              v_sub_f32 v5, v{m}, v6
              v_exp_f32 v5, v5
              v_mov_b32 v{m}, v6""")
        for i in range(16): A(f"v_sub_f32 v{d+i}, v{d+i}, v6")
        for i in range(16): A(f"v_exp_f32 v{d+i}, v{d+i}")
        for i in range(16): A(f"v_mul_f32 v{O(q)+i}, v{O(q)+i}, v5")
        for i in range(4): A(f"v_mul_f32 v{Lr(q)+i}, v{Lr(q)+i}, v5")
        A("s_nop 1")
        for it in pv(q, False): A(it.text)
    A(f"""s_nop 15
          s_sub_u32 s40, s40, 1
          s_and_b32 s3, s40, 3
          s_cmp_eq_u32 s3, 0
          s_cselect_b32 s3, 16384, 0
          s_add_u32 s41, s41, s3
          s_add_u32 s41, s41, 4096
          s_cmp_lg_u32 s40, 0
          s_cbranch_scc1 {Ls}
          s_branch {Lfin}""")
```

```python
from common import *
from k1 import job_stats as _js, job_gate as _jg
import k1
NAME = "gated_mix__softmax_full_mha__mixer_s_mlp__prompt_kernel"
P_X, P_WQKV, P_WO, P_BX, P_W1, P_W2, P_W3, P_W4, P_G, P_OUT, P_DBG, P_WS = [64 + 2*i for i in range(12)]
QSCALE = (DH ** -0.5) * 1.4426950408889634
S1 = 49152
L_MISC = 155648
L_ST = L_MISC
L_CS = L_ST + 2048
L_GT = L_CS + 1024
L_NON = L_GT + 512
L_JOB = L_NON + 64
LDS_BYTES = 163840
k1.L_JOB = L_JOB
KVS = 32768
L_W2W = 65536
L_W2X = 98304
L_XR = 131072
L_C3 = 147456
S3 = 45056; L3 = 20480
S4 = 32768
WOFF = int(os.environ.get("WOFF", "2"))
WS = "s[4:7]"
dppadd = lambda r, sh: f"v_add_f32_dpp v{r}, v{r}, v{r} row_ror:{sh} row_mask:0xf bank_mask:0xf"

def flag_store(A, soff_sreg, vtmp=1):
    A(f"""v_mov_b32 v{vtmp}, s12
          s_mov_b64 exec, 1
          buffer_store_dword v{vtmp}, off, {WS}, s{soff_sreg} sc1
          s_mov_b64 exec, -1""")

def gen(A):
    kernel_header(A, NAME)
    Lend = A.label("end"); Lcomp = A.label("comp")
    A(f"s_cmp_ge_u32 s2, 256")
    A(f"s_cbranch_scc1 {Lend}")
    if PROF:
        A("s_memrealtime s[92:93]"); A("s_memtime s[94:95]")
    A("s_load_dwordx16 s[64:79], s[0:1], 0")
    A("s_load_dwordx8 s[80:87], s[0:1], 64")
    A("""v_lshrrev_b32 v1, 6, v0
         v_and_b32 v2, 63, v0
         """ + ("s_lshr_b32 s14, s2, 5" if "badmap" in EXP else "s_and_b32 s14, s2, 7") + """
         v_readfirstlane_b32 s18, v1
         """ + ("s_and_b32 s15, s2, 31" if "badmap" in EXP else "s_lshr_b32 s15, s2, 3") + """
         s_and_b32 s16, s14, 1
         s_lshl_b32 s16, s16, 3
         s_and_b32 s3, s15, 7
         s_add_u32 s16, s16, s3
         s_lshr_b32 s17, s14, 1
         s_lshl_b32 s17, s17, 2
         s_lshr_b32 s3, s15, 3
         s_add_u32 s17, s17, s3""")
    A(f"""s_add_u32 s13, s17, {WOFF}
          s_and_b32 s13, s13, 15""")
    A("s_cmp_lt_u32 s18, 4")
    A(f"s_cbranch_scc1 {Lcomp}")
    helper(A)
    A(f"{Lend}:")
    A("s_endpgm")
    A("H_end:")
    A(f"{Lcomp}:")
    compute(A)
    return dict(name=NAME, grid=256, block=512, lds=LDS_BYTES, vgpr=256)

def helper(A):
    ROLE[0] = 1
    A("s_sub_u32 s18, s18, 4")
    if PROF: A("v_mov_b64 v[62:63], 0")
    A(f"""v_lshrrev_b32 v3, 3, v2
          v_and_b32 v4, 7, v2
          v_lshrrev_b32 v5, 1, v3
          v_xor_b32 v5, v5, v4
          s_lshl_b32 s3, s16, 7
          s_lshl_b32 s36, s18, 5
          s_add_u32 s3, s3, s36
          v_add_u32 v6, s3, v3
          v_lshlrev_b32 v6, 11, v6
          v_lshl_add_u32 v10, v5, 4, v6
          v_xor_b32 v11, 64, v10
          v_add_u32 v11, {8*2048 - 1024}, v11
          v_add_u32 v12, {16*2048 - 2048}, v10
          v_add_u32 v13, {16*2048 - 2048}, v11""")
    ra, rb = [int(x) for x in os.environ.get("ROT1", "2,0").split(",")]
    A(f"""s_lshl_b32 s3, s18, 11
          s_mov_b32 s30, {D*3*D*2}
          s_mov_b32 s32, 6144
          s_cmp_eq_u32 s18, 3
          s_cselect_b32 s30, {D*D*2}, s30
          s_cselect_b32 s32, 2048, s32
          s_cselect_b32 s33, 0, s3
          s_cselect_b32 s3, s13, s17
          s_mov_b32 s31, 0x20000
          s_lshl_b32 s3, s3, 7
          s_add_u32 s33, s33, s3
          s_lshl_b32 s34, s32, 4
          s_lshl_b32 s35, s32, 6
          s_lshl_b32 s37, s18, 12
          s_lshl_b32 s38, s18, 13
          s_add_u32 s38, s38, 16384
          s_mul_i32 s52, s16, {ra}
          s_mul_i32 s3, s17, {rb}
          s_add_u32 s52, s52, s3
          s_and_b32 s52, s52, 15""")
    A("""v_and_b32 v5, 2, v3
         v_xor_b32 v5, v5, v4
         v_mul_lo_u32 v6, v3, s32
         v_lshl_add_u32 v14, v5, 4, v6
         v_xor_b32 v5, 4, v5
         v_lshl_add_u32 v15, v5, 4, v6
         s_lshl_b32 s3, s32, 3
         s_sub_u32 s3, s3, 1024
         v_add_u32 v15, s3, v15""")
    A("s_waitcnt lgkmcnt(0)")
    srd(A, 24, P_X, P_X + 1, S * D * 2)
    A(f"""s_cmp_eq_u32 s18, 3
          s_cselect_b32 s28, s{P_W1}, s{P_WQKV}
          s_cselect_b32 s29, s{P_W1+1}, s{P_WQKV+1}
          s_and_b32 s29, s29, 0xffff""")
    def issue(slot, mid=None, A=A):
        A(f"s_add_u32 m0, s37, {slot}")
        A("s_lshl_b32 s39, s52, 7")
        for i in range(4):
            A(f"buffer_load_dwordx4 v{10+i}, s[24:27], s39 offen offset:{i*1024} lds")
        if mid: mid()
        A(f"s_add_u32 s45, s38, {slot}")
        A("s_mul_i32 s41, s52, s35")
        A("s_add_u32 s41, s41, s33")
        for i in range(4):
            A(f"s_add_u32 m0, s45, {i*2048}")
            if i: A("s_add_u32 s41, s41, s34")
            else: A("s_add_u32 s52, s52, 1")
            A(f"buffer_load_dwordx4 v14, s[28:31], s41 offen lds")
            A(f"buffer_load_dwordx4 v15, s[28:31], s41 offen offset:1024 lds")
        A("s_and_b32 s52, s52, 15")
    fstamp(A, "start")
    issue(0)
    def barP():
        A("s_waitcnt vmcnt(4)")
        A("s_barrier")
    issue(S1, barP)
    slot = lambda t: (t % 3) * S1
    def endit(n, lg=False):
        A(f"s_waitcnt vmcnt({n})" + (" lgkmcnt(0)" if lg else ""))
        A("s_barrier")
    issue(slot(2))
    A(f"""s_lshl_b32 s46, s16, 7
          s_lshl_b32 s3, s17, 3
          s_add_u32 s46, s46, s3
          s_lshl_b32 s3, s18, 1
          s_add_u32 s46, s46, s3
          s_lshl_b32 s46, s46, 11
          v_lshlrev_b32 v8, 4, v2
          v_lshlrev_b32 v5, 11, v3
          v_lshl_add_u32 v7, v4, 4, v5
          s_lshl_b32 s47, s16, 17
          s_lshl_b32 s3, s17, 7
          s_add_u32 s47, s47, s3
          s_lshl_b32 s3, s18, 15
          s_add_u32 s47, s47, s3
          s_add_u32 s42, s47, 16384
          v_mov_b32 v9, 0xffff0000
          v_lshrrev_b32 v4, 4, v2""")
    srd(A, 8, P_G, P_G + 1, D * 2)
    srd(A, 20, P_W1, P_W1 + 1, D * D * 2)
    endit(12)
    A("""buffer_load_dwordx4 v[64:67], v8, s[24:27], s46 offen
         buffer_load_dwordx4 v[68:71], v8, s[24:27], s46 offen offset:1024
         buffer_load_dwordx4 v[72:75], v8, s[24:27], s46 offen offset:2048
         buffer_load_dwordx4 v[76:79], v8, s[24:27], s46 offen offset:3072
         buffer_load_dwordx4 v[80:83], v8, s[8:11], 0 offen
         buffer_load_dwordx4 v[84:87], v8, s[8:11], 0 offen offset:1024
         buffer_load_dwordx4 v[88:91], v7, s[20:23], s47 offen
         buffer_load_dwordx4 v[92:95], v7, s[20:23], s42 offen""")
    issue(slot(3))
    endit(20)
    srd(A, 8, P_DBG, P_DBG + 1, 256)
    A("buffer_load_dword v19, off, s[8:11], 0 sc1")
    issue(slot(4))
    srd(A, 4, P_WS, P_WS + 1, WS_END)
    A(f"""s_lshl_b32 s19, s16, 4
          s_add_u32 s19, s19, s17
          s_lshl_b32 s21, s19, 7
          s_add_u32 s21, s21, {WS_ST1}
          s_mov_b32 s22, 8
          s_mov_b32 s23, {L_JOB}
          s_lshl_b32 s3, s19, 9
          s_add_u32 s3, s3, {WS_CS1}
          s_cmp_eq_u32 s18, 1
          s_cselect_b32 s21, s3, s21
          s_cselect_b32 s22, 32, s22
          s_cselect_b32 s23, {L_JOB + 256}, s23
          s_cselect_b32 s54, -1, 0
          s_cmp_ge_u32 s18, 2
          s_cselect_b32 s22, 0, s22
          v_and_b32 v5, 31, v2
          v_lshl_add_u32 v17, v5, 3, s23
          v_cmp_gt_u32 vcc, s22, v2
          v_mov_b32 v5, {OOB}
          s_nop 0
          v_cndmask_b32 v16, v5, v8, vcc""")
    endit(12)
    spin_until(A, lambda: A("v_cmp_eq_u32 vcc, 0, v19"), lambda: A("buffer_load_dword v19, off, s[8:11], 0 sc1"), "nonce")
    A("v_readfirstlane_b32 s12, v19")
    fstamp(A, "p1j2")
    J = Asm(); _js(J)
    n = len(J.lines); cuts = [0, n // 3, 2 * n // 3, n]
    for c in range(3):
        I = Asm(); issue(slot(5 + c), None, I)
        interleave(A, I.lines, J.lines[cuts[c]:cuts[c+1]])
        endit(12, c == 2)
    for i in range(4): A(f"ds_read_b64 {v(24+2*i,2)}, v17 offset:{i*256}")
    A("s_waitcnt lgkmcnt(0)")
    for i in range(2):
        A(f"""v_add_f32 v{26+i}, v{26+i}, v{28+i}
              v_add_f32 v{26+i}, v{26+i}, v{30+i}
              v_and_b32 v{26+i}, s54, v{26+i}
              v_add_f32 v{20+2*i}, v{24+i}, v{26+i}
              v_mov_b32 v{21+2*i}, s12""")
    issue(slot(8))
    A(f"buffer_store_dwordx4 v[20:23], v16, {WS}, s21 offen sc1")
    endit(13)
    J = Asm(); _jg(J)
    J(f"""s_lshr_b32 s46, s46, 9
          s_add_u32 s46, s46, {WS_G}
          v_and_b32 v5, 31, v2
          v_cmp_eq_u32 vcc, 0, v5
          v_lshrrev_b32 v30, 3, v2
          v_mov_b32 v6, {OOB}
          v_cndmask_b32 v30, v6, v30, vcc
          v_lshlrev_b32 v16, 4, v5
          s_lshl_b32 s21, s16, 11
          s_lshl_b32 s3, s18, 9
          s_add_u32 s21, s21, s3
          s_add_u32 s21, s21, {WS_ST1}
          v_lshrrev_b32 v7, 3, v2
          v_lshlrev_b32 v7, 14, v7
          v_and_b32 v6, 7, v2
          v_lshl_add_u32 v17, v6, 4, v7
          s_lshl_b32 s22, s13, 9
          s_lshl_b32 s3, s18, 7
          s_add_u32 s22, s22, s3
          s_add_u32 s22, s22, {WS_CS1}
          s_add_u32 s23, s22, 8192""")
    n = len(J.lines)
    for c in range(6):
        I = Asm(); issue(slot(9 + c), None, I)
        interleave(A, I.lines, J.lines[n * c // 6: n * (c + 1) // 6])
        k = 0
        if c == 2: k = code_touch(A, "H_p1j14", "H_end", 1)
        if c == 4: k = code_touch(A, "C_p1end", "C_slow", 1)
        endit(12 + k)
    def payload():
        A(f"""buffer_load_dwordx4 v[20:23], v16, {WS}, s21 offen sc1
              buffer_load_dwordx4 v[32:35], v17, {WS}, s22 offen sc1
              buffer_load_dwordx4 v[36:39], v17, {WS}, s23 offen sc1""")
    payload()
    issue(slot(15))
    A(f"buffer_store_dword v28, v30, {WS}, s46 offen sc1")
    endit(13)
    def chk():
        A("""v_xor_b32 v24, s12, v21
             v_xor_b32 v25, s12, v23
             v_xor_b32 v26, s12, v33
             v_xor_b32 v27, s12, v35
             v_or3_b32 v24, v24, v25, v26
             v_xor_b32 v25, s12, v37
             v_xor_b32 v26, s12, v39
             v_or3_b32 v24, v24, v25, v26
             v_or_b32 v24, v24, v27
             v_cmp_ne_u32 vcc, 0, v24""")
    A("H_p1j14:")
    spin_until(A, chk, payload, "pay")
    srd(A, 28, P_W2, P_W2 + 1, D * D * 2)
    A(f"""v_and_b32 v5, 15, v2
          v_lshlrev_b32 v5, 7, v5
          s_lshl_b32 s3, s2, 2
          s_add_u32 s3, s3, s18
          s_lshl_b32 s3, s3, 11
          buffer_load_dword v60, v5, s[28:31], s3 offen""")
    A(f"""v_add_f32 v32, v32, v36
          v_add_f32 v33, v34, v38
          v_mov_b32 v21, v22
          s_lshl_b32 s3, s18, 9
          s_add_u32 s3, s3, {L_ST}
          v_permlane32_swap_b32 v32, v33
          v_add_u32 v16, s3, v16
          v_add_f32 v32, v32, v33
          v_mov_b32 v33, v32""")
    ln_consts(A, 20, 24)
    A(f"""v_permlane16_swap_b32 v32, v33
          ds_write_b128 v16, v[20:23]
          v_add_f32 v32, v32, v33
          s_lshl_b32 s3, s18, 6
          s_add_u32 s3, s3, {L_CS}
          {dppadd(32, 8)}
          v_lshl_add_u32 v6, v6, 3, s3
          v_lshrrev_b32 v7, 5, v2
          v_lshl_add_u32 v6, v7, 2, v6
          ds_write_b32 v6, v32
          v_mov_b32 v5, {L_NON}
          ds_write_b32 v5, v19""")
    endit(1, True)
    A(f"""s_lshl_b32 s33, s17, 19
          s_lshl_b32 s37, s18, 13
          s_add_u32 s33, s33, s37
          s_add_u32 s33, s33, {WS_KV}
          s_lshl_b32 s34, s17, 11
          s_lshl_b32 s3, s18, 2
          s_add_u32 s34, s34, s3
          s_add_u32 s34, s34, {F_KV}
          s_lshr_b32 s21, s18, 1
          s_and_b32 s22, s18, 1""")
    A("""v_and_b32 v3, 15, v2
         v_add_u32 v5, s16, v3
         v_and_b32 v5, 15, v5
         v_lshlrev_b32 v17, 7, v5
         s_mov_b32 s35, 1
         s_mov_b32 s36, 0""")
    V = VM(A)
    kvpoll = f"buffer_load_dword v20, v17, {WS}, s34 offen sc1"
    def kv_ready():
        A("v_cmp_eq_u32 vcc, s12, v20")
        A("s_and_b32 s36, vcc_lo, 0xffff")
    def kv_issue(slot):
        Lr_ = A.label("kvr"); Lok = A.label("kvok")
        A(f"""s_andn2_b32 s3, s36, s35
              s_cbranch_scc1 {Lok}
              s_mov_b32 s62, 0x8000""")
        A(f"{Lr_}:")
        A(kvpoll)
        A("s_waitcnt vmcnt(0)")
        kv_ready()
        A(f"""s_andn2_b32 s3, s36, s35
              s_cbranch_scc1 {Lok}
              s_sleep 2
              s_sub_u32 s62, s62, 1
              s_cmp_lg_u32 s62, 0
              s_cbranch_scc1 {Lr_}
              s_andn2_b32 s3, 0xffff, s35""")
        A(f"{Lok}:")
        A(f"""s_ff1_i32_b32 s3, s3
              s_bitset1_b32 s35, s3
              s_add_u32 s3, s3, s16
              s_and_b32 s3, s3, 15
              s_add_u32 m0, s37, {slot}
              s_lshl_b32 s41, s3, 15
              s_add_u32 s41, s41, s33""")
        for i in range(8):
            if i == 4:
                A("s_add_u32 m0, m0, 4096"); A("s_add_u32 s41, s41, 4096")
            A(f"buffer_load_dwordx4 v8, {WS}, s41 offen offset:{(i&3)*1024} sc1 lds")
        V.note(8, "kv")
    ACC, XB, WB, C3B = 64, 128, 192, 224
    acc = lambda tb, nb: ACC + 4 * (tb * 4 + nb)
    A(f"""v_cmp_le_u32 vcc, 28, v2
          s_lshl_b32 s3, s16, 6
          s_lshl_b32 s41, s18, 4
          v_cndmask_b32 v5, 0, 1, vcc
          v_mul_u32_u24 v6, 28, v5
          v_sub_u32 v22, v2, v6
          v_mul_u32_u24 v6, 7168, v5
          v_lshl_add_u32 v30, v22, 4, v6
          v_cmp_le_u32 vcc, 56, v2
          v_mov_b32 v6, {OOB}
          s_add_u32 s3, s3, s41
          v_cndmask_b32 v30, v30, v6, vcc
          s_mul_i32 s47, s3, 7168
          s_mul_i32 s3, s17, 448
          s_add_u32 s47, s47, s3
          v_lshlrev_b32 v22, 5, v22
          s_lshl_b32 s3, s18, 1
          v_add_u32 v5, s3, v5
          v_mul_u32_u24 v5, 896, v5
          v_add_u32 v22, v22, v5
          v_add_u32 v22, {L_C3}, v22""")
    A(f"""v_lshrrev_b32 v5, 3, v2
          v_and_b32 v6, 7, v2
          v_and_b32 v7, 6, v5
          v_xor_b32 v7, v7, v6
          v_lshlrev_b32 v5, 11, v5
          v_lshl_add_u32 v24, v7, 4, v5
          s_lshl_b32 s3, s17, 7
          v_add_u32 v24, s3, v24
          v_add_u32 v25, {8*2048 - 1024}, v24
          v_add_u32 v26, {16*2048 - 2048}, v24
          v_add_u32 v27, {24*2048 - 3072}, v24
          v_lshrrev_b32 v5, 2, v3
          v_and_b32 v6, 3, v3
          v_lshl_add_u32 v7, v4, 2, v5
          v_bfe_u32 v5, v7, 1, 2
          v_lshlrev_b32 v7, 7, v7
          v_lshl_add_u32 v7, v6, 3, v7
          v_lshl_add_u32 v7, v5, 5, v7
          s_lshl_b32 s46, s18, 12
          s_add_u32 s38, s46, {L_W2W}
          s_lshl_b32 s3, s21, 12
          s_add_u32 s3, s3, {L_W2W}
          v_add_u32 v32, s3, v7
          v_xor_b32 v33, 32, v32
          v_xor_b32 v34, 64, v32
          v_xor_b32 v35, 96, v32
          s_lshl_b32 s43, s16, 18
          s_lshl_b32 s3, s21, 13
          s_add_u32 s43, s43, s3
          s_lshl_b32 s3, s22, 12
          s_add_u32 s43, s43, s3
          s_add_u32 s43, s43, {WS_H1}
          s_lshl_b32 s44, s18, 16
          s_lshl_b32 s3, s21, 11
          v_add_u32 v28, s3, v8
          v_xor_b32 v29, 2048, v28""")
    A("s_barrier")
    for i in range(0, 64, 2): A(f"v_mov_b64 {v(ACC+i,2)}, 0")
    for i in range(40, 48, 2): A(f"v_mov_b64 {v(i,2)}, 0")
    A(f"""v_lshlrev_b32 v21, 2, v2
          s_add_u32 s3, s16, 15
          s_and_b32 s3, s3, 15
          s_lshl_b32 s48, s3, 8
          s_add_u32 s48, s48, {F_H1}
          s_lshl_b32 s49, s16, 8
          s_add_u32 s49, s49, {F_H1}
          s_add_u32 s3, s16, 1
          s_and_b32 s3, s3, 15
          s_lshl_b32 s50, s3, 8
          s_add_u32 s50, s50, {F_H1}
          v_and_b32 v5, 31, v2
          v_lshlrev_b32 v23, 2, v5
          v_and_b32 v5, 7, v2
          v_lshlrev_b32 v31, 7, v5
          s_lshl_b32 s3, s2, 2
          s_add_u32 s3, s3, s18
          s_lshl_b32 s51, s3, 10""")
    srd(A, 28, P_W2, P_W2 + 1, D * D * 2)
    srd(A, 8, P_W3, P_W3 + 1, D * F * 2)
    srd(A, 52, P_W4, P_W4 + 1, F * D * 2)
    srd(A, 56, P_WO, P_WO + 1, D * D * 2)
    A(f"s_setprio {os.environ.get('HPRIO', '2')}")
    A("s_barrier")
    fstamp(A, "T")
    kv_issue(KVS)
    fstamp(A, "j0iss")
    V.op(kvpoll, "poll")
    V.wait("kv")
    fstamp(A, "j0land")
    A("s_barrier")
    fstamp(A, "B0")
    side = [0]
    def side_loads(Z):
        k = side[0]; side[0] += 1
        if k < 8:
            Z(f"buffer_load_dwordx4 {v(C3B+4*(k&1),4)}, v30, s[8:11], s47 offen")
            Z(f"s_add_u32 s47, s47, {2*7168}")
            V.note(1, "side")
        if k < 9:
            if k == 7: Z(f"s_sub_u32 s51, s51, {7 << 20}")
            Z(f"buffer_load_dword v60, v31, {'s[52:55]' if k < 7 else 's[56:59]'}, s51 offen")
            Z(f"s_add_u32 s51, s51, {1 << 20}")
            V.note(1, "side")
    def cs3_acc(k):
        for q in range(4):
            r = C3B + 4*(k&1) + q
            A(f"""v_lshlrev_b32 v5, 16, v{r}
                  v_and_b32 v6, v9, v{r}
                  v_add_f32 v{40+2*q}, v{40+2*q}, v5
                  v_add_f32 v{41+2*q}, v{41+2*q}, v6""")
    V.wait("poll"); kv_ready()
    kv_issue(0)
    V.op(kvpoll, "poll")
    V.wait("kv")
    fstamp(A, "j1land")
    A("s_barrier")
    fstamp(A, "B1")
    V.wait("poll"); kv_ready()
    kv_issue(KVS)
    V.op(kvpoll, "poll")
    side_loads(A)
    V.wait("kv")
    fstamp(A, "j2land")
    A("s_barrier")
    fstamp(A, "B2")
    V.wait("poll"); kv_ready()
    A("H_j3:")
    def ldh1():
        for i in range(3): A(f"buffer_load_dword v{18+i}, v21, {WS}, s{48+i} offen sc1")
    def chkh1():
        A("""v_xor_b32 v18, s12, v18
             v_xor_b32 v19, s12, v19
             v_xor_b32 v20, s12, v20
             v_or3_b32 v18, v18, v19, v20
             v_cmp_ne_u32 vcc, 0, v18""")
    def w2_w(Z, b):
        Z(f"s_add_u32 m0, s38, {b*16384}")
        Z("s_nop 0")
        for i in range(4): Z(f"buffer_load_dwordx4 v{24+i}, s[28:31], s44 offen offset:{i*1024} lds")
        Z(f"s_add_u32 s44, s44, {128*2048}")
        V.note(4, "w")
    def w2_x(Z, b):
        for st in range(2):
            for tb in range(4):
                Z(f"buffer_load_dwordx4 {v(XB+32*b+16*st+4*tb,4)}, v{28+(tb>>1)}, {WS}, s43 offen offset:{(tb&1)*1024} sc1")
            Z("s_add_u32 s43, s43, 16384")
        V.note(8, "x")
    def w2_loads(Z, b):
        w2_w(Z, b); w2_x(Z, b)
    kv_issue(0)
    w2_w(A, 0)
    ldh1(); V.note(3, "poll"); V.wait("poll")
    spin_until(A, chkh1, ldh1, "h1")
    fstamp(A, "h1ok")
    def w2_reads(b):
        for st in range(2):
            for nb in range(4):
                for e in range(2): A(f"ds_read_b64_tr_b16 {v(WB+16*st+4*nb+2*e,2)}, v{32+nb} offset:{b*16384 + st*8192 + e*2048}")
    def w2_mfma(Z, b):
        for st in range(2):
            for nb in range(4):
                for tb in range(4):
                    Z(f"v_mfma_f32_16x16x32_bf16 {v(acc(tb,nb),4)}, {v(WB+16*st+4*nb,4)}, {v(XB+32*b+16*st+4*tb,4)}, {v(acc(tb,nb),4)}")
    V.op(f"""s_lshl_b32 s41, s16, 9
          s_lshl_b32 s3, s18, 7
          s_add_u32 s41, s41, s3
          s_add_u32 s41, s41, {WS_G}
          buffer_load_dword v36, v23, {WS}, s41 offen sc1""", "g")
    w2_x(A, 0)
    side_loads(A)
    cs3_acc(0)
    V.wait("kv", "w")
    A("s_barrier")
    fstamp(A, "B3")
    for j in range(4, 11):
        b = (j - 4) & 1
        w2_reads(b)
        kv_issue(KVS if (j + 1) & 1 else 0)
        V.wait("x", lg=True)
        I = Asm(); M = Asm()
        w2_loads(I, 1 - b); side_loads(I)
        w2_mfma(M, b)
        interleave(A, I.lines, M.lines)
        V.wait("kv", "w")
        cs3_acc(j - 3)
        if j in (5, 6): fstamp(A, f"j{j}done")
        A("s_barrier")
        if j in (4, 5, 6): fstamp(A, f"B{j}")
    w2_reads(1)
    kv_issue(0)
    A(f"""s_add_u32 m0, s46, {L_XR}
          s_lshl_b32 s41, s17, 7""")
    for i in range(4): V.op(f"buffer_load_dwordx4 v{10+i}, s[24:27], s41 offen offset:{i*1024} lds", "xr")
    V.wait("x", lg=True)
    w2_mfma(A, 1)
    A(f"""s_mov_b32 exec_hi, 0x00ffffff
          ds_write_b128 v22, v[40:43]
          ds_write_b128 v22, v[44:47] offset:16
          s_mov_b32 exec_hi, -1
          s_lshl_b32 s3, s18, 7
          s_add_u32 s3, s3, {L_GT}
          v_add_u32 v5, s3, v23
          ds_write_b32 v5, v36
          s_add_u32 s3, s37, {L_W2X}
          v_add_u32 v18, s3, v8
          v_xor_b32 v19, 16384, v18
          s_lshl_b32 s3, s18, 6
          v_add_u32 v5, s3, v2
          v_lshlrev_b32 v31, 2, v5
          v_add_u32 v30, {L_C3}, v31""")
    for i in range(8): A(f"ds_write_b128 v18, {v(ACC+32+4*i,4)} offset:{i*1024}")
    A(f"""s_lshl_b32 s3, s22, 6
          s_lshl_b32 s42, s21, 5
          s_add_u32 s42, s42, s3
          v_add_u32 v5, s42, v3
          v_lshlrev_b32 v5, 7, v5
          v_lshrrev_b32 v6, 1, v3
          v_lshrrev_b32 v7, 1, v4
          v_xor_b32 v6, v6, v7
          v_lshl_add_u32 v5, v6, 4, v5
          v_and_b32 v7, 1, v4
          v_lshl_add_u32 v5, v7, 3, v5
          v_add_u32 v24, {L_XR}, v5
          v_xor_b32 v25, 32, v24
          v_xor_b32 v26, 64, v24
          v_xor_b32 v27, 96, v24""")
    endit(0, True)
    fstamp(A, "B11")
    for i in range(8): A(f"ds_read_b128 {v(96+4*i,4)}, v19 offset:{i*1024}")
    for tb in range(2):
        for nb in range(4): A(f"ds_read_b64 {v(128+8*tb+2*nb,2)}, v{24+nb} offset:{tb*2048}")
    kv_issue(KVS)
    A("s_waitcnt lgkmcnt(0)")
    for i in range(8): A(f"ds_read_b32 v{160+i}, v30 offset:{i*896}")
    A(f"""s_lshl_b32 s45, s16, 18
          s_lshl_b32 s3, s17, 14
          s_add_u32 s45, s45, s3
          s_lshl_b32 s3, s42, 6
          s_add_u32 s45, s45, s3
          s_add_u32 s45, s45, {WS_X1}
          s_add_u32 s47, s45, 8192""")
    for tb in range(2):
        sm, sq = 40 + 2*tb, 41 + 2*tb
        for nb in range(4):
            a = ACC + 4 * (tb * 4 + nb); xr = 128 + 8 * tb + 2 * nb
            for r in range(4): A(f"v_add_f32 v{a+r}, v{a+r}, v{a+r+32}")
            A(f"""v_lshlrev_b32 v5, 16, v{xr}
                  v_and_b32 v6, v9, v{xr}
                  v_lshlrev_b32 v7, 16, v{xr+1}
                  v_and_b32 v18, v9, v{xr+1}
                  v_add_f32 v{a}, v{a}, v5
                  v_add_f32 v{a+1}, v{a+1}, v6
                  v_add_f32 v{a+2}, v{a+2}, v7
                  v_add_f32 v{a+3}, v{a+3}, v18
                  v_cvt_pk_bf16_f32 v{xr}, v{a}, v{a+1}
                  v_cvt_pk_bf16_f32 v{xr+1}, v{a+2}, v{a+3}""")
        V.op(f"buffer_store_dwordx4 {v(128+8*tb,4)}, v8, {WS}, s45 offen offset:{tb*1024} sc1", "st")
        V.op(f"buffer_store_dwordx4 {v(132+8*tb,4)}, v8, {WS}, s47 offen offset:{tb*1024} sc1", "st")
        for i in range(8):
            r = 128 + 8*tb + i
            A(f"""v_lshlrev_b32 v5, 16, v{r}
                  v_and_b32 v6, v9, v{r}""")
            if i == 0:
                A(f"v_add_f32 v{sm}, v5, v6"); A(f"v_mul_f32 v{sq}, v5, v5")
            else:
                A(f"""v_add_f32 v{sm}, v{sm}, v5
                      v_fmac_f32 v{sq}, v5, v5
                      v_add_f32 v{sm}, v{sm}, v6""")
            A(f"v_fmac_f32 v{sq}, v6, v6")
    V.op(f"""s_lshl_b32 s41, s19, 10
          v_permlane32_swap_b32 v40, v41
          v_permlane32_swap_b32 v42, v43
          s_lshl_b32 s3, s42, 3
          v_add_f32 v40, v40, v41
          v_add_f32 v42, v42, v43
          s_add_u32 s41, s41, s3
          s_add_u32 s41, s41, {WS_ST}
          v_permlane16_swap_b32 v40, v42
          s_nop 0
          v_add_f32 v40, v40, v42
          buffer_store_dword v40, v21, {WS}, s41 offen sc1""", "st")
    V.wait("kv", lg=True)
    A("s_barrier")
    kv_issue(0)
    A(f"""s_lshl_b32 s45, s19, 4
          s_lshl_b32 s3, s18, 2
          s_add_u32 s45, s45, s3
          s_add_u32 s45, s45, {F_X1}""")
    V.wait("st")
    flag_store(A, 45); V.note(1, "st")
    fstamp(A, "x1flag")
    for i in range(1, 8): A(f"v_add_f32 v160, v160, v{160+i}")
    V.op(f"""s_mul_i32 s41, s16, {F*8}
          s_mul_i32 s3, s17, 1792
          s_add_u32 s41, s41, s3
          s_add_u32 s41, s41, {WS_CS3}
          v_cmp_gt_u32 vcc, 896, v31
          v_lshlrev_b32 v31, 1, v31
          v_mov_b32 v5, {OOB}
          v_mov_b32 v161, s12
          v_cndmask_b32 v5, v5, v31, vcc
          buffer_store_dwordx2 v[160:161], v5, {WS}, s41 offen sc1""", "st")
    for i in range(7):
        A(f"""v_add_u32 v5, {i*64}, v2
              v_mul_u32_u24 v6, 2341, v5
              v_lshrrev_b32 v6, 16, v6
              v_mul_u32_u24 v7, 28, v6
              v_sub_u32 v7, v5, v7
              v_bfe_u32 v5, v6, 2, 1
              v_lshlrev_b32 v5, 1, v5
              v_xor_b32 v7, v7, v5
              v_mul_u32_u24 v6, 7168, v6
              v_lshl_add_u32 v{10+i}, v7, 4, v6""")
        if i & 3: A(f"v_subrev_u32 v{10+i}, {(i&3)*1024}, v{10+i}")
    srd(A, 28, P_W3, P_W3 + 1, D * F * 2)
    A(f"""s_lshl_b32 s43, s16, 18
          s_add_u32 s43, s43, s46
          s_add_u32 s43, s43, {WS_X1}
          s_mul_i32 s44, s18, {16*7168}
          s_mul_i32 s3, s17, 448
          s_add_u32 s44, s44, s3
          s_mul_i32 s38, s18, 7168
          s_add_u32 s38, s38, 16384
          s_lshl_b32 s48, s16, 8
          s_add_u32 s48, s48, {F_X1}""")
    V.wait("kv")
    A("s_barrier")
    r3a, r3b = [int(x) for x in os.environ.get("ROT3", "2,0").split(",")]
    A(f"""s_mul_i32 s50, s16, {r3a}
          s_mul_i32 s3, s17, {r3b}
          s_add_u32 s50, s50, s3
          s_and_b32 s50, s50, 15
          s_mov_b32 s51, s50""")
    def p3_x(slot):
        A(f"s_add_u32 m0, s46, {slot}")
        A("s_lshl_b32 s41, s50, 14")
        A("s_add_u32 s41, s41, s43")
        for i in range(4): A(f"buffer_load_dwordx4 v8, {WS}, s41 offen offset:{i*1024} sc1 lds")
        A("s_add_u32 s50, s50, 1"); A("s_and_b32 s50, s50, 15")
    def p3_w(slot):
        A(f"s_add_u32 m0, s38, {slot}")
        A(f"s_mul_i32 s41, s51, {64*7168}")
        A("s_add_u32 s41, s41, s44")
        for i in range(7):
            if i == 4:
                A("s_add_u32 m0, m0, 4096"); A("s_add_u32 s51, s51, 1")
            A(f"buffer_load_dwordx4 v{10+i}, s[28:31], s41 offen offset:{(i&3)*1024} lds")
        A("s_and_b32 s51, s51, 15")
    def p3_issue(slot):
        p3_x(slot); p3_w(slot)
    kv_issue(KVS)
    p3_w(L3 + S3)
    k = code_touch(A, "C_attend", "C_p3end", 1)
    endit(7 + k)
    ld = lambda: A(f"buffer_load_dword v20, v21, {WS}, s48 offen sc1")
    ld()
    p3_w(L3 + 2 * S3)
    A("s_waitcnt vmcnt(7)")
    spin_until(A, lambda: A("v_cmp_ne_u32 vcc, s12, v20"), ld, "x1")
    fstamp(A, "x1ok")
    p3_x(L3 + S3); p3_x(L3 + 2 * S3)
    A("s_barrier")
    A(f"""s_lshl_b32 s41, s16, 14
          s_lshl_b32 s3, s18, 8
          s_add_u32 s41, s41, s3
          s_add_u32 s41, s41, {WS_ST}""")
    for i in range(16):
        A(f"buffer_load_dword v{64+i}, v21, {WS}, s41 offen offset:{(i&3)*1024} sc1")
        if i & 3 == 3: A("s_add_u32 s41, s41, 4096")
    A(f"""s_lshl_b32 s3, s18, 6
          v_add_u32 v5, s3, v2
          v_min_u32 v5, 223, v5
          v_lshlrev_b32 v22, 3, v5
          s_mul_i32 s49, s17, 1792
          s_add_u32 s49, s49, {WS_CS3}""")
    def ldcs():
        A("s_mov_b32 s41, s49")
        for i in range(16):
            A(f"buffer_load_dwordx2 {v(96+2*i,2)}, v22, {WS}, s41 offen sc1")
            if i < 15: A(f"s_add_u32 s41, s41, {F*8}")
    ldcs()
    endit(36)
    p3_issue(L3)
    endit(11)
    p3_issue(L3 + S3)
    def chkcs():
        A("v_xor_b32 v5, s12, v97")
        for i in range(1, 16):
            A(f"v_xor_b32 v6, s12, v{97+2*i}"); A("v_or_b32 v5, v5, v6")
        A("v_cmp_ne_u32 vcc, 0, v5")
    spin_until(A, chkcs, ldcs, "cs3")
    for i in range(1, 16): A(f"v_add_f32 v64, v64, v{64+i}")
    for i in range(1, 16): A(f"v_add_f32 v96, v96, v{96+2*i}")
    A(f"""v_mul_f32 v64, {hexf(1.0/1024)}, v64
          v_lshrrev_b32 v22, 1, v22
          v_mov_b32 v65, v64
          v_add_u32 v22, {L_CS}, v22
          v_sub_f32 v37, 1.0, v36
          v_permlane32_swap_b32 v64, v65
          ds_write_b32 v22, v96
          v_cvt_pk_bf16_f32 v37, v37, v37
          v_and_b32 v37, v9, v37
          v_max_f32 v37, {hexf(2.0**-60)}, v37""")
    ln_consts(A, 64, 5, 37)
    A(f"""s_lshl_b32 s3, s18, 9
          s_add_u32 s3, s3, {L_ST}
          v_lshl_add_u32 v5, v23, 2, s3
          ds_write_b128 v5, v[64:67]""")
    endit(11, True)
    A(f"s_mov_b32 s45, {L3 + 2*S3}")
    A("s_mov_b32 s40, 12")
    L = A.label("p3loop")
    A(f"{L}:")
    p3_issue("s45")
    A(f"""s_add_u32 s45, s45, {S3}
          s_cmp_eq_u32 s45, {L3 + 3*S3}
          s_cselect_b32 s45, {L3}, s45
          s_waitcnt vmcnt(11)
          s_barrier
          s_sub_u32 s40, s40, 1
          s_cmp_lg_u32 s40, 0
          s_cbranch_scc1 {L}""")
    A(f"""s_lshl_b32 s48, s16, 8
          s_add_u32 s48, s48, {F_O}""")
    ld()
    A(f"""v_lshrrev_b32 v5, 4, v2
          v_and_b32 v6, 15, v2
          v_lshlrev_b32 v7, 1, v5
          v_xor_b32 v7, v7, v6
          s_lshl_b32 s3, s18, 4
          v_add_u32 v5, s3, v5
          v_lshlrev_b32 v5, 11, v5
          v_lshl_add_u32 v11, v7, 4, v5
          s_and_b32 s3, s17, 7
          s_lshl_b32 s3, s3, 8
          v_add_u32 v11, s3, v11
          v_xor_b32 v12, 128, v11
          v_add_u32 v12, {4*2048 - 1024}, v12
          v_add_u32 v13, {8*2048 - 2048}, v11
          v_add_u32 v14, {8*2048 - 2048}, v12
          s_lshr_b32 s21, s17, 3
          s_mul_i32 s33, s16, {HO_PANEL}
          s_add_u32 s33, s33, s46
          s_add_u32 s33, s33, {WS_HO}
          s_lshl_b32 s3, s21, 17
          s_add_u32 s43, s33, s3
          s_add_u32 s43, s43, {112*8192}
          s_lshl_b32 s44, s21, 20
          s_add_u32 s38, s46, 16384""")
    srd(A, 28, P_WO, P_WO + 1, D * D * 2)
    k = code_touch(A, "C_p3end", "C_p4end", 1)
    endit(k)
    spin_until(A, lambda: A("v_cmp_ne_u32 vcc, s12, v20"), ld, "o")
    A("s_barrier")
    fstamp(A, "p3B15")
    def p4_issue(slot):
        A(f"s_add_u32 m0, s46, {slot}")
        A("s_nop 0")
        for i in range(4): A(f"buffer_load_dwordx4 v8, {WS}, s43 offen offset:{i*1024} sc1 lds")
        A(f"s_add_u32 m0, s38, {slot}")
        A("s_add_u32 s43, s43, 16384")
        for i in range(4): A(f"buffer_load_dwordx4 v{11+i}, s[28:31], s44 offen offset:{i*1024} lds")
        A(f"s_add_u32 s44, s44, {64*2048}")
    for j in range(3): p4_issue(j * S4)
    A(f"""s_lshl_b32 s48, s16, 8
          s_lshl_b32 s3, s21, 7
          s_add_u32 s48, s48, s3
          s_add_u32 s48, s48, {F_H2}
          v_and_b32 v21, 31, v2
          v_lshlrev_b32 v21, 2, v21""")
    endit(16)
    def p4_loop(n, name):
        L = A.label(name)
        A(f"s_mov_b32 s40, {n}")
        A(f"{L}:")
        p4_issue("s45")
        A(f"""s_add_u32 s45, s45, {S4}
              s_and_b32 s45, s45, {4*S4 - 1}
              s_waitcnt vmcnt(16)
              s_barrier
              s_sub_u32 s40, s40, 1
              s_cmp_lg_u32 s40, 0
              s_cbranch_scc1 {L}""")
    A(f"s_mov_b32 s45, {3*S4}")
    p4_loop(5, "p4a")
    fstamp(A, "p4j5")
    ld()
    srd(A, 28, P_W4, P_W4 + 1, F * D * 2)
    A(f"""s_mul_i32 s3, s21, {56*8192}
          s_add_u32 s43, s33, s3
          s_mul_i32 s44, s21, {1792*2048}
          s_waitcnt vmcnt(0)""")
    Lfast = A.label("h2fast"); Lgo = A.label("h2go")
    A("v_cmp_ne_u32 vcc, s12, v20")
    A(f"s_cbranch_vccz {Lfast}")
    A("s_barrier")
    A("s_barrier")
    ld(); A("s_waitcnt vmcnt(0)")
    spin_until(A, lambda: A("v_cmp_ne_u32 vcc, s12, v20"), ld, "h2")
    for k in range(3):
        p4_issue(k * S4)
    A(f"""s_mov_b32 s45, {3*S4}
          s_waitcnt vmcnt(16)
          s_barrier
          s_mov_b32 s41, 25
          s_branch {Lgo}""")
    A(f"{Lfast}:")
    A("s_mov_b32 s41, 28")
    A(f"{Lgo}:")
    fstamp(A, "h2ok")
    p4_loop("s41", "p4b")
    k = code_touch(A, "C_p4end", "C_slow", 1)
    endit(8 + k); endit(k)
    A("s_barrier")
    fstamp(A, "end")
    fstamp_flush(A, 1)

def compute(A):
    ROLE[0] = 0
    ACC, XB0, WB0 = 128, 64, 96
    acc = lambda tb, nb: ACC + 4 * (tb * 8 + nb)
    XB = lambda p, tb: XB0 + 16 * p + 4 * tb
    WB = lambda nb: WB0 + 4 * nb
    if PROF: A("v_mov_b64 v[62:63], 0")
    A("""s_lshr_b32 s19, s18, 1
         s_and_b32 s20, s18, 1
         v_and_b32 v3, 15, v2
         v_lshrrev_b32 v4, 4, v2""")
    A("""s_lshl_b32 s3, s19, 6
         v_add_u32 v5, s3, v3
         v_lshlrev_b32 v5, 7, v5
         v_lshrrev_b32 v6, 1, v3
         v_xor_b32 v6, v6, v4
         v_lshlrev_b32 v7, 4, v6
         v_add_u32 v14, v5, v7
         v_xor_b32 v15, 64, v14""")
    A("""v_lshrrev_b32 v5, 2, v3
         v_and_b32 v6, 3, v3
         v_lshl_add_u32 v7, v4, 3, v5
         v_lshlrev_b32 v7, 7, v7
         v_lshl_add_u32 v7, v6, 3, v7
         v_lshrrev_b32 v8, 1, v5
         v_and_b32 v9, 1, v4
         v_lshl_or_b32 v8, v9, 1, v8
         s_lshl_b32 s3, s20, 1
         v_xor_b32 v8, s3, v8
         v_lshl_add_u32 v16, v8, 5, v7
         v_xor_b32 v17, 32, v16""")
    A("""v_mov_b32 v10, v14
         v_mov_b32 v11, v15
         v_mov_b32 v12, v16
         v_mov_b32 v13, v17
         s_mov_b32 s21, 0""")
    Lnn = A.label("nononce")
    A(f"""s_memrealtime s[28:29]
          s_waitcnt lgkmcnt(0)
          s_or_b32 s3, s2, s18
          s_cmp_lg_u32 s3, 0
          s_cbranch_scc1 {Lnn}""")
    srd(A, 24, P_DBG, P_DBG + 1, 4)
    A(f"""s_or_b32 s28, s28, 1
          v_mov_b32 v5, s28
          v_lshlrev_b32 v6, 2, v2
          buffer_store_dword v5, v6, s[24:27], 0 offen sc1""")
    A(f"{Lnn}:")
    srd(A, 4, P_WS, P_WS + 1, WS_END)
    fstamp(A, "start")
    for i in range(0, 128, 2): A(f"v_mov_b64 {v(ACC+i,2)}, 0")
    A(f"""v_and_b32 v5, 1, v4
          v_lshrrev_b32 v6, 1, v4
          v_lshlrev_b32 v5, 10, v5
          v_lshl_add_u32 v5, v6, 9, v5
          v_lshrrev_b32 v6, 2, v3
          v_and_b32 v7, 3, v3
          v_lshl_add_u32 v6, v6, 3, v7
          v_lshl_add_u32 v21, v6, 4, v5
          v_lshlrev_b32 v5, 9, v4
          v_lshrrev_b32 v6, 3, v3
          v_and_b32 v7, 7, v3
          v_lshl_add_u32 v6, v6, 4, v7
          v_lshl_add_u32 v22, v6, 4, v5
          s_lshl_b32 s3, s20, 14
          s_lshl_b32 s22, s19, 13
          s_add_u32 s3, s3, s22
          v_add_u32 v21, s3, v21
          v_add_u32 v22, s3, v22
          s_lshl_b32 s3, s19, 10
          v_lshl_add_u32 v18, v3, 4, s3
          v_add_u32 v18, {L_ST}, v18
          s_lshl_b32 s3, s20, 7
          v_lshl_add_u32 v19, v4, 4, s3
          v_add_u32 v19, {L_CS}, v19
          v_mov_b32 v20, {L_NON}
          s_mov_b32 s38, {hexf(QSCALE)}
          s_lshl_b32 s22, s13, 1
          s_add_u32 s22, s22, s20
          s_lshr_b32 s3, s22, 3
          s_lshr_b32 s32, s3, 1
          s_add_u32 s32, s32, 1
          s_sub_u32 s33, 0, s32
          s_and_b32 s3, s3, 1
          s_cmp_eq_u32 s3, 1
          s_cselect_b32 s32, s33, s32
          s_lshl_b32 s33, s16, 7
          s_lshl_b32 s3, s19, 6
          s_add_u32 s33, s33, s3
          s_add_u32 s33, s33, s32
          s_lshl_b32 s34, s22, 13
          s_add_u32 s34, s34, {WS_H1}
          v_add_u32 v50, s33, v3
          v_and_b32 v49, 15, v50
          v_lshlrev_b32 v49, 4, v49
          v_lshl_add_u32 v49, v4, 8, v49
          v_cmp_gt_u32 vcc, 2048, v50
          s_mov_b64 s[42:43], vcc""")
    for tb in range(4):
        A(f"""v_bfe_u32 v51, v50, 7, 4
              v_bfe_u32 v48, v50, 4, 3
              v_lshl_add_u32 v51, v51, 18, v49
              v_lshl_add_u32 v{56+tb}, v48, 10, v51""")
        if tb < 3: A("v_add_u32 v50, 16, v50")
    A("""v_cmp_gt_u32 vcc, 2048, v50
         s_mov_b64 s[44:45], vcc
         s_lshl_b32 s23, s16, 8
         s_lshl_b32 s3, s17, 4
         s_add_u32 s23, s23, s3
         s_lshl_b32 s3, s18, 2
         s_add_u32 s23, s23, s3""")
    A(f"""s_lshl_b32 s3, s17, 4
          s_add_u32 s3, s3, s16
          s_lshl_b32 s46, s3, 15
          s_add_u32 s46, s46, {WS_KV}
          s_add_u32 s47, s46, 4096
          s_lshl_b32 s48, s3, 7
          s_lshl_b32 s3, s20, 3
          s_add_u32 s48, s48, s3
          s_lshl_b32 s3, s19, 2
          s_add_u32 s48, s48, s3
          s_add_u32 s48, s48, {F_KV}
          s_mov_b32 s49, 0""")
    def try_flag(Z, soff, block=False):
        Ls = A.label("tf")
        if block:
            Z("s_cmp_lg_u32 s49, 0")
        else:
            Z("s_getreg_b32 s3, hwreg(HW_REG_IB_STS)")
            Z("s_and_b32 s3, s3, 0xc0000f")
            Z("s_or_b32 s3, s3, s49")
        Z(f"s_cbranch_scc1 {Ls}")
        Z("s_waitcnt vmcnt(0)")
        flag_store(Z, soff)
        Z("s_mov_b32 s49, 1")
        Z(f"{Ls}:")
    xread = lambda st, tb, dst: f"ds_read_b128 {v(dst,4)}, v{10+st} offset:{tb*2048}"
    wread = lambda st, nb, e, dst: f"ds_read_b64_tr_b16 {v(dst,2)}, v{12+(nb&1)} offset:{16384 + (nb>>1)*8192 + st*4096 + e*512}"
    def advance():
        return [f"s_add_u32 s21, s21, {S1}", f"s_cmp_eq_u32 s21, {3*S1}", "s_cselect_b32 s21, 0, s21",
                "v_add_u32 v10, s21, v14", "v_add_u32 v11, s21, v15", "v_add_u32 v12, s21, v16", "v_add_u32 v13, s21, v17"]
    A("s_barrier")
    fstamp(A, "P")
    compute_loop(A, 4, 8, 2, 16, acc, XB, WB, xread, wread, advance, swapped=(4, 5), name="p1c")
    A("C_p1end:")
    fstamp(A, "p1end")
    SB = lambda i: 64 + 16 * (i & 3)
    O = lambda q: 128 + 16 * q
    Lr = lambda q: 160 + 4 * q
    Q = lambda q, b: 168 + 8 * q + 4 * b
    KB = lambda p, b: 184 + 8 * p + 4 * b
    VB = lambda p, b: 200 + 8 * p + 4 * b
    ONES, IDX, VBASE, VL16, H1P = 216, 220, 10, 11, 224
    A("s_waitcnt lgkmcnt(0)")
    for tb in range(4): A(f"ds_read_b128 {v(24+4*tb,4)}, v18 offset:{tb*256}")
    A("ds_read_b128 v[40:43], v19")
    A("ds_read_b128 v[44:47], v19 offset:64")
    A("ds_read_b32 v20, v20")
    def pack(t, a0, a1):
        A(f"v_cvt_pk_bf16_f32 v{t}, v{a0}, v{a0+1}"); A(f"v_cvt_pk_bf16_f32 v{t+1}, v{a0+2}, v{a0+3}")
        A(f"v_cvt_pk_bf16_f32 v{t+2}, v{a1}, v{a1+1}"); A(f"v_cvt_pk_bf16_f32 v{t+3}, v{a1+2}, v{a1+3}")
    t = 64
    for tb in range(4):
        pack(t, acc(tb, 2), acc(tb, 3))
        A(f"ds_write_b128 v21, {v(t,4)} offset:{(tb>>1)*4096 + (tb&1)*64}")
        A(f"buffer_store_dwordx4 {v(t,4)}, v21, {WS}, s{46 + (tb>>1)} offen offset:{(tb&1)*64} sc1"); t += 4
    for u in range(2):
        for nbv in range(2):
            pack(t, acc(2*u, 4+nbv), acc(2*u+1, 4+nbv))
            A(f"ds_write_b128 v22, {v(t,4)} offset:{u*4096 + 2048 + nbv*128}")
            A(f"buffer_store_dwordx4 {v(t,4)}, v22, {WS}, s{46 + u} offen offset:{2048 + nbv*128} sc1"); t += 4
    A("s_waitcnt lgkmcnt(0)")
    A("s_barrier")
    A("v_readfirstlane_b32 s12, v20")
    for tb in range(4):
        a0 = acc(tb, 0)
        for r in range(0, 8, 2): A(f"v_pk_mul_f32 {v(a0+r,2)}, {v(a0+r,2)}, s[38:39] op_sel_hi:[1,0]")
        pack(Q(tb >> 1, tb & 1), a0, a0 + 4)
    for tb in range(4):
        a0 = acc(tb, 6); t = H1P + 4 * tb
        gelu_pk(A, [a0 + 2*i for i in range(4)], [40 + 2*i for i in range(4)], 24 + 4*tb, [48 + 2*i for i in range(4)], [t + i for i in range(4)])
        if tb in (0, 3):
            for r in range(4): A(f"v_cndmask_b32 v{t+r}, 0, v{t+r}, {'s[42:43]' if tb == 0 else 's[44:45]'}")
        try_flag(A, 48)
    for q in range(2):
        for i in range(4): A(f"v_permlane16_swap_b32 v{Q(q,0)+i}, v{Q(q,1)+i}")
    A(f"""v_lshlrev_b32 v{VL16}, 4, v2
          s_lshl_b32 s3, s20, 14
          v_add_u32 v{VBASE}, s3, v{VL16}""")
    rdK = lambda t: [Item(f"ds_read_b128 {v(KB(t&1,b),4)}, v{VBASE} offset:{(t&3)*4096 + b*1024}", gives=("K", t&1, b)) for b in range(2)]
    rdV = lambda t: [Item(f"ds_read_b128 {v(VB(t&1,b),4)}, v{VBASE} offset:{(t&3)*4096 + 2048 + b*1024}", gives=("V", t&1, b)) for b in range(2)]
    pre = [Item("", gives=("V", 1, 0)), Item("", gives=("V", 1, 1))] + rdK(0) + rdV(0)
    for it in pre[2:]: A(it.text)
    A(f"""v_and_b32 v5, 7, v2
          v_cmp_eq_u32 vcc, 0, v5
          v_cmp_eq_u32 s[42:43], 4, v5
          v_mov_b32 v5, 0x3f803f80
          v_mov_b32 v{IDX}, 0xdddddddd
          v_cndmask_b32 v{ONES}, 0, v5, vcc
          v_cndmask_b32 v{ONES+1}, 0, v5, vcc
          v_cndmask_b32 v{ONES+2}, 0, v5, s[42:43]
          v_cndmask_b32 v{ONES+3}, 0, v5, s[42:43]""")
    for i in range(0, 40, 2): A(f"v_mov_b64 {v(128+i,2)}, 0")
    for i in range(0, 16, 2): A(f"v_mov_b64 {v(SB(3)+i,2)}, 0")
    for i in range(0, 8, 2): A(f"v_mov_b64 {v(VB(1,0)+i,2)}, 0")
    def qk(u):
        t, q = u >> 1, u & 1
        d = SB(u)
        return [Item(f"v_mfma_f32_32x32x16_bf16 {v(d,16)}, {v(KB(t&1,0),4)}, {v(Q(q,0),4)}, 0", needs=[("K", t&1, 0), ("K", t&1, 1)]),
                Item(f"v_mfma_f32_32x32x16_bf16 {v(d,16)}, {v(KB(t&1,1),4)}, {v(Q(q,1),4)}, {v(d,16)}")]
    def pv(u, need=True):
        t, q = u >> 1, u & 1
        d = SB(u)
        r = []
        for b in range(2):
            r.append(Item(f"v_smfmac_f32_32x32x32_bf16 {v(O(q),16)}, {v(VB(t&1,b),4)}, {v(d+8*b,8)}, v{IDX}", needs=[("V", t&1, b)] if need else []))
            r.append(Item(f"v_smfmac_f32_16x16x64_bf16 {v(Lr(q),4)}, {v(ONES,4)}, {v(d+8*b,8)}, v{IDX}"))
        return r
    A("s_waitcnt lgkmcnt(2)")
    for it in qk(0): A(it.text)
    fstamp(A, "att0")
    A("s_nop 9")
    body = []
    for u in range(8):
        e = [Item(f"v_exp_f32 v{SB(u)+i}, v{SB(u)+i}") for i in range(16)]
        m = qk(u + 1) + pv(u - 1)
        t1 = (u >> 1) + 1
        extra = rdK(t1) if (u & 1) == 0 else rdV(t1)
        if u == 5: extra += [Item(f"v_xor_b32 v{VBASE}, {KVS}, v{VBASE}")]
        if u == 7: extra += [Item("s_sub_u32 s40, s40, 1"), Item("s_cmp_lg_u32 s40, 0")]
        cnt = [3, 3, 3, 1, 3, 3]
        k = 0
        for mi in range(6):
            body.append(m[mi])
            if mi == 0 and u == 6: body.append(Item("s_barrier", drain=True))
            if extra: body.append(extra.pop(0))
            for j in range(cnt[mi]):
                body.append(e[k]); k += 1
    lines = insert_lgkm_waits(pre, body, maxcnt=15)
    nq = 0
    for l in lines:
        if l.startswith("s_barrier"): try_flag(A, 48, block=True)
        if l.startswith(("s_sub_u32 s40", "s_cmp_lg_u32 s40")): continue
        A(l)
        if l.startswith("v_mfma") and l.endswith(", 0"):
            nq += 1
            if nq <= 6: try_flag(A, 48)
    for tb in range(4): A(f"buffer_store_dwordx4 {v(H1P+4*tb,4)}, v{56+tb}, {WS}, s34 offen sc1")
    fstamp(A, "st0end")
    L = A.label("aloop"); Lx = A.label("aexit")
    A("s_mov_b32 s40, 1")
    A("s_mov_b32 s41, 14")
    A(f"{L}:")
    for l in lines: A(l)
    A(f"s_cbranch_scc1 {L}")
    A(f"""s_cmp_eq_u32 s41, 0
          s_cbranch_scc1 {Lx}
          s_add_u32 s3, s23, {F_H1}
          s_waitcnt vmcnt(0)""")
    flag_store(A, 3)
    fstamp(A, "st1end")
    A(f"""s_mov_b32 s40, s41
          s_mov_b32 s41, 0
          s_branch {L}""")
    A(f"{Lx}:")
    A("C_attend:")
    for it in pv(7, False): A(it.text)
    fstamp(A, "attend")
    A(f"""v_and_b32 v5, 31, v2
          s_lshl_b32 s3, s19, 8
          s_add_u32 s3, s3, {L_GT}
          v_lshl_add_u32 v5, v5, 2, s3
          ds_read_b32 v12, v5
          ds_read_b32 v13, v5 offset:128
          s_mul_i32 s28, s16, {HO_PANEL}
          s_add_u32 s28, s28, {WS_HO}
          s_lshl_b32 s3, s17, 1
          s_add_u32 s3, s3, s20
          s_add_u32 s3, s3, 112
          s_lshl_b32 s3, s3, 13
          s_add_u32 s29, s28, s3
          s_lshl_b32 s3, s19, 12
          s_add_u32 s29, s29, s3
          v_bfe_u32 v6, v2, 4, 1
          v_lshlrev_b32 v6, 10, v6
          v_lshl_add_u32 v6, v3, 4, v6
          v_lshrrev_b32 v7, 5, v2
          v_lshl_add_u32 v16, v7, 8, v6""")
    Lslow = A.label("slow"); Lfin = A.label("fin")
    A(f"""v_min_f32 v8, v{Lr(0)}, v{Lr(1)}
          v_max_f32 v5, v{Lr(0)}, v{Lr(1)}
          v_pk_mul_f32 v[6:7], v[128:129], 0 op_sel_hi:[1,0]""")
    for i in range(2, 32, 2): A(f"v_pk_fma_f32 v[6:7], {v(128+i,2)}, 0, v[6:7] op_sel_hi:[1,0,1]")
    A(f"""v_add_f32 v7, v6, v7
          v_fmac_f32 v7, 0, v{Lr(0)}
          v_fmac_f32 v7, 0, v{Lr(1)}
          v_cmp_le_f32 vcc, {hexf(2.0**-20)}, v8
          s_mov_b64 s[44:45], vcc
          v_cmp_ge_f32 vcc, {hexf(2.0**60)}, v5
          s_and_b64 s[44:45], s[44:45], vcc
          v_cmp_eq_f32 vcc, 0, v7
          s_and_b64 s[44:45], s[44:45], vcc
          s_cmp_eq_u64 s[44:45], -1""")
    if "forceslow" in EXP: A(f"s_branch {Lslow}")
    A(f"s_cbranch_scc0 {Lslow}")
    A(f"{Lfin}:")
    A(f"""v_rcp_f32 v6, v{Lr(0)}
          v_rcp_f32 v7, v{Lr(1)}
          s_waitcnt lgkmcnt(0)
          v_mul_f32 v6, v6, v12
          v_mul_f32 v7, v7, v13""")
    for q in range(2):
        for i in range(0, 16, 2): A(f"v_pk_mul_f32 {v(O(q)+i,2)}, {v(O(q)+i,2)}, v[6:7] op_sel:[0,{q}] op_sel_hi:[1,{q}]")
        for b in range(2):
            t = 32 + 8 * q + 4 * b
            for i in range(4): A(f"v_cvt_pk_bf16_f32 v{t+i}, v{O(q)+8*b+2*i}, v{O(q)+8*b+2*i+1}")
            A(f"buffer_store_dwordx4 {v(t,4)}, v16, {WS}, s29 offen offset:{q*2048 + b*512} sc1")
    acc = lambda tb, nb: ACC + 4 * (tb * 7 + nb)
    A(f"""s_lshl_b32 s3, s19, 12
          v_add_u32 v14, s3, v{VL16}
          v_mov_b32 v9, v{VL16}
          v_lshrrev_b32 v5, 2, v3
          v_and_b32 v6, 3, v3
          v_lshl_add_u32 v7, v4, 2, v5
          v_mul_u32_u24 v7, 448, v7
          v_add_u32 v7, 16384, v7
          v_and_b32 v8, 1, v4
          v_lshl_add_u32 v5, v6, 3, v7
          s_lshl_b32 s3, s20, 8
          v_add_u32 v5, s3, v5
          v_lshl_add_u32 v15, v8, 5, v5
          v_xor_b32 v18, 1, v8
          v_lshl_add_u32 v18, v18, 5, v5
          v_and_b32 v5, 1, v6
          v_xor_b32 v5, v5, v8
          v_lshl_add_u32 v7, v5, 5, v7
          v_lshrrev_b32 v5, 1, v6
          v_lshl_add_u32 v7, v5, 3, v7
          s_lshl_b32 s3, s20, 4
          s_add_u32 s3, s3, 192
          v_add_u32 v17, s3, v7
          v_mov_b32 v16, v18
          s_mov_b32 s21, {L3 + S3}""")
    for i in range(4): A(f"v_add_u32 v{10+i}, s21, v{14+i}")
    for i in range(0, 112, 2): A(f"v_mov_b64 {v(ACC+i,2)}, 0")
    xread = lambda st, tb, dst: f"ds_read_b128 {v(dst,4)}, v10 offset:{st*8192 + tb*1024}"
    wread = lambda st, nb, e, dst: f"ds_read_b64_tr_b16 {v(dst,2)}, v{13 if nb == 6 else 11+(nb&1)} offset:{(0 if nb == 6 else (nb>>1)*64) + (st*32 + e*16)*448}"
    def advance():
        return [f"s_add_u32 s21, s21, {S3}", f"s_cmp_eq_u32 s21, {L3 + 3*S3}", f"s_cselect_b32 s21, {L3}, s21"] + [f"v_add_u32 v{10+i}, s21, v{14+i}" for i in range(4)]
    fstamp(A, "p3rdy")
    A("s_barrier")
    fstamp(A, "P3")
    def flagO():
        A(f"""s_add_u32 s3, s23, {F_O}
              s_waitcnt vmcnt(0)""")
        flag_store(A, 3)
    compute_loop(A, 4, 7, 2, 16, acc, XB, WB, xread, wread, advance, name="p3c", once=(3, flagO))
    A("C_p3end:")
    fstamp(A, "p3end")
    A(f"""s_lshl_b32 s3, s19, 10
          v_lshl_add_u32 v5, v3, 4, s3
          v_add_u32 v5, {L_ST}, v5
          s_lshl_b32 s3, s20, 9
          v_lshl_add_u32 v6, v4, 4, s3
          v_add_u32 v6, {L_CS}, v6
          v_and_b32 v7, 1, v4
          v_lshlrev_b32 v7, 6, v7
          v_lshrrev_b32 v8, 1, v4
          v_lshl_add_u32 v7, v8, 4, v7
          s_lshl_b32 s3, s20, 5
          s_add_u32 s3, s3, {L_CS + 384}
          v_add_u32 v7, s3, v7
          s_waitcnt lgkmcnt(0)""")
    for tb in range(4): A(f"ds_read_b128 {v(16+4*tb,4)}, v5 offset:{tb*256}")
    for nb in range(6): A(f"ds_read_b128 {v(32+4*nb,4)}, v6 offset:{nb*64}")
    A("ds_read_b128 v[56:59], v7")
    A(f"""s_mul_i32 s29, s17, {7*8192}
          s_add_u32 s29, s29, s28
          s_lshl_b32 s3, s19, 12
          s_add_u32 s29, s29, s3
          s_add_u32 s33, s29, {3*8192}
          s_lshl_b32 s3, s20, 9
          s_add_u32 s33, s33, s3
          s_lshl_b32 s3, s20, 15
          s_add_u32 s29, s29, s3
          s_add_u32 s30, s29, 8192
          s_add_u32 s31, s29, 16384
          v_and_b32 v5, 1, v4
          v_lshlrev_b32 v5, 10, v5
          v_lshl_add_u32 v5, v8, 8, v5
          v_lshl_add_u32 v8, v3, 4, v5
          s_waitcnt lgkmcnt(0)""")
    k = 0
    for tb in range(4):
        st = 16 + 4 * tb
        for pr in range(3):
            a0 = acc(tb, 2 * pr); o = 72 + 4 * (k % 6); k += 1
            gelu_pk(A, [a0 + 2*i for i in range(4)], [32 + 8*pr + 2*i for i in range(4)], st, [64 + 2*i for i in range(4)], [o + i for i in range(4)])
            A(f"buffer_store_dwordx4 {v(o,4)}, v9, {WS}, s{29+pr} offen offset:{tb*1024} sc1")
        a0 = acc(tb, 6); o = 96 + 4 * (tb >> 1) + 2 * (tb & 1)
        gelu_pk(A, [a0, a0 + 2], [56, 58], st, [64, 66], [o, o + 1])
        if tb & 1:
            o = 96 + 4 * (tb >> 1)
            A(f"""s_nop 1
                  v_permlane16_swap_b32 v{o}, v{o+2}
                  v_permlane16_swap_b32 v{o+1}, v{o+3}
                  buffer_store_dwordx4 {v(o,4)}, v8, {WS}, s33 offen offset:{(tb>>1)*2048} sc1""")
    acc = lambda tb, nb: ACC + 4 * (tb * 4 + nb)
    A(f"""s_lshr_b32 s22, s17, 3
          s_lshl_b32 s3, s19, 12
          s_lshl_b32 s41, s22, 11
          s_add_u32 s3, s3, s41
          v_add_u32 v16, s3, v9
          v_xor_b32 v17, 2048, v16
          v_lshrrev_b32 v5, 2, v3
          v_and_b32 v6, 3, v3
          v_lshl_add_u32 v7, v4, 2, v5
          v_and_b32 v8, 7, v7
          v_lshlrev_b32 v7, 8, v7
          v_lshl_add_u32 v7, v6, 3, v7
          s_lshl_b32 s3, s20, 2
          v_xor_b32 v8, s3, v8
          v_lshl_add_u32 v18, v8, 5, v7
          v_xor_b32 v19, 32, v18
          v_xor_b32 v20, 64, v18
          v_xor_b32 v21, 96, v18
          s_mov_b32 s21, 0""")
    for i in range(6): A(f"v_mov_b32 v{10+i}, v{16+i}")
    for i in range(0, 64, 2): A(f"v_mov_b64 {v(ACC+i,2)}, 0")
    xread = lambda st, tb, dst: f"ds_read_b128 {v(dst,4)}, v{10+(tb>>1)} offset:{st*8192 + (tb&1)*1024}"
    wread = lambda st, nb, e, dst: f"ds_read_b64_tr_b16 {v(dst,2)}, v{12+nb} offset:{16384 + st*8192 + e*4096}"
    def advance():
        return [f"s_add_u32 s21, s21, {S4}", f"s_and_b32 s21, s21, {4*S4-1}"] + [f"v_add_u32 v{10+i}, s21, v{16+i}" for i in range(6)]
    fstamp(A, "p4rdy")
    A("s_barrier")
    fstamp(A, "P4")
    def flagH2():
        A(f"""s_add_u32 s3, s23, {F_H2}
              s_waitcnt vmcnt(0)""")
        flag_store(A, 3)
        fstamp(A, "h2flag")
        A(f"""s_lshl_b32 s3, s19, 6
              s_lshl_b32 s42, s22, 5
              s_add_u32 s42, s42, s3
              s_lshl_b32 s29, s16, 18
              s_and_b32 s3, s17, 7
              s_lshl_b32 s3, s3, 15
              s_add_u32 s29, s29, s3
              s_lshl_b32 s3, s20, 14
              s_add_u32 s29, s29, s3
              s_lshl_b32 s3, s42, 6
              s_add_u32 s29, s29, s3
              s_add_u32 s29, s29, {WS_X1}
              s_add_u32 s30, s29, 8192""")
        for tb in range(2):
            A(f"buffer_load_dwordx4 {v(32+8*tb,4)}, v9, {WS}, s29 offen offset:{tb*1024} sc1")
            A(f"buffer_load_dwordx4 {v(36+8*tb,4)}, v9, {WS}, s30 offen offset:{tb*1024} sc1")
    compute_loop(A, 4, 4, 2, 36, acc, XB, WB, xread, wread, advance, name="p4c", bar_after=1, once=(int(os.environ.get("H2IT", "3")), flagH2))
    A("C_p4end:")
    fstamp(A, "p4end")
    A(f"""s_lshl_b32 s3, s16, 4
          s_add_u32 s3, s3, s17
          s_lshl_b32 s29, s3, 14
          s_lshl_b32 s41, s18, 12
          s_add_u32 s29, s29, s41
          s_add_u32 s29, s29, {WS_EX}
          s_xor_b32 s30, s29, {8 << 14}
          s_lshl_b32 s31, s3, 7
          s_lshl_b32 s41, s18, 2
          s_add_u32 s31, s31, s41
          s_add_u32 s31, s31, {F_EX}
          s_xor_b32 s32, s31, {8 << 7}
          s_waitcnt lgkmcnt(0)""")
    for i in range(4):
        a0 = ACC + 32 + 8 * i
        pack(64 + 4 * i, a0, a0 + 4)
        A(f"buffer_store_dwordx4 {v(64+4*i,4)}, v9, {WS}, s29 offen offset:{i*1024} sc1")
    A(f"""s_lshl_b32 s3, s42, 2
          s_add_u32 s3, s3, {L_GT}
          v_lshl_add_u32 v5, v3, 2, s3
          ds_read_b32 v48, v5
          ds_read_b32 v49, v5 offset:64
          v_mov_b32 v8, 0xffff0000""")
    srd(A, 24, P_OUT, P_OUT + 1, S * D * 2)
    A(f"""s_waitcnt lgkmcnt(0) vmcnt(4)
          v_sub_f32 v48, 1.0, v48
          v_sub_f32 v49, 1.0, v49
          v_cvt_pk_bf16_f32 v48, v48, v48
          v_cvt_pk_bf16_f32 v49, v49, v49
          v_and_b32 v48, v8, v48
          v_and_b32 v49, v8, v49""")
    for tb in range(2):
        for nb in range(4):
            a = ACC + 4 * (tb * 4 + nb); xr = 32 + 8 * tb + 2 * nb
            A(f"""v_lshlrev_b32 v22, 16, v{xr}
                  v_and_b32 v23, v8, v{xr}
                  v_lshlrev_b32 v24, 16, v{xr+1}
                  v_and_b32 v25, v8, v{xr+1}
                  v_pk_fma_f32 {v(a,2)}, v[22:23], v[48:49], {v(a,2)} op_sel:[0,{tb},0] op_sel_hi:[1,{tb},1]
                  v_pk_fma_f32 {v(a+2,2)}, v[24:25], v[48:49], {v(a+2,2)} op_sel:[0,{tb},0] op_sel_hi:[1,{tb},1]""")
    A("s_waitcnt vmcnt(0)")
    flag_store(A, 31)
    fstamp(A, "exflag")
    ld = lambda: A(f"buffer_load_dword v20, off, {WS}, s32 sc1")
    ld()
    A(f"""v_lshlrev_b32 v5, 11, v3
          v_and_b32 v6, 1, v4
          v_lshl_add_u32 v5, v6, 5, v5
          v_lshrrev_b32 v6, 1, v4
          v_lshl_add_u32 v5, v6, 4, v5
          s_lshl_b32 s41, s16, 7
          s_add_u32 s41, s41, s42
          s_lshl_b32 s41, s41, 11
          s_and_b32 s3, s17, 7
          s_lshl_b32 s3, s3, 8
          s_add_u32 s41, s41, s3
          s_lshl_b32 s3, s20, 7
          s_add_u32 s41, s41, s3
          s_add_u32 s43, s41, {16*2048}
          s_waitcnt vmcnt(0)""")
    spin_until(A, lambda: A("v_cmp_ne_u32 vcc, s12, v20"), ld, "ex")
    for i in range(4): A(f"buffer_load_dwordx4 {v(64+4*i,4)}, v9, {WS}, s30 offen offset:{i*1024} sc1")
    fstamp(A, "exok")
    for i in range(4):
        tb, pr = i >> 1, i & 1
        a0 = ACC + 8 * i; o = 96 + 4 * i
        A("s_waitcnt vmcnt(3)")
        for k in range(4):
            A(f"""v_lshlrev_b32 v22, 16, v{64+4*i+k}
                  v_and_b32 v23, v8, v{64+4*i+k}
                  v_pk_add_f32 {v(a0+2*k,2)}, {v(a0+2*k,2)}, v[22:23]""")
        pack(o, a0, a0 + 4)
        A(f"""s_nop 1
              v_permlane16_swap_b32 v{o}, v{o+2}
              v_permlane16_swap_b32 v{o+1}, v{o+3}
              buffer_store_dwordx4 {v(o,4)}, v5, s[24:27], s{41 if tb == 0 else 43} offen offset:{pr*64}{os.environ.get("OUTF", "")}""")
    fstamp(A, "stored")
    if PROF: A("s_waitcnt vmcnt(0)")
    fstamp(A, "drained")
    fstamp_flush(A, 0)
    A("s_endpgm")
    A("C_slow:")
    A(f"{Lslow}:")
    A("s_waitcnt lgkmcnt(0)")
    for i in range(0, 40, 2): A(f"v_mov_b64 {v(128+i,2)}, 0")
    A(f"""v_mov_b32 v14, 0xff7fffff
          v_mov_b32 v15, 0xff7fffff
          s_lshl_b32 s41, s17, 19
          s_lshl_b32 s3, s20, 14
          s_add_u32 s41, s41, s3
          s_add_u32 s41, s41, {WS_KV}
          s_mov_b32 s40, 64""")
    Ls = A.label("sloop")
    A(f"{Ls}:")
    for b in range(2): A(f"buffer_load_dwordx4 {v(KB(0,b),4)}, v{VL16}, {WS}, s41 offen offset:{b*1024} sc1")
    for b in range(2): A(f"buffer_load_dwordx4 {v(VB(0,b),4)}, v{VL16}, {WS}, s41 offen offset:{2048 + b*1024} sc1")
    A("s_waitcnt vmcnt(0)")
    for q in range(2):
        for it in qk(q): A(it.text)
    A("s_nop 15")
    for q in range(2):
        d = SB(q); m = 14 + q
        A(f"v_max3_f32 v6, v{d}, v{d+1}, v{m}")
        for i in range(2, 16, 2): A(f"v_max3_f32 v6, v{d+i}, v{d+i+1}, v6")
        A(f"""v_mov_b32 v5, v6
              s_nop 1
              v_permlane32_swap_b32 v5, v6
              s_nop 1
              v_max_f32 v6, v6, v5
              v_sub_f32 v5, v{m}, v6
              v_exp_f32 v5, v5
              v_mov_b32 v{m}, v6""")
        for i in range(16): A(f"v_sub_f32 v{d+i}, v{d+i}, v6")
        for i in range(16): A(f"v_exp_f32 v{d+i}, v{d+i}")
        for i in range(16): A(f"v_mul_f32 v{O(q)+i}, v{O(q)+i}, v5")
        for i in range(4): A(f"v_mul_f32 v{Lr(q)+i}, v{Lr(q)+i}, v5")
        A("s_nop 1")
        for it in pv(q, False): A(it.text)
    A(f"""s_nop 15
          s_sub_u32 s40, s40, 1
          s_and_b32 s3, s40, 3
          s_cmp_eq_u32 s3, 0
          s_cselect_b32 s3, 16384, 0
          s_add_u32 s41, s41, s3
          s_add_u32 s41, s41, 4096
          s_cmp_lg_u32 s40, 0
          s_cbranch_scc1 {Ls}
          s_branch {Lfin}""")
```

```python
from common import *
from k1 import job_stats as _js, job_gate as _jg
import k1
NAME = "gated_mix__softmax_full_mha__mixer_s_mlp__prompt_kernel"
P_X, P_WQKV, P_WO, P_BX, P_W1, P_W2, P_W3, P_W4, P_G, P_OUT, P_DBG, P_WS = [64 + 2*i for i in range(12)]
QSCALE = (DH ** -0.5) * 1.4426950408889634
S1 = 49152
L_MISC = 155648
L_ST = L_MISC
L_CS = L_ST + 2048
L_GT = L_CS + 1024
L_NON = L_GT + 512
L_JOB = L_NON + 64
LDS_BYTES = 163840
k1.L_JOB = L_JOB
KVS = 32768
L_W2W = 65536
L_W2X = 98304
L_XR = 131072
L_C3 = 147456
S3 = 45056; L3 = 20480
S4 = 32768
WOFF = int(os.environ.get("WOFF", "2"))
WS = "s[4:7]"
dppadd = lambda r, sh: f"v_add_f32_dpp v{r}, v{r}, v{r} row_ror:{sh} row_mask:0xf bank_mask:0xf"

def flag_store(A, soff_sreg, vtmp=1):
    A(f"""v_mov_b32 v{vtmp}, s12
          s_mov_b64 exec, 1
          buffer_store_dword v{vtmp}, off, {WS}, s{soff_sreg} sc1
          s_mov_b64 exec, -1""")

def gen(A):
    kernel_header(A, NAME)
    Lend = A.label("end"); Lcomp = A.label("comp")
    A(f"s_cmp_ge_u32 s2, 256")
    A(f"s_cbranch_scc1 {Lend}")
    if PROF or "diag" in EXP:
        A("s_memrealtime s[92:93]"); A("s_memtime s[94:95]")
    A("s_load_dwordx16 s[64:79], s[0:1], 0")
    A("s_load_dwordx8 s[80:87], s[0:1], 64")
    A("""v_lshrrev_b32 v1, 6, v0
         v_and_b32 v2, 63, v0
         """ + ("s_lshr_b32 s14, s2, 5" if "badmap" in EXP else "s_and_b32 s14, s2, 7") + """
         v_readfirstlane_b32 s18, v1
         """ + ("s_and_b32 s15, s2, 31" if "badmap" in EXP else "s_lshr_b32 s15, s2, 3") + """
         s_and_b32 s16, s14, 1
         s_lshl_b32 s16, s16, 3
         s_and_b32 s3, s15, 7
         s_add_u32 s16, s16, s3
         s_lshr_b32 s17, s14, 1
         s_lshl_b32 s17, s17, 2
         s_lshr_b32 s3, s15, 3
         s_add_u32 s17, s17, s3""")
    A(f"""s_add_u32 s13, s17, {WOFF}
          s_and_b32 s13, s13, 15""")
    A("s_cmp_lt_u32 s18, 4")
    A(f"s_cbranch_scc1 {Lcomp}")
    helper(A)
    A(f"{Lend}:")
    A("s_endpgm")
    A("H_end:")
    A(f"{Lcomp}:")
    compute(A)
    return dict(name=NAME, grid=256, block=512, lds=LDS_BYTES, vgpr=256)

def helper(A):
    ROLE[0] = 1
    A("s_sub_u32 s18, s18, 4")
    if PROF: A("v_mov_b64 v[62:63], 0")
    A(f"""v_lshrrev_b32 v3, 3, v2
          v_and_b32 v4, 7, v2
          v_lshrrev_b32 v5, 1, v3
          v_xor_b32 v5, v5, v4
          s_lshl_b32 s3, s16, 7
          s_lshl_b32 s36, s18, 5
          s_add_u32 s3, s3, s36
          v_add_u32 v6, s3, v3
          v_lshlrev_b32 v6, 11, v6
          v_lshl_add_u32 v10, v5, 4, v6
          v_xor_b32 v11, 64, v10
          v_add_u32 v11, {8*2048 - 1024}, v11
          v_add_u32 v12, {16*2048 - 2048}, v10
          v_add_u32 v13, {16*2048 - 2048}, v11""")
    ra, rb = [int(x) for x in os.environ.get("ROT1", "2,0").split(",")]
    A(f"""s_lshl_b32 s3, s18, 11
          s_mov_b32 s30, {D*3*D*2}
          s_mov_b32 s32, 6144
          s_cmp_eq_u32 s18, 3
          s_cselect_b32 s30, {D*D*2}, s30
          s_cselect_b32 s32, 2048, s32
          s_cselect_b32 s33, 0, s3
          s_cselect_b32 s3, s13, s17
          s_mov_b32 s31, 0x20000
          s_lshl_b32 s3, s3, 7
          s_add_u32 s33, s33, s3
          s_lshl_b32 s34, s32, 4
          s_lshl_b32 s35, s32, 6
          s_lshl_b32 s37, s18, 12
          s_lshl_b32 s38, s18, 13
          s_add_u32 s38, s38, 16384
          s_mul_i32 s52, s16, {ra}
          s_mul_i32 s3, s17, {rb}
          s_add_u32 s52, s52, s3
          s_and_b32 s52, s52, 15""")
    A("""v_and_b32 v5, 2, v3
         v_xor_b32 v5, v5, v4
         v_mul_lo_u32 v6, v3, s32
         v_lshl_add_u32 v14, v5, 4, v6
         v_xor_b32 v5, 4, v5
         v_lshl_add_u32 v15, v5, 4, v6
         s_lshl_b32 s3, s32, 3
         s_sub_u32 s3, s3, 1024
         v_add_u32 v15, s3, v15""")
    A("s_waitcnt lgkmcnt(0)")
    srd(A, 24, P_X, P_X + 1, S * D * 2)
    A(f"""s_cmp_eq_u32 s18, 3
          s_cselect_b32 s28, s{P_W1}, s{P_WQKV}
          s_cselect_b32 s29, s{P_W1+1}, s{P_WQKV+1}
          s_and_b32 s29, s29, 0xffff""")
    def issue(slot, mid=None, A=A):
        A(f"s_add_u32 m0, s37, {slot}")
        A("s_lshl_b32 s39, s52, 7")
        for i in range(4):
            A(f"buffer_load_dwordx4 v{10+i}, s[24:27], s39 offen offset:{i*1024} lds")
        if mid: mid()
        A(f"s_add_u32 s45, s38, {slot}")
        A("s_mul_i32 s41, s52, s35")
        A("s_add_u32 s41, s41, s33")
        for i in range(4):
            A(f"s_add_u32 m0, s45, {i*2048}")
            if i: A("s_add_u32 s41, s41, s34")
            else: A("s_add_u32 s52, s52, 1")
            A(f"buffer_load_dwordx4 v14, s[28:31], s41 offen lds")
            A(f"buffer_load_dwordx4 v15, s[28:31], s41 offen offset:1024 lds")
        A("s_and_b32 s52, s52, 15")
    fstamp(A, "start")
    issue(0)
    def barP():
        A("s_waitcnt vmcnt(4)")
        A("s_barrier")
    issue(S1, barP)
    slot = lambda t: (t % 3) * S1
    def endit(n, lg=False):
        A(f"s_waitcnt vmcnt({n})" + (" lgkmcnt(0)" if lg else ""))
        A("s_barrier")
    issue(slot(2))
    A(f"""s_lshl_b32 s46, s16, 7
          s_lshl_b32 s3, s17, 3
          s_add_u32 s46, s46, s3
          s_lshl_b32 s3, s18, 1
          s_add_u32 s46, s46, s3
          s_lshl_b32 s46, s46, 11
          v_lshlrev_b32 v8, 4, v2
          v_lshlrev_b32 v5, 11, v3
          v_lshl_add_u32 v7, v4, 4, v5
          s_lshl_b32 s47, s16, 17
          s_lshl_b32 s3, s17, 7
          s_add_u32 s47, s47, s3
          s_lshl_b32 s3, s18, 15
          s_add_u32 s47, s47, s3
          s_add_u32 s42, s47, 16384
          v_mov_b32 v9, 0xffff0000
          v_lshrrev_b32 v4, 4, v2""")
    srd(A, 8, P_G, P_G + 1, D * 2)
    srd(A, 20, P_W1, P_W1 + 1, D * D * 2)
    endit(12)
    A("""buffer_load_dwordx4 v[64:67], v8, s[24:27], s46 offen
         buffer_load_dwordx4 v[68:71], v8, s[24:27], s46 offen offset:1024
         buffer_load_dwordx4 v[72:75], v8, s[24:27], s46 offen offset:2048
         buffer_load_dwordx4 v[76:79], v8, s[24:27], s46 offen offset:3072
         buffer_load_dwordx4 v[80:83], v8, s[8:11], 0 offen
         buffer_load_dwordx4 v[84:87], v8, s[8:11], 0 offen offset:1024
         buffer_load_dwordx4 v[88:91], v7, s[20:23], s47 offen
         buffer_load_dwordx4 v[92:95], v7, s[20:23], s42 offen""")
    issue(slot(3))
    endit(20)
    srd(A, 8, P_DBG, P_DBG + 1, 256)
    A("buffer_load_dword v19, off, s[8:11], 0 sc1")
    issue(slot(4))
    srd(A, 4, P_WS, P_WS + 1, WS_END)
    A(f"""s_lshl_b32 s19, s16, 4
          s_add_u32 s19, s19, s17
          s_lshl_b32 s21, s19, 7
          s_add_u32 s21, s21, {WS_ST1}
          s_mov_b32 s22, 8
          s_mov_b32 s23, {L_JOB}
          s_lshl_b32 s3, s19, 9
          s_add_u32 s3, s3, {WS_CS1}
          s_cmp_eq_u32 s18, 1
          s_cselect_b32 s21, s3, s21
          s_cselect_b32 s22, 32, s22
          s_cselect_b32 s23, {L_JOB + 256}, s23
          s_cselect_b32 s54, -1, 0
          s_cmp_ge_u32 s18, 2
          s_cselect_b32 s22, 0, s22
          v_and_b32 v5, 31, v2
          v_lshl_add_u32 v17, v5, 3, s23
          v_cmp_gt_u32 vcc, s22, v2
          v_mov_b32 v5, {OOB}
          s_nop 0
          v_cndmask_b32 v16, v5, v8, vcc""")
    endit(12)
    spin_until(A, lambda: A("v_cmp_eq_u32 vcc, 0, v19"), lambda: A("buffer_load_dword v19, off, s[8:11], 0 sc1"), "nonce")
    A("v_readfirstlane_b32 s12, v19")
    fstamp(A, "p1j2")
    J = Asm(); _js(J)
    n = len(J.lines); cuts = [0, n // 3, 2 * n // 3, n]
    for c in range(3):
        I = Asm(); issue(slot(5 + c), None, I)
        interleave(A, I.lines, J.lines[cuts[c]:cuts[c+1]])
        endit(12, c == 2)
    for i in range(4): A(f"ds_read_b64 {v(24+2*i,2)}, v17 offset:{i*256}")
    A("s_waitcnt lgkmcnt(0)")
    for i in range(2):
        A(f"""v_add_f32 v{26+i}, v{26+i}, v{28+i}
              v_add_f32 v{26+i}, v{26+i}, v{30+i}
              v_and_b32 v{26+i}, s54, v{26+i}
              v_add_f32 v{20+2*i}, v{24+i}, v{26+i}
              v_mov_b32 v{21+2*i}, s12""")
    issue(slot(8))
    A(f"buffer_store_dwordx4 v[20:23], v16, {WS}, s21 offen sc1")
    endit(13)
    J = Asm(); _jg(J)
    J(f"""s_lshr_b32 s46, s46, 9
          s_add_u32 s46, s46, {WS_G}
          v_and_b32 v5, 31, v2
          v_cmp_eq_u32 vcc, 0, v5
          v_lshrrev_b32 v30, 3, v2
          v_mov_b32 v6, {OOB}
          v_cndmask_b32 v30, v6, v30, vcc
          v_lshlrev_b32 v16, 4, v5
          s_lshl_b32 s21, s16, 11
          s_lshl_b32 s3, s18, 9
          s_add_u32 s21, s21, s3
          s_add_u32 s21, s21, {WS_ST1}
          v_lshrrev_b32 v7, 3, v2
          v_lshlrev_b32 v7, 14, v7
          v_and_b32 v6, 7, v2
          v_lshl_add_u32 v17, v6, 4, v7
          s_lshl_b32 s22, s13, 9
          s_lshl_b32 s3, s18, 7
          s_add_u32 s22, s22, s3
          s_add_u32 s22, s22, {WS_CS1}
          s_add_u32 s23, s22, 8192""")
    n = len(J.lines)
    for c in range(6):
        I = Asm(); issue(slot(9 + c), None, I)
        interleave(A, I.lines, J.lines[n * c // 6: n * (c + 1) // 6])
        k = 0
        if c == 2: k = code_touch(A, "H_p1j14", "H_end", 1)
        if c == 4: k = code_touch(A, "C_p1end", "C_slow", 1)
        endit(12 + k)
    def payload():
        A(f"""buffer_load_dwordx4 v[20:23], v16, {WS}, s21 offen sc1
              buffer_load_dwordx4 v[32:35], v17, {WS}, s22 offen sc1
              buffer_load_dwordx4 v[36:39], v17, {WS}, s23 offen sc1""")
    payload()
    issue(slot(15))
    A(f"buffer_store_dword v28, v30, {WS}, s46 offen sc1")
    endit(13)
    def chk():
        A("""v_xor_b32 v24, s12, v21
             v_xor_b32 v25, s12, v23
             v_xor_b32 v26, s12, v33
             v_xor_b32 v27, s12, v35
             v_or3_b32 v24, v24, v25, v26
             v_xor_b32 v25, s12, v37
             v_xor_b32 v26, s12, v39
             v_or3_b32 v24, v24, v25, v26
             v_or_b32 v24, v24, v27
             v_cmp_ne_u32 vcc, 0, v24""")
    A("H_p1j14:")
    spin_until(A, chk, payload, "pay")
    srd(A, 28, P_W2, P_W2 + 1, D * D * 2)
    A(f"""v_and_b32 v5, 15, v2
          v_lshlrev_b32 v5, 7, v5
          s_lshl_b32 s3, s2, 2
          s_add_u32 s3, s3, s18
          s_lshl_b32 s3, s3, 11
          buffer_load_dword v60, v5, s[28:31], s3 offen""")
    A(f"""v_add_f32 v32, v32, v36
          v_add_f32 v33, v34, v38
          v_mov_b32 v21, v22
          s_lshl_b32 s3, s18, 9
          s_add_u32 s3, s3, {L_ST}
          v_permlane32_swap_b32 v32, v33
          v_add_u32 v16, s3, v16
          v_add_f32 v32, v32, v33
          v_mov_b32 v33, v32""")
    ln_consts(A, 20, 24)
    A(f"""v_permlane16_swap_b32 v32, v33
          ds_write_b128 v16, v[20:23]
          v_add_f32 v32, v32, v33
          s_lshl_b32 s3, s18, 6
          s_add_u32 s3, s3, {L_CS}
          {dppadd(32, 8)}
          v_lshl_add_u32 v6, v6, 3, s3
          v_lshrrev_b32 v7, 5, v2
          v_lshl_add_u32 v6, v7, 2, v6
          ds_write_b32 v6, v32
          v_mov_b32 v5, {L_NON}
          ds_write_b32 v5, v19""")
    endit(1, True)
    A(f"""s_lshl_b32 s33, s17, 19
          s_lshl_b32 s37, s18, 13
          s_add_u32 s33, s33, s37
          s_add_u32 s33, s33, {WS_KV}
          s_lshl_b32 s34, s17, 11
          s_lshl_b32 s3, s18, 2
          s_add_u32 s34, s34, s3
          s_add_u32 s34, s34, {F_KV}
          s_lshr_b32 s21, s18, 1
          s_and_b32 s22, s18, 1""")
    A("""v_and_b32 v3, 15, v2
         v_add_u32 v5, s16, v3
         v_and_b32 v5, 15, v5
         v_lshlrev_b32 v17, 7, v5
         s_mov_b32 s35, 1
         s_mov_b32 s36, 0""")
    V = VM(A)
    kvpoll = f"buffer_load_dword v20, v17, {WS}, s34 offen sc1"
    def kv_ready():
        A("v_cmp_eq_u32 vcc, s12, v20")
        A("s_and_b32 s36, vcc_lo, 0xffff")
    def kv_issue(slot):
        Lr_ = A.label("kvr"); Lok = A.label("kvok")
        A(f"""s_andn2_b32 s3, s36, s35
              s_cbranch_scc1 {Lok}
              s_mov_b32 s62, 0x8000""")
        A(f"{Lr_}:")
        A(kvpoll)
        A("s_waitcnt vmcnt(0)")
        kv_ready()
        A(f"""s_andn2_b32 s3, s36, s35
              s_cbranch_scc1 {Lok}
              s_sleep 2
              s_sub_u32 s62, s62, 1
              s_cmp_lg_u32 s62, 0
              s_cbranch_scc1 {Lr_}
              s_andn2_b32 s3, 0xffff, s35""")
        A(f"{Lok}:")
        A(f"""s_ff1_i32_b32 s3, s3
              s_bitset1_b32 s35, s3
              s_add_u32 s3, s3, s16
              s_and_b32 s3, s3, 15
              s_add_u32 m0, s37, {slot}
              s_lshl_b32 s41, s3, 15
              s_add_u32 s41, s41, s33""")
        for i in range(8):
            if i == 4:
                A("s_add_u32 m0, m0, 4096"); A("s_add_u32 s41, s41, 4096")
            A(f"buffer_load_dwordx4 v8, {WS}, s41 offen offset:{(i&3)*1024} sc1 lds")
        V.note(8, "kv")
    ACC, XB, WB, C3B = 64, 128, 192, 224
    acc = lambda tb, nb: ACC + 4 * (tb * 4 + nb)
    A(f"""v_cmp_le_u32 vcc, 28, v2
          s_lshl_b32 s3, s16, 6
          s_lshl_b32 s41, s18, 4
          v_cndmask_b32 v5, 0, 1, vcc
          v_mul_u32_u24 v6, 28, v5
          v_sub_u32 v22, v2, v6
          v_mul_u32_u24 v6, 7168, v5
          v_lshl_add_u32 v30, v22, 4, v6
          v_cmp_le_u32 vcc, 56, v2
          v_mov_b32 v6, {OOB}
          s_add_u32 s3, s3, s41
          v_cndmask_b32 v30, v30, v6, vcc
          s_mul_i32 s47, s3, 7168
          s_mul_i32 s3, s17, 448
          s_add_u32 s47, s47, s3
          v_lshlrev_b32 v22, 5, v22
          s_lshl_b32 s3, s18, 1
          v_add_u32 v5, s3, v5
          v_mul_u32_u24 v5, 896, v5
          v_add_u32 v22, v22, v5
          v_add_u32 v22, {L_C3}, v22""")
    A(f"""v_lshrrev_b32 v5, 3, v2
          v_and_b32 v6, 7, v2
          v_and_b32 v7, 6, v5
          v_xor_b32 v7, v7, v6
          v_lshlrev_b32 v5, 11, v5
          v_lshl_add_u32 v24, v7, 4, v5
          s_lshl_b32 s3, s17, 7
          v_add_u32 v24, s3, v24
          v_add_u32 v25, {8*2048 - 1024}, v24
          v_add_u32 v26, {16*2048 - 2048}, v24
          v_add_u32 v27, {24*2048 - 3072}, v24
          v_lshrrev_b32 v5, 2, v3
          v_and_b32 v6, 3, v3
          v_lshl_add_u32 v7, v4, 2, v5
          v_bfe_u32 v5, v7, 1, 2
          v_lshlrev_b32 v7, 7, v7
          v_lshl_add_u32 v7, v6, 3, v7
          v_lshl_add_u32 v7, v5, 5, v7
          s_lshl_b32 s46, s18, 12
          s_add_u32 s38, s46, {L_W2W}
          s_lshl_b32 s3, s21, 12
          s_add_u32 s3, s3, {L_W2W}
          v_add_u32 v32, s3, v7
          v_xor_b32 v33, 32, v32
          v_xor_b32 v34, 64, v32
          v_xor_b32 v35, 96, v32
          s_lshl_b32 s43, s16, 18
          s_lshl_b32 s3, s21, 13
          s_add_u32 s43, s43, s3
          s_lshl_b32 s3, s22, 12
          s_add_u32 s43, s43, s3
          s_add_u32 s43, s43, {WS_H1}
          s_lshl_b32 s44, s18, 16
          s_lshl_b32 s3, s21, 11
          v_add_u32 v28, s3, v8
          v_xor_b32 v29, 2048, v28""")
    A("s_barrier")
    for i in range(0, 64, 2): A(f"v_mov_b64 {v(ACC+i,2)}, 0")
    for i in range(40, 48, 2): A(f"v_mov_b64 {v(i,2)}, 0")
    A(f"""v_lshlrev_b32 v21, 2, v2
          s_add_u32 s3, s16, 15
          s_and_b32 s3, s3, 15
          s_lshl_b32 s48, s3, 8
          s_add_u32 s48, s48, {F_H1}
          s_lshl_b32 s49, s16, 8
          s_add_u32 s49, s49, {F_H1}
          s_add_u32 s3, s16, 1
          s_and_b32 s3, s3, 15
          s_lshl_b32 s50, s3, 8
          s_add_u32 s50, s50, {F_H1}
          v_and_b32 v5, 31, v2
          v_lshlrev_b32 v23, 2, v5
          v_and_b32 v5, 7, v2
          v_lshlrev_b32 v31, 7, v5
          s_lshl_b32 s3, s2, 2
          s_add_u32 s3, s3, s18
          s_lshl_b32 s51, s3, 10""")
    srd(A, 28, P_W2, P_W2 + 1, D * D * 2)
    srd(A, 8, P_W3, P_W3 + 1, D * F * 2)
    srd(A, 52, P_W4, P_W4 + 1, F * D * 2)
    srd(A, 56, P_WO, P_WO + 1, D * D * 2)
    A(f"s_setprio {os.environ.get('HPRIO', '2')}")
    A("s_barrier")
    fstamp(A, "T")
    kv_issue(KVS)
    fstamp(A, "j0iss")
    V.op(kvpoll, "poll")
    V.wait("kv")
    fstamp(A, "j0land")
    A("s_barrier")
    fstamp(A, "B0")
    side = [0]
    def side_loads(Z):
        k = side[0]; side[0] += 1
        if k < 8:
            Z(f"buffer_load_dwordx4 {v(C3B+4*(k&1),4)}, v30, s[8:11], s47 offen")
            Z(f"s_add_u32 s47, s47, {2*7168}")
            V.note(1, "side")
        if k < 9:
            if k == 7: Z(f"s_sub_u32 s51, s51, {7 << 20}")
            Z(f"buffer_load_dword v60, v31, {'s[52:55]' if k < 7 else 's[56:59]'}, s51 offen")
            Z(f"s_add_u32 s51, s51, {1 << 20}")
            V.note(1, "side")
    def cs3_acc(k):
        for q in range(4):
            r = C3B + 4*(k&1) + q
            A(f"""v_lshlrev_b32 v5, 16, v{r}
                  v_and_b32 v6, v9, v{r}
                  v_add_f32 v{40+2*q}, v{40+2*q}, v5
                  v_add_f32 v{41+2*q}, v{41+2*q}, v6""")
    V.wait("poll"); kv_ready()
    kv_issue(0)
    V.op(kvpoll, "poll")
    V.wait("kv")
    fstamp(A, "j1land")
    A("s_barrier")
    fstamp(A, "B1")
    V.wait("poll"); kv_ready()
    kv_issue(KVS)
    V.op(kvpoll, "poll")
    side_loads(A)
    V.wait("kv")
    fstamp(A, "j2land")
    A("s_barrier")
    fstamp(A, "B2")
    V.wait("poll"); kv_ready()
    A("H_j3:")
    def ldh1():
        for i in range(3): A(f"buffer_load_dword v{18+i}, v21, {WS}, s{48+i} offen sc1")
    def chkh1():
        A("""v_xor_b32 v18, s12, v18
             v_xor_b32 v19, s12, v19
             v_xor_b32 v20, s12, v20
             v_or3_b32 v18, v18, v19, v20
             v_cmp_ne_u32 vcc, 0, v18""")
    def w2_w(Z, b):
        Z(f"s_add_u32 m0, s38, {b*16384}")
        Z("s_nop 0")
        for i in range(4): Z(f"buffer_load_dwordx4 v{24+i}, s[28:31], s44 offen offset:{i*1024} lds")
        Z(f"s_add_u32 s44, s44, {128*2048}")
        V.note(4, "w")
    def w2_x(Z, b):
        for st in range(2):
            for tb in range(4):
                Z(f"buffer_load_dwordx4 {v(XB+32*b+16*st+4*tb,4)}, v{28+(tb>>1)}, {WS}, s43 offen offset:{(tb&1)*1024} sc1")
            Z("s_add_u32 s43, s43, 16384")
        V.note(8, "x")
    def w2_loads(Z, b):
        w2_w(Z, b); w2_x(Z, b)
    kv_issue(0)
    w2_w(A, 0)
    ldh1(); V.note(3, "poll"); V.wait("poll")
    spin_until(A, chkh1, ldh1, "h1")
    fstamp(A, "h1ok")
    def w2_reads(b):
        for st in range(2):
            for nb in range(4):
                for e in range(2): A(f"ds_read_b64_tr_b16 {v(WB+16*st+4*nb+2*e,2)}, v{32+nb} offset:{b*16384 + st*8192 + e*2048}")
    def w2_mfma(Z, b):
        for st in range(2):
            for nb in range(4):
                for tb in range(4):
                    Z(f"v_mfma_f32_16x16x32_bf16 {v(acc(tb,nb),4)}, {v(WB+16*st+4*nb,4)}, {v(XB+32*b+16*st+4*tb,4)}, {v(acc(tb,nb),4)}")
    V.op(f"""s_lshl_b32 s41, s16, 9
          s_lshl_b32 s3, s18, 7
          s_add_u32 s41, s41, s3
          s_add_u32 s41, s41, {WS_G}
          buffer_load_dword v36, v23, {WS}, s41 offen sc1""", "g")
    w2_x(A, 0)
    side_loads(A)
    cs3_acc(0)
    V.wait("kv", "w")
    A("s_barrier")
    fstamp(A, "B3")
    for j in range(4, 11):
        b = (j - 4) & 1
        w2_reads(b)
        kv_issue(KVS if (j + 1) & 1 else 0)
        V.wait("x", lg=True)
        I = Asm(); M = Asm()
        w2_loads(I, 1 - b); side_loads(I)
        w2_mfma(M, b)
        interleave(A, I.lines, M.lines)
        V.wait("kv", "w")
        cs3_acc(j - 3)
        if j in (5, 6): fstamp(A, f"j{j}done")
        A("s_barrier")
        if j in (4, 5, 6): fstamp(A, f"B{j}")
    w2_reads(1)
    kv_issue(0)
    A(f"""s_add_u32 m0, s46, {L_XR}
          s_lshl_b32 s41, s17, 7""")
    for i in range(4): V.op(f"buffer_load_dwordx4 v{10+i}, s[24:27], s41 offen offset:{i*1024} lds", "xr")
    V.wait("x", lg=True)
    w2_mfma(A, 1)
    A(f"""s_mov_b32 exec_hi, 0x00ffffff
          ds_write_b128 v22, v[40:43]
          ds_write_b128 v22, v[44:47] offset:16
          s_mov_b32 exec_hi, -1
          s_lshl_b32 s3, s18, 7
          s_add_u32 s3, s3, {L_GT}
          v_add_u32 v5, s3, v23
          ds_write_b32 v5, v36
          s_add_u32 s3, s37, {L_W2X}
          v_add_u32 v18, s3, v8
          v_xor_b32 v19, 16384, v18
          s_lshl_b32 s3, s18, 6
          v_add_u32 v5, s3, v2
          v_lshlrev_b32 v31, 2, v5
          v_add_u32 v30, {L_C3}, v31""")
    for i in range(8): A(f"ds_write_b128 v18, {v(ACC+32+4*i,4)} offset:{i*1024}")
    A(f"""s_lshl_b32 s3, s22, 6
          s_lshl_b32 s42, s21, 5
          s_add_u32 s42, s42, s3
          v_add_u32 v5, s42, v3
          v_lshlrev_b32 v5, 7, v5
          v_lshrrev_b32 v6, 1, v3
          v_lshrrev_b32 v7, 1, v4
          v_xor_b32 v6, v6, v7
          v_lshl_add_u32 v5, v6, 4, v5
          v_and_b32 v7, 1, v4
          v_lshl_add_u32 v5, v7, 3, v5
          v_add_u32 v24, {L_XR}, v5
          v_xor_b32 v25, 32, v24
          v_xor_b32 v26, 64, v24
          v_xor_b32 v27, 96, v24""")
    endit(0, True)
    fstamp(A, "B11")
    for i in range(8): A(f"ds_read_b128 {v(96+4*i,4)}, v19 offset:{i*1024}")
    for tb in range(2):
        for nb in range(4): A(f"ds_read_b64 {v(128+8*tb+2*nb,2)}, v{24+nb} offset:{tb*2048}")
    kv_issue(KVS)
    A("s_waitcnt lgkmcnt(0)")
    for i in range(8): A(f"ds_read_b32 v{160+i}, v30 offset:{i*896}")
    A(f"""s_lshl_b32 s45, s16, 18
          s_lshl_b32 s3, s17, 14
          s_add_u32 s45, s45, s3
          s_lshl_b32 s3, s42, 6
          s_add_u32 s45, s45, s3
          s_add_u32 s45, s45, {WS_X1}
          s_add_u32 s47, s45, 8192""")
    for tb in range(2):
        sm, sq = 40 + 2*tb, 41 + 2*tb
        for nb in range(4):
            a = ACC + 4 * (tb * 4 + nb); xr = 128 + 8 * tb + 2 * nb
            for r in range(4): A(f"v_add_f32 v{a+r}, v{a+r}, v{a+r+32}")
            A(f"""v_lshlrev_b32 v5, 16, v{xr}
                  v_and_b32 v6, v9, v{xr}
                  v_lshlrev_b32 v7, 16, v{xr+1}
                  v_and_b32 v18, v9, v{xr+1}
                  v_add_f32 v{a}, v{a}, v5
                  v_add_f32 v{a+1}, v{a+1}, v6
                  v_add_f32 v{a+2}, v{a+2}, v7
                  v_add_f32 v{a+3}, v{a+3}, v18
                  v_cvt_pk_bf16_f32 v{xr}, v{a}, v{a+1}
                  v_cvt_pk_bf16_f32 v{xr+1}, v{a+2}, v{a+3}""")
        V.op(f"buffer_store_dwordx4 {v(128+8*tb,4)}, v8, {WS}, s45 offen offset:{tb*1024} sc1", "st")
        V.op(f"buffer_store_dwordx4 {v(132+8*tb,4)}, v8, {WS}, s47 offen offset:{tb*1024} sc1", "st")
        for i in range(8):
            r = 128 + 8*tb + i
            A(f"""v_lshlrev_b32 v5, 16, v{r}
                  v_and_b32 v6, v9, v{r}""")
            if i == 0:
                A(f"v_add_f32 v{sm}, v5, v6"); A(f"v_mul_f32 v{sq}, v5, v5")
            else:
                A(f"""v_add_f32 v{sm}, v{sm}, v5
                      v_fmac_f32 v{sq}, v5, v5
                      v_add_f32 v{sm}, v{sm}, v6""")
            A(f"v_fmac_f32 v{sq}, v6, v6")
    V.op(f"""s_lshl_b32 s41, s19, 10
          v_permlane32_swap_b32 v40, v41
          v_permlane32_swap_b32 v42, v43
          s_lshl_b32 s3, s42, 3
          v_add_f32 v40, v40, v41
          v_add_f32 v42, v42, v43
          s_add_u32 s41, s41, s3
          s_add_u32 s41, s41, {WS_ST}
          v_permlane16_swap_b32 v40, v42
          s_nop 0
          v_add_f32 v40, v40, v42
          buffer_store_dword v40, v21, {WS}, s41 offen sc1""", "st")
    V.wait("kv", lg=True)
    A("s_barrier")
    kv_issue(0)
    A(f"""s_lshl_b32 s45, s19, 4
          s_lshl_b32 s3, s18, 2
          s_add_u32 s45, s45, s3
          s_add_u32 s45, s45, {F_X1}""")
    V.wait("st")
    flag_store(A, 45); V.note(1, "st")
    fstamp(A, "x1flag")
    for i in range(1, 8): A(f"v_add_f32 v160, v160, v{160+i}")
    V.op(f"""s_mul_i32 s41, s16, {F*8}
          s_mul_i32 s3, s17, 1792
          s_add_u32 s41, s41, s3
          s_add_u32 s41, s41, {WS_CS3}
          v_cmp_gt_u32 vcc, 896, v31
          v_lshlrev_b32 v31, 1, v31
          v_mov_b32 v5, {OOB}
          v_mov_b32 v161, s12
          v_cndmask_b32 v5, v5, v31, vcc
          buffer_store_dwordx2 v[160:161], v5, {WS}, s41 offen sc1""", "st")
    for i in range(7):
        A(f"""v_add_u32 v5, {i*64}, v2
              v_mul_u32_u24 v6, 2341, v5
              v_lshrrev_b32 v6, 16, v6
              v_mul_u32_u24 v7, 28, v6
              v_sub_u32 v7, v5, v7
              v_bfe_u32 v5, v6, 2, 1
              v_lshlrev_b32 v5, 1, v5
              v_xor_b32 v7, v7, v5
              v_mul_u32_u24 v6, 7168, v6
              v_lshl_add_u32 v{10+i}, v7, 4, v6""")
        if i & 3: A(f"v_subrev_u32 v{10+i}, {(i&3)*1024}, v{10+i}")
    srd(A, 28, P_W3, P_W3 + 1, D * F * 2)
    A(f"""s_lshl_b32 s43, s16, 18
          s_add_u32 s43, s43, s46
          s_add_u32 s43, s43, {WS_X1}
          s_mul_i32 s44, s18, {16*7168}
          s_mul_i32 s3, s17, 448
          s_add_u32 s44, s44, s3
          s_mul_i32 s38, s18, 7168
          s_add_u32 s38, s38, 16384
          s_lshl_b32 s48, s16, 8
          s_add_u32 s48, s48, {F_X1}""")
    V.wait("kv")
    A("s_barrier")
    r3a, r3b = [int(x) for x in os.environ.get("ROT3", "2,0").split(",")]
    A(f"""s_mul_i32 s50, s16, {r3a}
          s_mul_i32 s3, s17, {r3b}
          s_add_u32 s50, s50, s3
          s_and_b32 s50, s50, 15
          s_mov_b32 s51, s50""")
    def p3_x(slot):
        A(f"s_add_u32 m0, s46, {slot}")
        A("s_lshl_b32 s41, s50, 14")
        A("s_add_u32 s41, s41, s43")
        for i in range(4): A(f"buffer_load_dwordx4 v8, {WS}, s41 offen offset:{i*1024} sc1 lds")
        A("s_add_u32 s50, s50, 1"); A("s_and_b32 s50, s50, 15")
    def p3_w(slot):
        A(f"s_add_u32 m0, s38, {slot}")
        A(f"s_mul_i32 s41, s51, {64*7168}")
        A("s_add_u32 s41, s41, s44")
        for i in range(7):
            if i == 4:
                A("s_add_u32 m0, m0, 4096"); A("s_add_u32 s51, s51, 1")
            A(f"buffer_load_dwordx4 v{10+i}, s[28:31], s41 offen offset:{(i&3)*1024} lds")
        A("s_and_b32 s51, s51, 15")
    def p3_issue(slot):
        p3_x(slot); p3_w(slot)
    kv_issue(KVS)
    p3_w(L3 + S3)
    k = code_touch(A, "C_attend", "C_p3end", 1)
    endit(7 + k)
    ld = lambda: A(f"buffer_load_dword v20, v21, {WS}, s48 offen sc1")
    ld()
    p3_w(L3 + 2 * S3)
    A("s_waitcnt vmcnt(7)")
    spin_until(A, lambda: A("v_cmp_ne_u32 vcc, s12, v20"), ld, "x1")
    fstamp(A, "x1ok")
    p3_x(L3 + S3); p3_x(L3 + 2 * S3)
    A("s_barrier")
    A(f"""s_lshl_b32 s41, s16, 14
          s_lshl_b32 s3, s18, 8
          s_add_u32 s41, s41, s3
          s_add_u32 s41, s41, {WS_ST}""")
    for i in range(16):
        A(f"buffer_load_dword v{64+i}, v21, {WS}, s41 offen offset:{(i&3)*1024} sc1")
        if i & 3 == 3: A("s_add_u32 s41, s41, 4096")
    A(f"""s_lshl_b32 s3, s18, 6
          v_add_u32 v5, s3, v2
          v_min_u32 v5, 223, v5
          v_lshlrev_b32 v22, 3, v5
          s_mul_i32 s49, s17, 1792
          s_add_u32 s49, s49, {WS_CS3}""")
    def ldcs():
        A("s_mov_b32 s41, s49")
        for i in range(16):
            A(f"buffer_load_dwordx2 {v(96+2*i,2)}, v22, {WS}, s41 offen sc1")
            if i < 15: A(f"s_add_u32 s41, s41, {F*8}")
    ldcs()
    endit(36)
    p3_issue(L3)
    endit(11)
    p3_issue(L3 + S3)
    def chkcs():
        A("v_xor_b32 v5, s12, v97")
        for i in range(1, 16):
            A(f"v_xor_b32 v6, s12, v{97+2*i}"); A("v_or_b32 v5, v5, v6")
        A("v_cmp_ne_u32 vcc, 0, v5")
    spin_until(A, chkcs, ldcs, "cs3")
    for i in range(1, 16): A(f"v_add_f32 v64, v64, v{64+i}")
    for i in range(1, 16): A(f"v_add_f32 v96, v96, v{96+2*i}")
    A(f"""v_mul_f32 v64, {hexf(1.0/1024)}, v64
          v_lshrrev_b32 v22, 1, v22
          v_mov_b32 v65, v64
          v_add_u32 v22, {L_CS}, v22
          v_sub_f32 v37, 1.0, v36
          v_permlane32_swap_b32 v64, v65
          ds_write_b32 v22, v96
          v_cvt_pk_bf16_f32 v37, v37, v37
          v_and_b32 v37, v9, v37
          v_max_f32 v37, {hexf(2.0**-60)}, v37""")
    ln_consts(A, 64, 5, 37)
    A(f"""s_lshl_b32 s3, s18, 9
          s_add_u32 s3, s3, {L_ST}
          v_lshl_add_u32 v5, v23, 2, s3
          ds_write_b128 v5, v[64:67]""")
    endit(11, True)
    A(f"s_mov_b32 s45, {L3 + 2*S3}")
    A("s_mov_b32 s40, 12")
    L = A.label("p3loop")
    A(f"{L}:")
    p3_issue("s45")
    A(f"""s_add_u32 s45, s45, {S3}
          s_cmp_eq_u32 s45, {L3 + 3*S3}
          s_cselect_b32 s45, {L3}, s45
          s_waitcnt vmcnt(11)
          s_barrier
          s_sub_u32 s40, s40, 1
          s_cmp_lg_u32 s40, 0
          s_cbranch_scc1 {L}""")
    A(f"""s_lshl_b32 s48, s16, 8
          s_add_u32 s48, s48, {F_O}""")
    ld()
    A(f"""v_lshrrev_b32 v5, 4, v2
          v_and_b32 v6, 15, v2
          v_lshlrev_b32 v7, 1, v5
          v_xor_b32 v7, v7, v6
          s_lshl_b32 s3, s18, 4
          v_add_u32 v5, s3, v5
          v_lshlrev_b32 v5, 11, v5
          v_lshl_add_u32 v11, v7, 4, v5
          s_and_b32 s3, s17, 7
          s_lshl_b32 s3, s3, 8
          v_add_u32 v11, s3, v11
          v_xor_b32 v12, 128, v11
          v_add_u32 v12, {4*2048 - 1024}, v12
          v_add_u32 v13, {8*2048 - 2048}, v11
          v_add_u32 v14, {8*2048 - 2048}, v12
          s_lshr_b32 s21, s17, 3
          s_mul_i32 s33, s16, {HO_PANEL}
          s_add_u32 s33, s33, s46
          s_add_u32 s33, s33, {WS_HO}
          s_lshl_b32 s3, s21, 17
          s_add_u32 s43, s33, s3
          s_add_u32 s43, s43, {112*8192}
          s_lshl_b32 s44, s21, 20
          s_add_u32 s38, s46, 16384""")
    srd(A, 28, P_WO, P_WO + 1, D * D * 2)
    k = code_touch(A, "C_p3end", "C_p4end", 1)
    endit(k)
    spin_until(A, lambda: A("v_cmp_ne_u32 vcc, s12, v20"), ld, "o")
    A("s_barrier")
    fstamp(A, "p3B15")
    def p4_issue(slot):
        A(f"s_add_u32 m0, s46, {slot}")
        A("s_nop 0")
        for i in range(4): A(f"buffer_load_dwordx4 v8, {WS}, s43 offen offset:{i*1024} sc1 lds")
        A(f"s_add_u32 m0, s38, {slot}")
        A("s_add_u32 s43, s43, 16384")
        for i in range(4): A(f"buffer_load_dwordx4 v{11+i}, s[28:31], s44 offen offset:{i*1024} lds")
        A(f"s_add_u32 s44, s44, {64*2048}")
    for j in range(3): p4_issue(j * S4)
    A(f"""s_lshl_b32 s48, s16, 8
          s_lshl_b32 s3, s21, 7
          s_add_u32 s48, s48, s3
          s_add_u32 s48, s48, {F_H2}
          v_and_b32 v21, 31, v2
          v_lshlrev_b32 v21, 2, v21""")
    endit(16)
    def p4_loop(n, name):
        L = A.label(name)
        A(f"s_mov_b32 s40, {n}")
        A(f"{L}:")
        p4_issue("s45")
        A(f"""s_add_u32 s45, s45, {S4}
              s_and_b32 s45, s45, {4*S4 - 1}
              s_waitcnt vmcnt(16)
              s_barrier
              s_sub_u32 s40, s40, 1
              s_cmp_lg_u32 s40, 0
              s_cbranch_scc1 {L}""")
    A(f"s_mov_b32 s45, {3*S4}")
    p4_loop(5, "p4a")
    fstamp(A, "p4j5")
    ld()
    srd(A, 28, P_W4, P_W4 + 1, F * D * 2)
    A(f"""s_mul_i32 s3, s21, {56*8192}
          s_add_u32 s43, s33, s3
          s_mul_i32 s44, s21, {1792*2048}
          s_waitcnt vmcnt(0)""")
    Lfast = A.label("h2fast"); Lgo = A.label("h2go")
    A("v_cmp_ne_u32 vcc, s12, v20")
    A(f"s_cbranch_vccz {Lfast}")
    A("s_barrier")
    A("s_barrier")
    ld(); A("s_waitcnt vmcnt(0)")
    spin_until(A, lambda: A("v_cmp_ne_u32 vcc, s12, v20"), ld, "h2")
    for k in range(3):
        p4_issue(k * S4)
    A(f"""s_mov_b32 s45, {3*S4}
          s_waitcnt vmcnt(16)
          s_barrier
          s_mov_b32 s41, 25
          s_branch {Lgo}""")
    A(f"{Lfast}:")
    A("s_mov_b32 s41, 28")
    A(f"{Lgo}:")
    fstamp(A, "h2ok")
    p4_loop("s41", "p4b")
    k = code_touch(A, "C_p4end", "C_slow", 1)
    endit(8 + k); endit(k)
    A("s_barrier")
    fstamp(A, "end")
    fstamp_flush(A, 1)

def compute(A):
    ROLE[0] = 0
    ACC, XB0, WB0 = 128, 64, 96
    acc = lambda tb, nb: ACC + 4 * (tb * 8 + nb)
    XB = lambda p, tb: XB0 + 16 * p + 4 * tb
    WB = lambda nb: WB0 + 4 * nb
    if PROF: A("v_mov_b64 v[62:63], 0")
    A("""s_lshr_b32 s19, s18, 1
         s_and_b32 s20, s18, 1
         v_and_b32 v3, 15, v2
         v_lshrrev_b32 v4, 4, v2""")
    A("""s_lshl_b32 s3, s19, 6
         v_add_u32 v5, s3, v3
         v_lshlrev_b32 v5, 7, v5
         v_lshrrev_b32 v6, 1, v3
         v_xor_b32 v6, v6, v4
         v_lshlrev_b32 v7, 4, v6
         v_add_u32 v14, v5, v7
         v_xor_b32 v15, 64, v14""")
    A("""v_lshrrev_b32 v5, 2, v3
         v_and_b32 v6, 3, v3
         v_lshl_add_u32 v7, v4, 3, v5
         v_lshlrev_b32 v7, 7, v7
         v_lshl_add_u32 v7, v6, 3, v7
         v_lshrrev_b32 v8, 1, v5
         v_and_b32 v9, 1, v4
         v_lshl_or_b32 v8, v9, 1, v8
         s_lshl_b32 s3, s20, 1
         v_xor_b32 v8, s3, v8
         v_lshl_add_u32 v16, v8, 5, v7
         v_xor_b32 v17, 32, v16""")
    A("""v_mov_b32 v10, v14
         v_mov_b32 v11, v15
         v_mov_b32 v12, v16
         v_mov_b32 v13, v17
         s_mov_b32 s21, 0""")
    Lnn = A.label("nononce")
    A(f"""s_memrealtime s[28:29]
          s_waitcnt lgkmcnt(0)
          s_or_b32 s3, s2, s18
          s_cmp_lg_u32 s3, 0
          s_cbranch_scc1 {Lnn}""")
    srd(A, 24, P_DBG, P_DBG + 1, 4)
    A(f"""s_or_b32 s28, s28, 1
          v_mov_b32 v5, s28
          v_lshlrev_b32 v6, 2, v2
          buffer_store_dword v5, v6, s[24:27], 0 offen sc1""")
    A(f"{Lnn}:")
    srd(A, 4, P_WS, P_WS + 1, WS_END)
    fstamp(A, "start")
    for i in range(0, 128, 2): A(f"v_mov_b64 {v(ACC+i,2)}, 0")
    A(f"""v_and_b32 v5, 1, v4
          v_lshrrev_b32 v6, 1, v4
          v_lshlrev_b32 v5, 10, v5
          v_lshl_add_u32 v5, v6, 9, v5
          v_lshrrev_b32 v6, 2, v3
          v_and_b32 v7, 3, v3
          v_lshl_add_u32 v6, v6, 3, v7
          v_lshl_add_u32 v21, v6, 4, v5
          v_lshlrev_b32 v5, 9, v4
          v_lshrrev_b32 v6, 3, v3
          v_and_b32 v7, 7, v3
          v_lshl_add_u32 v6, v6, 4, v7
          v_lshl_add_u32 v22, v6, 4, v5
          s_lshl_b32 s3, s20, 14
          s_lshl_b32 s22, s19, 13
          s_add_u32 s3, s3, s22
          v_add_u32 v21, s3, v21
          v_add_u32 v22, s3, v22
          s_lshl_b32 s3, s19, 10
          v_lshl_add_u32 v18, v3, 4, s3
          v_add_u32 v18, {L_ST}, v18
          s_lshl_b32 s3, s20, 7
          v_lshl_add_u32 v19, v4, 4, s3
          v_add_u32 v19, {L_CS}, v19
          v_mov_b32 v20, {L_NON}
          s_mov_b32 s38, {hexf(QSCALE)}
          s_lshl_b32 s22, s13, 1
          s_add_u32 s22, s22, s20
          s_lshr_b32 s3, s22, 3
          s_lshr_b32 s32, s3, 1
          s_add_u32 s32, s32, 1
          s_sub_u32 s33, 0, s32
          s_and_b32 s3, s3, 1
          s_cmp_eq_u32 s3, 1
          s_cselect_b32 s32, s33, s32
          s_lshl_b32 s33, s16, 7
          s_lshl_b32 s3, s19, 6
          s_add_u32 s33, s33, s3
          s_add_u32 s33, s33, s32
          s_lshl_b32 s34, s22, 13
          s_add_u32 s34, s34, {WS_H1}
          v_add_u32 v50, s33, v3
          v_and_b32 v49, 15, v50
          v_lshlrev_b32 v49, 4, v49
          v_lshl_add_u32 v49, v4, 8, v49
          v_cmp_gt_u32 vcc, 2048, v50
          s_mov_b64 s[42:43], vcc""")
    for tb in range(4):
        A(f"""v_bfe_u32 v51, v50, 7, 4
              v_bfe_u32 v48, v50, 4, 3
              v_lshl_add_u32 v51, v51, 18, v49
              v_lshl_add_u32 v{56+tb}, v48, 10, v51""")
        if tb < 3: A("v_add_u32 v50, 16, v50")
    A("""v_cmp_gt_u32 vcc, 2048, v50
         s_mov_b64 s[44:45], vcc
         s_lshl_b32 s23, s16, 8
         s_lshl_b32 s3, s17, 4
         s_add_u32 s23, s23, s3
         s_lshl_b32 s3, s18, 2
         s_add_u32 s23, s23, s3""")
    A(f"""s_lshl_b32 s3, s17, 4
          s_add_u32 s3, s3, s16
          s_lshl_b32 s46, s3, 15
          s_add_u32 s46, s46, {WS_KV}
          s_add_u32 s47, s46, 4096
          s_lshl_b32 s48, s3, 7
          s_lshl_b32 s3, s20, 3
          s_add_u32 s48, s48, s3
          s_lshl_b32 s3, s19, 2
          s_add_u32 s48, s48, s3
          s_add_u32 s48, s48, {F_KV}
          s_mov_b32 s49, 0""")
    def try_flag(Z, soff, block=False):
        Ls = A.label("tf")
        if block:
            Z("s_cmp_lg_u32 s49, 0")
        else:
            Z("s_getreg_b32 s3, hwreg(HW_REG_IB_STS)")
            Z("s_and_b32 s3, s3, 0xc0000f")
            Z("s_or_b32 s3, s3, s49")
        Z(f"s_cbranch_scc1 {Ls}")
        Z("s_waitcnt vmcnt(0)")
        flag_store(Z, soff)
        Z("s_mov_b32 s49, 1")
        Z(f"{Ls}:")
    xread = lambda st, tb, dst: f"ds_read_b128 {v(dst,4)}, v{10+st} offset:{tb*2048}"
    wread = lambda st, nb, e, dst: f"ds_read_b64_tr_b16 {v(dst,2)}, v{12+(nb&1)} offset:{16384 + (nb>>1)*8192 + st*4096 + e*512}"
    def advance():
        return [f"s_add_u32 s21, s21, {S1}", f"s_cmp_eq_u32 s21, {3*S1}", "s_cselect_b32 s21, 0, s21",
                "v_add_u32 v10, s21, v14", "v_add_u32 v11, s21, v15", "v_add_u32 v12, s21, v16", "v_add_u32 v13, s21, v17"]
    A("s_barrier")
    fstamp(A, "P")
    compute_loop(A, 4, 8, 2, 16, acc, XB, WB, xread, wread, advance, swapped=(4, 5), name="p1c")
    A("C_p1end:")
    fstamp(A, "p1end")
    SB = lambda i: 64 + 16 * (i & 3)
    O = lambda q: 128 + 16 * q
    Lr = lambda q: 160 + 4 * q
    Q = lambda q, b: 168 + 8 * q + 4 * b
    KB = lambda p, b: 184 + 8 * p + 4 * b
    VB = lambda p, b: 200 + 8 * p + 4 * b
    ONES, IDX, VBASE, VL16, H1P = 216, 220, 10, 11, 224
    A("s_waitcnt lgkmcnt(0)")
    for tb in range(4): A(f"ds_read_b128 {v(24+4*tb,4)}, v18 offset:{tb*256}")
    A("ds_read_b128 v[40:43], v19")
    A("ds_read_b128 v[44:47], v19 offset:64")
    A("ds_read_b32 v20, v20")
    def pack(t, a0, a1):
        A(f"v_cvt_pk_bf16_f32 v{t}, v{a0}, v{a0+1}"); A(f"v_cvt_pk_bf16_f32 v{t+1}, v{a0+2}, v{a0+3}")
        A(f"v_cvt_pk_bf16_f32 v{t+2}, v{a1}, v{a1+1}"); A(f"v_cvt_pk_bf16_f32 v{t+3}, v{a1+2}, v{a1+3}")
    t = 64
    for tb in range(4):
        pack(t, acc(tb, 2), acc(tb, 3))
        A(f"ds_write_b128 v21, {v(t,4)} offset:{(tb>>1)*4096 + (tb&1)*64}")
        A(f"buffer_store_dwordx4 {v(t,4)}, v21, {WS}, s{46 + (tb>>1)} offen offset:{(tb&1)*64} sc1"); t += 4
    for u in range(2):
        for nbv in range(2):
            pack(t, acc(2*u, 4+nbv), acc(2*u+1, 4+nbv))
            A(f"ds_write_b128 v22, {v(t,4)} offset:{u*4096 + 2048 + nbv*128}")
            A(f"buffer_store_dwordx4 {v(t,4)}, v22, {WS}, s{46 + u} offen offset:{2048 + nbv*128} sc1"); t += 4
    A("s_waitcnt lgkmcnt(0)")
    A("s_barrier")
    A("v_readfirstlane_b32 s12, v20")
    for tb in range(4):
        a0 = acc(tb, 0)
        for r in range(0, 8, 2): A(f"v_pk_mul_f32 {v(a0+r,2)}, {v(a0+r,2)}, s[38:39] op_sel_hi:[1,0]")
        pack(Q(tb >> 1, tb & 1), a0, a0 + 4)
    for tb in range(4):
        a0 = acc(tb, 6); t = H1P + 4 * tb
        gelu_pk(A, [a0 + 2*i for i in range(4)], [40 + 2*i for i in range(4)], 24 + 4*tb, [48 + 2*i for i in range(4)], [t + i for i in range(4)])
        if tb in (0, 3):
            for r in range(4): A(f"v_cndmask_b32 v{t+r}, 0, v{t+r}, {'s[42:43]' if tb == 0 else 's[44:45]'}")
        try_flag(A, 48)
    for q in range(2):
        for i in range(4): A(f"v_permlane16_swap_b32 v{Q(q,0)+i}, v{Q(q,1)+i}")
    A(f"""v_lshlrev_b32 v{VL16}, 4, v2
          s_lshl_b32 s3, s20, 14
          v_add_u32 v{VBASE}, s3, v{VL16}""")
    rdK = lambda t: [Item(f"ds_read_b128 {v(KB(t&1,b),4)}, v{VBASE} offset:{(t&3)*4096 + b*1024}", gives=("K", t&1, b)) for b in range(2)]
    rdV = lambda t: [Item(f"ds_read_b128 {v(VB(t&1,b),4)}, v{VBASE} offset:{(t&3)*4096 + 2048 + b*1024}", gives=("V", t&1, b)) for b in range(2)]
    pre = [Item("", gives=("V", 1, 0)), Item("", gives=("V", 1, 1))] + rdK(0) + rdV(0)
    for it in pre[2:]: A(it.text)
    A(f"""v_and_b32 v5, 7, v2
          v_cmp_eq_u32 vcc, 0, v5
          v_cmp_eq_u32 s[42:43], 4, v5
          v_mov_b32 v5, 0x3f803f80
          v_mov_b32 v{IDX}, 0xdddddddd
          v_cndmask_b32 v{ONES}, 0, v5, vcc
          v_cndmask_b32 v{ONES+1}, 0, v5, vcc
          v_cndmask_b32 v{ONES+2}, 0, v5, s[42:43]
          v_cndmask_b32 v{ONES+3}, 0, v5, s[42:43]""")
    for i in range(0, 40, 2): A(f"v_mov_b64 {v(128+i,2)}, 0")
    for i in range(0, 16, 2): A(f"v_mov_b64 {v(SB(3)+i,2)}, 0")
    for i in range(0, 8, 2): A(f"v_mov_b64 {v(VB(1,0)+i,2)}, 0")
    def qk(u):
        t, q = u >> 1, u & 1
        d = SB(u)
        return [Item(f"v_mfma_f32_32x32x16_bf16 {v(d,16)}, {v(KB(t&1,0),4)}, {v(Q(q,0),4)}, 0", needs=[("K", t&1, 0), ("K", t&1, 1)]),
                Item(f"v_mfma_f32_32x32x16_bf16 {v(d,16)}, {v(KB(t&1,1),4)}, {v(Q(q,1),4)}, {v(d,16)}")]
    def pv(u, need=True):
        t, q = u >> 1, u & 1
        d = SB(u)
        r = []
        for b in range(2):
            r.append(Item(f"v_smfmac_f32_32x32x32_bf16 {v(O(q),16)}, {v(VB(t&1,b),4)}, {v(d+8*b,8)}, v{IDX}", needs=[("V", t&1, b)] if need else []))
            r.append(Item(f"v_smfmac_f32_16x16x64_bf16 {v(Lr(q),4)}, {v(ONES,4)}, {v(d+8*b,8)}, v{IDX}"))
        return r
    A("s_waitcnt lgkmcnt(2)")
    for it in qk(0): A(it.text)
    fstamp(A, "att0")
    A("s_nop 9")
    body = []
    for u in range(8):
        e = [Item(f"v_exp_f32 v{SB(u)+i}, v{SB(u)+i}") for i in range(16)]
        m = qk(u + 1) + pv(u - 1)
        t1 = (u >> 1) + 1
        extra = rdK(t1) if (u & 1) == 0 else rdV(t1)
        if u == 5: extra += [Item(f"v_xor_b32 v{VBASE}, {KVS}, v{VBASE}")]
        if u == 7: extra += [Item("s_sub_u32 s40, s40, 1"), Item("s_cmp_lg_u32 s40, 0")]
        cnt = [3, 3, 3, 1, 3, 3]
        k = 0
        for mi in range(6):
            body.append(m[mi])
            if mi == 0 and u == 6: body.append(Item("s_barrier", drain=True))
            if extra: body.append(extra.pop(0))
            for j in range(cnt[mi]):
                body.append(e[k]); k += 1
    lines = insert_lgkm_waits(pre, body, maxcnt=15)
    nq = 0
    for l in lines:
        if l.startswith("s_barrier"): try_flag(A, 48, block=True)
        if l.startswith(("s_sub_u32 s40", "s_cmp_lg_u32 s40")): continue
        A(l)
        if l.startswith("v_mfma") and l.endswith(", 0"):
            nq += 1
            if nq <= 6: try_flag(A, 48)
    for tb in range(4): A(f"buffer_store_dwordx4 {v(H1P+4*tb,4)}, v{56+tb}, {WS}, s34 offen sc1")
    fstamp(A, "st0end")
    L = A.label("aloop"); Lx = A.label("aexit")
    A("s_mov_b32 s40, 1")
    A("s_mov_b32 s41, 14")
    A(f"{L}:")
    for l in lines: A(l)
    A(f"s_cbranch_scc1 {L}")
    A(f"""s_cmp_eq_u32 s41, 0
          s_cbranch_scc1 {Lx}
          s_add_u32 s3, s23, {F_H1}
          s_waitcnt vmcnt(0)""")
    flag_store(A, 3)
    fstamp(A, "st1end")
    A(f"""s_mov_b32 s40, s41
          s_mov_b32 s41, 0
          s_branch {L}""")
    A(f"{Lx}:")
    A("C_attend:")
    for it in pv(7, False): A(it.text)
    fstamp(A, "attend")
    A(f"""v_and_b32 v5, 31, v2
          s_lshl_b32 s3, s19, 8
          s_add_u32 s3, s3, {L_GT}
          v_lshl_add_u32 v5, v5, 2, s3
          ds_read_b32 v12, v5
          ds_read_b32 v13, v5 offset:128
          s_mul_i32 s28, s16, {HO_PANEL}
          s_add_u32 s28, s28, {WS_HO}
          s_lshl_b32 s3, s17, 1
          s_add_u32 s3, s3, s20
          s_add_u32 s3, s3, 112
          s_lshl_b32 s3, s3, 13
          s_add_u32 s29, s28, s3
          s_lshl_b32 s3, s19, 12
          s_add_u32 s29, s29, s3
          v_bfe_u32 v6, v2, 4, 1
          v_lshlrev_b32 v6, 10, v6
          v_lshl_add_u32 v6, v3, 4, v6
          v_lshrrev_b32 v7, 5, v2
          v_lshl_add_u32 v16, v7, 8, v6""")
    Lslow = A.label("slow"); Lfin = A.label("fin")
    A(f"""v_min_f32 v8, v{Lr(0)}, v{Lr(1)}
          v_max_f32 v5, v{Lr(0)}, v{Lr(1)}
          v_pk_mul_f32 v[6:7], v[128:129], 0 op_sel_hi:[1,0]""")
    for i in range(2, 32, 2): A(f"v_pk_fma_f32 v[6:7], {v(128+i,2)}, 0, v[6:7] op_sel_hi:[1,0,1]")
    A(f"""v_add_f32 v7, v6, v7
          v_fmac_f32 v7, 0, v{Lr(0)}
          v_fmac_f32 v7, 0, v{Lr(1)}
          v_cmp_le_f32 vcc, {hexf(2.0**-20)}, v8
          s_mov_b64 s[44:45], vcc
          v_cmp_ge_f32 vcc, {hexf(2.0**60)}, v5
          s_and_b64 s[44:45], s[44:45], vcc
          v_cmp_eq_f32 vcc, 0, v7
          s_and_b64 s[44:45], s[44:45], vcc
          s_cmp_eq_u64 s[44:45], -1""")
    if "forceslow" in EXP: A(f"s_branch {Lslow}")
    A(f"s_cbranch_scc0 {Lslow}")
    A(f"{Lfin}:")
    A(f"""v_rcp_f32 v6, v{Lr(0)}
          v_rcp_f32 v7, v{Lr(1)}
          s_waitcnt lgkmcnt(0)
          v_mul_f32 v6, v6, v12
          v_mul_f32 v7, v7, v13""")
    for q in range(2):
        for i in range(0, 16, 2): A(f"v_pk_mul_f32 {v(O(q)+i,2)}, {v(O(q)+i,2)}, v[6:7] op_sel:[0,{q}] op_sel_hi:[1,{q}]")
        for b in range(2):
            t = 32 + 8 * q + 4 * b
            for i in range(4): A(f"v_cvt_pk_bf16_f32 v{t+i}, v{O(q)+8*b+2*i}, v{O(q)+8*b+2*i+1}")
            A(f"buffer_store_dwordx4 {v(t,4)}, v16, {WS}, s29 offen offset:{q*2048 + b*512} sc1")
    acc = lambda tb, nb: ACC + 4 * (tb * 7 + nb)
    A(f"""s_lshl_b32 s3, s19, 12
          v_add_u32 v14, s3, v{VL16}
          v_mov_b32 v9, v{VL16}
          v_lshrrev_b32 v5, 2, v3
          v_and_b32 v6, 3, v3
          v_lshl_add_u32 v7, v4, 2, v5
          v_mul_u32_u24 v7, 448, v7
          v_add_u32 v7, 16384, v7
          v_and_b32 v8, 1, v4
          v_lshl_add_u32 v5, v6, 3, v7
          s_lshl_b32 s3, s20, 8
          v_add_u32 v5, s3, v5
          v_lshl_add_u32 v15, v8, 5, v5
          v_xor_b32 v18, 1, v8
          v_lshl_add_u32 v18, v18, 5, v5
          v_and_b32 v5, 1, v6
          v_xor_b32 v5, v5, v8
          v_lshl_add_u32 v7, v5, 5, v7
          v_lshrrev_b32 v5, 1, v6
          v_lshl_add_u32 v7, v5, 3, v7
          s_lshl_b32 s3, s20, 4
          s_add_u32 s3, s3, 192
          v_add_u32 v17, s3, v7
          v_mov_b32 v16, v18
          s_mov_b32 s21, {L3 + S3}""")
    for i in range(4): A(f"v_add_u32 v{10+i}, s21, v{14+i}")
    for i in range(0, 112, 2): A(f"v_mov_b64 {v(ACC+i,2)}, 0")
    xread = lambda st, tb, dst: f"ds_read_b128 {v(dst,4)}, v10 offset:{st*8192 + tb*1024}"
    wread = lambda st, nb, e, dst: f"ds_read_b64_tr_b16 {v(dst,2)}, v{13 if nb == 6 else 11+(nb&1)} offset:{(0 if nb == 6 else (nb>>1)*64) + (st*32 + e*16)*448}"
    def advance():
        return [f"s_add_u32 s21, s21, {S3}", f"s_cmp_eq_u32 s21, {L3 + 3*S3}", f"s_cselect_b32 s21, {L3}, s21"] + [f"v_add_u32 v{10+i}, s21, v{14+i}" for i in range(4)]
    fstamp(A, "p3rdy")
    A("s_barrier")
    fstamp(A, "P3")
    def flagO():
        A(f"""s_add_u32 s3, s23, {F_O}
              s_waitcnt vmcnt(0)""")
        flag_store(A, 3)
    compute_loop(A, 4, 7, 2, 16, acc, XB, WB, xread, wread, advance, name="p3c", once=(3, flagO))
    A("C_p3end:")
    fstamp(A, "p3end")
    A(f"""s_lshl_b32 s3, s19, 10
          v_lshl_add_u32 v5, v3, 4, s3
          v_add_u32 v5, {L_ST}, v5
          s_lshl_b32 s3, s20, 9
          v_lshl_add_u32 v6, v4, 4, s3
          v_add_u32 v6, {L_CS}, v6
          v_and_b32 v7, 1, v4
          v_lshlrev_b32 v7, 6, v7
          v_lshrrev_b32 v8, 1, v4
          v_lshl_add_u32 v7, v8, 4, v7
          s_lshl_b32 s3, s20, 5
          s_add_u32 s3, s3, {L_CS + 384}
          v_add_u32 v7, s3, v7
          s_waitcnt lgkmcnt(0)""")
    for tb in range(4): A(f"ds_read_b128 {v(16+4*tb,4)}, v5 offset:{tb*256}")
    for nb in range(6): A(f"ds_read_b128 {v(32+4*nb,4)}, v6 offset:{nb*64}")
    A("ds_read_b128 v[56:59], v7")
    A(f"""s_mul_i32 s29, s17, {7*8192}
          s_add_u32 s29, s29, s28
          s_lshl_b32 s3, s19, 12
          s_add_u32 s29, s29, s3
          s_add_u32 s33, s29, {3*8192}
          s_lshl_b32 s3, s20, 9
          s_add_u32 s33, s33, s3
          s_lshl_b32 s3, s20, 15
          s_add_u32 s29, s29, s3
          s_add_u32 s30, s29, 8192
          s_add_u32 s31, s29, 16384
          v_and_b32 v5, 1, v4
          v_lshlrev_b32 v5, 10, v5
          v_lshl_add_u32 v5, v8, 8, v5
          v_lshl_add_u32 v8, v3, 4, v5
          s_waitcnt lgkmcnt(0)""")
    k = 0
    for tb in range(4):
        st = 16 + 4 * tb
        for pr in range(3):
            a0 = acc(tb, 2 * pr); o = 72 + 4 * (k % 6); k += 1
            gelu_pk(A, [a0 + 2*i for i in range(4)], [32 + 8*pr + 2*i for i in range(4)], st, [64 + 2*i for i in range(4)], [o + i for i in range(4)])
            A(f"buffer_store_dwordx4 {v(o,4)}, v9, {WS}, s{29+pr} offen offset:{tb*1024} sc1")
        a0 = acc(tb, 6); o = 96 + 4 * (tb >> 1) + 2 * (tb & 1)
        gelu_pk(A, [a0, a0 + 2], [56, 58], st, [64, 66], [o, o + 1])
        if tb & 1:
            o = 96 + 4 * (tb >> 1)
            A(f"""s_nop 1
                  v_permlane16_swap_b32 v{o}, v{o+2}
                  v_permlane16_swap_b32 v{o+1}, v{o+3}
                  buffer_store_dwordx4 {v(o,4)}, v8, {WS}, s33 offen offset:{(tb>>1)*2048} sc1""")
    acc = lambda tb, nb: ACC + 4 * (tb * 4 + nb)
    A(f"""s_lshr_b32 s22, s17, 3
          s_lshl_b32 s3, s19, 12
          s_lshl_b32 s41, s22, 11
          s_add_u32 s3, s3, s41
          v_add_u32 v16, s3, v9
          v_xor_b32 v17, 2048, v16
          v_lshrrev_b32 v5, 2, v3
          v_and_b32 v6, 3, v3
          v_lshl_add_u32 v7, v4, 2, v5
          v_and_b32 v8, 7, v7
          v_lshlrev_b32 v7, 8, v7
          v_lshl_add_u32 v7, v6, 3, v7
          s_lshl_b32 s3, s20, 2
          v_xor_b32 v8, s3, v8
          v_lshl_add_u32 v18, v8, 5, v7
          v_xor_b32 v19, 32, v18
          v_xor_b32 v20, 64, v18
          v_xor_b32 v21, 96, v18
          s_mov_b32 s21, 0""")
    for i in range(6): A(f"v_mov_b32 v{10+i}, v{16+i}")
    for i in range(0, 64, 2): A(f"v_mov_b64 {v(ACC+i,2)}, 0")
    xread = lambda st, tb, dst: f"ds_read_b128 {v(dst,4)}, v{10+(tb>>1)} offset:{st*8192 + (tb&1)*1024}"
    wread = lambda st, nb, e, dst: f"ds_read_b64_tr_b16 {v(dst,2)}, v{12+nb} offset:{16384 + st*8192 + e*4096}"
    def advance():
        return [f"s_add_u32 s21, s21, {S4}", f"s_and_b32 s21, s21, {4*S4-1}"] + [f"v_add_u32 v{10+i}, s21, v{16+i}" for i in range(6)]
    fstamp(A, "p4rdy")
    A("s_barrier")
    fstamp(A, "P4")
    def flagH2():
        A(f"""s_add_u32 s3, s23, {F_H2}
              s_waitcnt vmcnt(0)""")
        flag_store(A, 3)
        fstamp(A, "h2flag")
        A(f"""s_lshl_b32 s3, s19, 6
              s_lshl_b32 s42, s22, 5
              s_add_u32 s42, s42, s3
              s_lshl_b32 s29, s16, 18
              s_and_b32 s3, s17, 7
              s_lshl_b32 s3, s3, 15
              s_add_u32 s29, s29, s3
              s_lshl_b32 s3, s20, 14
              s_add_u32 s29, s29, s3
              s_lshl_b32 s3, s42, 6
              s_add_u32 s29, s29, s3
              s_add_u32 s29, s29, {WS_X1}
              s_add_u32 s30, s29, 8192""")
        for tb in range(2):
            A(f"buffer_load_dwordx4 {v(32+8*tb,4)}, v9, {WS}, s29 offen offset:{tb*1024} sc1")
            A(f"buffer_load_dwordx4 {v(36+8*tb,4)}, v9, {WS}, s30 offen offset:{tb*1024} sc1")
    compute_loop(A, 4, 4, 2, 36, acc, XB, WB, xread, wread, advance, name="p4c", bar_after=1, once=(int(os.environ.get("H2IT", "3")), flagH2))
    A("C_p4end:")
    fstamp(A, "p4end")
    A(f"""s_lshl_b32 s3, s16, 4
          s_add_u32 s3, s3, s17
          s_lshl_b32 s29, s3, 14
          s_lshl_b32 s41, s18, 12
          s_add_u32 s29, s29, s41
          s_add_u32 s29, s29, {WS_EX}
          s_xor_b32 s30, s29, {8 << 14}
          s_lshl_b32 s31, s3, 7
          s_lshl_b32 s41, s18, 2
          s_add_u32 s31, s31, s41
          s_add_u32 s31, s31, {F_EX}
          s_xor_b32 s32, s31, {8 << 7}
          s_waitcnt lgkmcnt(0)""")
    for i in range(4):
        a0 = ACC + 32 + 8 * i
        pack(64 + 4 * i, a0, a0 + 4)
        A(f"buffer_store_dwordx4 {v(64+4*i,4)}, v9, {WS}, s29 offen offset:{i*1024} sc1")
    A(f"""s_lshl_b32 s3, s42, 2
          s_add_u32 s3, s3, {L_GT}
          v_lshl_add_u32 v5, v3, 2, s3
          ds_read_b32 v48, v5
          ds_read_b32 v49, v5 offset:64
          v_mov_b32 v8, 0xffff0000""")
    srd(A, 24, P_OUT, P_OUT + 1, S * D * 2)
    A(f"""s_waitcnt lgkmcnt(0) vmcnt(4)
          v_sub_f32 v48, 1.0, v48
          v_sub_f32 v49, 1.0, v49
          v_cvt_pk_bf16_f32 v48, v48, v48
          v_cvt_pk_bf16_f32 v49, v49, v49
          v_and_b32 v48, v8, v48
          v_and_b32 v49, v8, v49""")
    for tb in range(2):
        for nb in range(4):
            a = ACC + 4 * (tb * 4 + nb); xr = 32 + 8 * tb + 2 * nb
            A(f"""v_lshlrev_b32 v22, 16, v{xr}
                  v_and_b32 v23, v8, v{xr}
                  v_lshlrev_b32 v24, 16, v{xr+1}
                  v_and_b32 v25, v8, v{xr+1}
                  v_pk_fma_f32 {v(a,2)}, v[22:23], v[48:49], {v(a,2)} op_sel:[0,{tb},0] op_sel_hi:[1,{tb},1]
                  v_pk_fma_f32 {v(a+2,2)}, v[24:25], v[48:49], {v(a+2,2)} op_sel:[0,{tb},0] op_sel_hi:[1,{tb},1]""")
    A("s_waitcnt vmcnt(0)")
    flag_store(A, 31)
    fstamp(A, "exflag")
    ld = lambda: A(f"buffer_load_dword v20, off, {WS}, s32 sc1")
    ld()
    A(f"""v_lshlrev_b32 v5, 11, v3
          v_and_b32 v6, 1, v4
          v_lshl_add_u32 v5, v6, 5, v5
          v_lshrrev_b32 v6, 1, v4
          v_lshl_add_u32 v5, v6, 4, v5
          s_lshl_b32 s41, s16, 7
          s_add_u32 s41, s41, s42
          s_lshl_b32 s41, s41, 11
          s_and_b32 s3, s17, 7
          s_lshl_b32 s3, s3, 8
          s_add_u32 s41, s41, s3
          s_lshl_b32 s3, s20, 7
          s_add_u32 s41, s41, s3
          s_add_u32 s43, s41, {16*2048}
          s_waitcnt vmcnt(0)""")
    spin_until(A, lambda: A("v_cmp_ne_u32 vcc, s12, v20"), ld, "ex")
    for i in range(4): A(f"buffer_load_dwordx4 {v(64+4*i,4)}, v9, {WS}, s30 offen offset:{i*1024} sc1")
    fstamp(A, "exok")
    for i in range(4):
        tb, pr = i >> 1, i & 1
        a0 = ACC + 8 * i; o = 96 + 4 * i
        A("s_waitcnt vmcnt(3)")
        for k in range(4):
            A(f"""v_lshlrev_b32 v22, 16, v{64+4*i+k}
                  v_and_b32 v23, v8, v{64+4*i+k}
                  v_pk_add_f32 {v(a0+2*k,2)}, {v(a0+2*k,2)}, v[22:23]""")
        pack(o, a0, a0 + 4)
        A(f"""s_nop 1
              v_permlane16_swap_b32 v{o}, v{o+2}
              v_permlane16_swap_b32 v{o+1}, v{o+3}
              buffer_store_dwordx4 {v(o,4)}, v5, s[24:27], s{41 if tb == 0 else 43} offen offset:{pr*64}{os.environ.get("OUTF", "")}""")
    fstamp(A, "stored")
    if PROF: A("s_waitcnt vmcnt(0)")
    fstamp(A, "drained")
    fstamp_flush(A, 0)
    if "diag" in EXP:
        Ld = A.label("diag")
        A(f"""s_waitcnt vmcnt(0)
              s_memrealtime s[96:97]
              s_memtime s[98:99]
              s_or_b32 s3, s2, s18
              s_cmp_lg_u32 s3, 0
              s_cbranch_scc1 {Ld}
              s_waitcnt lgkmcnt(0)
              s_sub_u32 s96, s96, s92
              s_sub_u32 s98, s98, s94
              v_mov_b32 v4, s96
              v_mov_b32 v5, s98""")
        srd(A, 24, P_DBG, P_DBG + 1, 256)
        A("buffer_store_dwordx2 v[4:5], off, s[24:27], 0 offset:16")
        A(f"{Ld}:")
    A("s_endpgm")
    A("C_slow:")
    A(f"{Lslow}:")
    A("s_waitcnt lgkmcnt(0)")
    for i in range(0, 40, 2): A(f"v_mov_b64 {v(128+i,2)}, 0")
    A(f"""v_mov_b32 v14, 0xff7fffff
          v_mov_b32 v15, 0xff7fffff
          s_lshl_b32 s41, s17, 19
          s_lshl_b32 s3, s20, 14
          s_add_u32 s41, s41, s3
          s_add_u32 s41, s41, {WS_KV}
          s_mov_b32 s40, 64""")
    Ls = A.label("sloop")
    A(f"{Ls}:")
    for b in range(2): A(f"buffer_load_dwordx4 {v(KB(0,b),4)}, v{VL16}, {WS}, s41 offen offset:{b*1024} sc1")
    for b in range(2): A(f"buffer_load_dwordx4 {v(VB(0,b),4)}, v{VL16}, {WS}, s41 offen offset:{2048 + b*1024} sc1")
    A("s_waitcnt vmcnt(0)")
    for q in range(2):
        for it in qk(q): A(it.text)
    A("s_nop 15")
    for q in range(2):
        d = SB(q); m = 14 + q
        A(f"v_max3_f32 v6, v{d}, v{d+1}, v{m}")
        for i in range(2, 16, 2): A(f"v_max3_f32 v6, v{d+i}, v{d+i+1}, v6")
        A(f"""v_mov_b32 v5, v6
              s_nop 1
              v_permlane32_swap_b32 v5, v6
              s_nop 1
              v_max_f32 v6, v6, v5
              v_sub_f32 v5, v{m}, v6
              v_exp_f32 v5, v5
              v_mov_b32 v{m}, v6""")
        for i in range(16): A(f"v_sub_f32 v{d+i}, v{d+i}, v6")
        for i in range(16): A(f"v_exp_f32 v{d+i}, v{d+i}")
        for i in range(16): A(f"v_mul_f32 v{O(q)+i}, v{O(q)+i}, v5")
        for i in range(4): A(f"v_mul_f32 v{Lr(q)+i}, v{Lr(q)+i}, v5")
        A("s_nop 1")
        for it in pv(q, False): A(it.text)
    A(f"""s_nop 15
          s_sub_u32 s40, s40, 1
          s_and_b32 s3, s40, 3
          s_cmp_eq_u32 s3, 0
          s_cselect_b32 s3, 16384, 0
          s_add_u32 s41, s41, s3
          s_add_u32 s41, s41, 4096
          s_cmp_lg_u32 s40, 0
          s_cbranch_scc1 {Ls}
          s_branch {Lfin}""")
```

```python
from dsl import *
import os
EXP = os.environ.get('EXP', '').split(',')
S, D, H, DH, F = 2048, 1024, 32, 32, 3584
KA_X, KA_WQKV, KA_WO, KA_BX, KA_W1, KA_W2, KA_W3, KA_W4, KA_G, KA_OUT, KA_DBG, KA_WS = [8*i for i in range(12)]
WS_Q   = 0x0000000
WS_KV  = 0x0400000
WS_H1  = 0x0C00000
WS_X1  = 0x1000000
WS_HO  = 0x1400000
HO_PANEL = 144 * 8192
WS_G   = 0x2600000
WS_ST  = 0x2610000
WS_CS3 = 0x2700000
WS_ST1 = 0x2660000
WS_CS1 = 0x26A0000
WS_FLAG = 0x2680000
WS_EX  = 0x2800000
F_KV = 0x2C00000
F_EX = 0x2C40000
F_H1 = 0x2C60000
F_X1 = 0x2C80000
F_O  = 0x2CA0000
F_H2 = 0x2CC0000
WS_END = 0x3000000

GELU_C0 = -2.0 * 1.4426950408889634 * 0.7978845608028654
GELU_C1 = GELU_C0 * 0.044715

def kernel_header(A, name):
    A.lines.append(f".p2align 8")
    A.lines.append(f".globl {name}")
    A.lines.append(f".type {name},@function")
    A.lines.append(f"{name}:")

def kernel_desc(name, vgpr, sgpr=96):
    acc = (vgpr + 3) // 4 * 4
    return f""".p2align 6
.amdhsa_kernel {name}
  .amdhsa_next_free_vgpr {vgpr}
  .amdhsa_next_free_sgpr {sgpr}
  .amdhsa_accum_offset {acc}
  .amdhsa_group_segment_fixed_size 0
  .amdhsa_kernarg_size 96
  .amdhsa_user_sgpr_count 2
  .amdhsa_user_sgpr_kernarg_segment_ptr 1
  .amdhsa_system_sgpr_workgroup_id_x 1
  .amdhsa_float_denorm_mode_32 {0 if "nodenorm" in EXP else 3}
.end_amdhsa_kernel
"""

def gelu(A, regs, tmp, sC0, sC1):
    n = len(regs)
    for r, t in zip(regs, tmp): A(f"v_mul_f32 v{t}, v{r}, v{r}")
    for r, t in zip(regs, tmp): A(f"v_fma_f32 v{t}, v{t}, s{sC1}, v{sC0}")
    for r, t in zip(regs, tmp): A(f"v_mul_f32 v{t}, v{t}, v{r}")
    for r, t in zip(regs, tmp): A(f"v_exp_f32 v{t}, v{t}")
    if n < 2: A("s_nop 0")
    for r, t in zip(regs, tmp): A(f"v_add_f32 v{t}, 1.0, v{t}")
    for r, t in zip(regs, tmp): A(f"v_rcp_f32 v{t}, v{t}")
    if n < 2: A("s_nop 0")
    for r, t in zip(regs, tmp): A(f"v_mul_f32 v{r}, v{r}, v{t}")

def compute_loop(A, NT, NN, KS, T, acc, XB, WB, xread, wread, advance, swapped=(), bar_after=2, sCnt=40, name="c", every_step=False, once=None, nbs=None, skip_pre=False, unroll=None):
    assert KS % 2 == 0
    if nbs is None: nbs = list(range(NN))
    pre = []
    for tb in range(NT): pre.append(Item(xread(0, tb, XB(0, tb)), gives=("X", 0, tb)))
    for nb in nbs:
        for e in range(2): pre.append(Item(wread(0, nb, e, WB(nb) + 2*e), gives=("W", nb, e)))
    if skip_pre: A("s_waitcnt lgkmcnt(0)")
    else:
        for it in pre: A(it.text)
    body = []
    for st in range(KS):
        p = st & 1
        last = st == KS - 1 or every_step
        fin = st == KS - 1
        nst = (st + 1) % KS
        pend = []
        xq = [Item(xread(nst, tb, XB(1 - p, tb)), gives=("X", 1 - p, tb)) for tb in range(NT)]
        adv = [Item(t) for t in advance()] if last else []
        tail = [Item(f"s_sub_u32 s{sCnt}, s{sCnt}, 1"), Item(f"s_cmp_lg_u32 s{sCnt}, 0")] if fin and unroll is None else []
        for ni, nb in enumerate(nbs):
            for tb in (range(NT) if ni % 2 == 0 or "nosnake" in EXP else reversed(range(NT))):
                a = acc(tb, nb)
                if nb in swapped:
                    txt = f"v_mfma_f32_16x16x32_bf16 {v(a,4)}, {v(XB(p,tb),4)}, {v(WB(nb),4)}, {v(a,4)}"
                else:
                    txt = f"v_mfma_f32_16x16x32_bf16 {v(a,4)}, {v(WB(nb),4)}, {v(XB(p,tb),4)}, {v(a,4)}"
                body.append(Item(txt, needs=[("X", p, tb), ("W", nb, 0), ("W", nb, 1)]))
                if last and ni < bar_after:
                    if adv: body.append(adv.pop(0))
                elif pend: body.append(pend.pop(0))
                elif xq: body.append(xq.pop(0))
                elif tail: body.append(tail.pop(0))
            pend += [Item(wread(nst, nb, e, WB(nb) + 2*e), gives=("W", nb, e)) for e in range(2)]
            if last and ni == bar_after - 1:
                for it in adv: body.append(it)
                body.append(Item("s_barrier", drain=True))
        for it in xq + pend + tail: body.append(it)
    lines = insert_lgkm_waits(pre, body, maxcnt=6)
    if unroll is not None:
        for ex in unroll:
            k = 0
            for l in lines:
                A(l)
                if l.startswith("v_mfma"):
                    if k in ex: A(ex[k])
                    k += 1
        return
    L = A.label(name + "loop")
    A(f"s_mov_b32 s{sCnt}, {T if once is None else once[0]}")
    if once is not None: A(f"s_mov_b32 s{sCnt+1}, {T - once[0]}")
    A(f"{L}:")
    for l in lines:
        if "noread" in EXP and l.startswith("ds_read"): continue
        if "nomfma" in EXP and l.startswith("v_mfma"): continue
        A(l)
    A(f"s_cbranch_scc1 {L}")
    if once is not None:
        Lx = A.label(name + "exit")
        A(f"s_cmp_eq_u32 s{sCnt+1}, 0")
        A(f"s_cbranch_scc1 {Lx}")
        once[1]()
        A(f"s_mov_b32 s{sCnt}, s{sCnt+1}")
        A(f"s_mov_b32 s{sCnt+1}, 0")
        A(f"s_branch {L}")
        A(f"{Lx}:")

import os
PROF = int(os.environ.get("PROF", "0"))
WS_PROF = 0x2780000
def stamp(A, i):
    if not PROF: return
    A(f"s_memrealtime s[{64+4*i}:{65+4*i}]")
    A(f"s_memtime s[{66+4*i}:{67+4*i}]")
def stamp_flush(A, kidx, n, wslo, wshi, role=0):
    if not PROF: return
    A("s_waitcnt lgkmcnt(0)")
    srd(A, 56, wslo, wshi, WS_END)
    for i in range(n):
        A(f"v_mov_b32 v{2+2*i}, s{64+4*i}")
        A(f"v_mov_b32 v{3+2*i}, s{66+4*i}")
    A(f"s_lshl_b32 s60, s2, 7")
    A(f"s_add_u32 s60, s60, {WS_PROF + kidx*65536 + role*64}")
    A("v_mov_b32 v1, 0")
    A("s_mov_b64 exec, 1")
    for i in range(n):
        A(f"buffer_store_dwordx2 v[{2+2*i}:{3+2*i}], v1, s[56:59], s60 offen offset:{8*i}")

STF = os.environ.get("STF", " sc1")
def touch_linear(A, srdreg, nbytes, vaddr, vdummy, swave, nwaves_total_log2, sidx, stmp):
    per = 8192 << nwaves_total_log2
    n = -(-nbytes // per)
    A(f"s_lshl_b32 s{stmp}, s{sidx}, 13")
    for i in range(n):
        A(f"buffer_load_dword v{vdummy}, v{vaddr}, s[{srdreg}:{srdreg+3}], s{stmp} offen")
        if i < n - 1: A(f"s_add_u32 s{stmp}, s{stmp}, {per}")

OOB = 0x7ffffff0
def gelu_pk(A, zs, css, st, tmps, outs):
    p = lambda r: v(r, 2)
    for z, c in zip(zs, css): A(f"v_pk_fma_f32 {p(z)}, {p(c)}, {p(st)}, {p(z)} op_sel_hi:[1,0,1] neg_lo:[0,1,0] neg_hi:[0,1,0]")
    for z, t in zip(zs, tmps): A(f"v_pk_mul_f32 {p(t)}, {p(z)}, {p(z)}")
    for z, t in zip(zs, tmps): A(f"v_pk_fma_f32 {p(t)}, {p(t)}, {p(st+2)}, {p(st)} op_sel:[0,0,1] op_sel_hi:[1,0,1]")
    for z, t in zip(zs, tmps): A(f"v_pk_mul_f32 {p(t)}, {p(t)}, {p(z)}")
    for t in tmps[:len(zs)]:
        A(f"v_exp_f32 v{t}, v{t}"); A(f"v_exp_f32 v{t+1}, v{t+1}")
    for z, t in zip(zs, tmps): A(f"v_pk_fma_f32 {p(t)}, {p(t)}, {p(st+2)}, {p(st+2)} op_sel:[0,1,1] op_sel_hi:[1,1,1]")
    for t in tmps[:len(zs)]:
        A(f"v_rcp_f32 v{t}, v{t}"); A(f"v_rcp_f32 v{t+1}, v{t+1}")
    for z, t in zip(zs, tmps): A(f"v_pk_mul_f32 {p(z)}, {p(z)}, {p(t)}")
    for z, o in zip(zs, outs): A(f"v_cvt_pk_bf16_f32 v{o}, v{z}, v{z+1}")

def ln_consts(A, b, tmp, wreg=None):
    A(f"""v_fma_f32 v{b+1}, -v{b}, v{b}, v{b+1}
          v_max_f32 v{b+1}, 0, v{b+1}
          v_add_f32 v{b+1}, {hexf(1e-5)}, v{b+1}
          v_rsq_f32 v{tmp}, v{b+1}
          v_sqrt_f32 v{b+3}, v{b+1}""")
    if wreg is not None: A(f"v_rcp_f32 v{wreg}, v{wreg}")
    A(f"""v_mul_f32 v{b+2}, v{tmp}, v{tmp}
          v_mul_f32 v{b+1}, {hexf(GELU_C0)}, v{tmp}
          v_mul_f32 v{b+2}, v{b+2}, v{tmp}
          v_mul_f32 v{b+2}, {hexf(GELU_C1)}, v{b+2}""")
    if wreg is not None: A(f"v_mul_f32 v{b+3}, v{b+3}, v{wreg}")

def spin_until(A, check, reload, name):
    Lok = A.label(name + "ok"); Lsp = A.label(name + "sp")
    A("s_mov_b32 s62, 0x8000")
    A(f"{Lsp}:")
    check()
    A(f"""s_cbranch_vccz {Lok}
          s_sub_u32 s62, s62, 1
          s_cmp_eq_u32 s62, 0
          s_cbranch_scc1 {Lok}
          s_sleep {os.environ.get("SLP", "8")}""")
    reload()
    A("s_waitcnt vmcnt(0)")
    A(f"s_branch {Lsp}")
    A(f"{Lok}:")

def interleave(A, main, fill):
    n = sum(1 for l in main if "buffer_load_dwordx4" in l)
    k = 0; done = 0
    for l in main:
        A.lines.append(l)
        if "buffer_load_dwordx4" in l:
            k += 1
            e = len(fill) * k // n
            A.lines += fill[done:e]; done = e

class VM:
    def __init__(self, A): self.A = A; self.log = []
    def op(self, text, tag=None):
        for l in text.split("\n"):
            l = l.strip()
            if not l: continue
            self.A(l)
            if l.startswith("buffer_"): self.log.append(tag)
    def note(self, n, tag): self.log += [tag] * n
    def count(self, *tags):
        idx = max(i for i, t in enumerate(self.log) if t in tags)
        return len(self.log) - 1 - idx
    def wait(self, *tags, lg=False):
        self.A(f"s_waitcnt vmcnt({self.count(*tags)})" + (" lgkmcnt(0)" if lg else ""))

STAMPS = {0: ["entry"], 1: ["entry"]}
ROLE = [0]
def fstamp(A, name):
    if not PROF: return
    lst = STAMPS[ROLE[0]]
    i = len(lst); lst.append(str(name))
    assert i < 32
    A("s_memrealtime s[96:97]")
    A("s_memtime s[98:99]")
    A("s_waitcnt lgkmcnt(0)")
    A(f"v_writelane_b32 v62, s96, {i}")
    A(f"v_writelane_b32 v63, s98, {i}")
    if i == 1:
        A(f"v_writelane_b32 v62, s92, 0")
        A(f"v_writelane_b32 v63, s94, 0")
def fstamp_flush(A, role):
    if not PROF: return
    A(f"""s_lshl_b32 s3, s2, 9
          s_add_u32 s3, s3, {WS_PROF + role*256}
          v_lshlrev_b32 v1, 3, v2
          s_mov_b32 exec_hi, 0
          buffer_store_dwordx2 v[62:63], v1, s[4:7], s3 offen""")

def code_touch(A, lab_from, lab_to, n, vaddr=58, vdummy=60, stmp=90, lanereg=2, swave=18):
    if "notouch" in EXP: return 0
    Lh = A.label("pc")
    A(f"s_getpc_b64 s[{stmp}:{stmp+1}]")
    A(f"{Lh}:")
    A(f"""s_add_u32 s{stmp}, s{stmp}, {lab_from}-{Lh}
          s_addc_u32 s{stmp+1}, s{stmp+1}, 0
          v_lshl_add_u32 v{vaddr}, v{lanereg}, 2, s{swave}
          v_lshlrev_b32 v{vaddr}, 7, v{vaddr}
          v_min_u32 v{vaddr}, {lab_to}-{lab_from}-4, v{vaddr}
          v_mov_b32 v{vaddr+1}, s{stmp+1}
          v_add_co_u32 v{vaddr}, vcc, s{stmp}, v{vaddr}
          s_nop 1
          v_addc_co_u32 v{vaddr+1}, vcc, 0, v{vaddr+1}, vcc
          global_load_dword v{vdummy}, v[{vaddr}:{vaddr+1}], off""")
    return 1

def gemm_loop(A, NT, nbs, T, NS, slot0, acc, XB, WB, xread, wread, swapped=(), wdb=False, bar_gap=6, sCnt=40, name="g", hooks=None, maxcnt=5, peel=None):
    NN = len(nbs)
    wp = (lambda p: p) if wdb else (lambda p: 0)
    def rdX(slot, st, tb): return Item(xread(slot, st, tb, XB(st, tb)), gives=("X", st, tb))
    def rdW(slot, st, nb): return [Item(wread(slot, st, nb, e, WB(wp(st), nb) + 2*e), gives=("W", wp(st), nb, e)) for e in range(2)]
    def order(ni): return list(range(NT)) if ni % 2 == 0 else list(reversed(range(NT)))
    def stage(slot, carry, tail):
        nxt = (slot + 1) % NS
        out = []
        q = list(carry)
        for st in range(2):
            sl, ns = (slot, 1) if st == 0 else (nxt, 0)
            first = rdW(sl, ns, nbs[0]) if wdb else []
            xs = [rdX(sl, ns, tb) for tb in range(NT)]
            rest = [it for nb in nbs[1:] for it in rdW(sl, ns, nb)] if wdb else []
            held = first + xs + rest
            if st == 0: q += held; held = []
            g = 0
            for ni, nb in enumerate(nbs):
                for tb in order(ni):
                    a = acc(tb, nb); w = v(WB(wp(st), nb), 4); x = v(XB(st, tb), 4)
                    o = (x, w) if nb in swapped else (w, x)
                    out.append(Item(f"v_mfma_f32_16x16x32_bf16 {v(a,4)}, {o[0]}, {o[1]}, {v(a,4)}",
                                    needs=[("X", st, tb), ("W", wp(st), nb, 0), ("W", wp(st), nb, 1)]))
                    if tb == order(ni)[-1] and not wdb:
                        new = rdW(sl, ns, nb)
                        if st == 1 and g < bar_gap: held = (new + held) if ni == 0 else (held + new)
                        elif ni == 0: q = q[:0] + [z for z in q if z.gives[0] == "W"] + new + [z for z in q if z.gives[0] != "W"]
                        else: q += new
                    if st == 1 and g == bar_gap - 1 and not q:
                        out.append(Item(";drain", drain=True))
                    if st == 1 and g == bar_gap:
                        assert not q, "reads of the current slot still pending at the barrier"
                        out.append(Item("s_barrier", drain=True))
                        q = held; held = []
                    else:
                        left = NT * NN - g
                        n = 2 if len(q) > left + 1 else 1
                        if q:
                            for _ in range(min(n, len(q))): out.append(q.pop(0))
                        elif st == 1 and g > bar_gap and tail: out.append(tail.pop(0))
                    g += 1
        out += tail
        return out, q
    pre = rdW(slot0, 0, nbs[0]) + [rdX(slot0, 0, tb) for tb in range(NT)] + [it for nb in nbs[1:] for it in rdW(slot0, 0, nb)]
    _, c = stage((slot0 - 1) % NS, [], [])
    ncar = len(c)
    carry0 = pre[len(pre) - ncar:] if ncar else []
    assert [z.text for z in carry0] == [z.text for z in c], (c, carry0)
    pre = pre[:len(pre) - ncar]
    for it in pre: A(it.text)
    body = []; carry = carry0; marks = []
    for k in range(NS):
        tail = [Item(f"s_sub_u32 s{sCnt}, s{sCnt}, 1"), Item(f"s_cmp_lg_u32 s{sCnt}, 0")] if k == NS - 1 else []
        o, carry = stage((slot0 + k) % NS, carry, tail)
        body += o; body.append(Item(f";stage{k}"))
    lines = insert_lgkm_waits(pre, body, maxcnt=maxcnt)
    n = T // NS; rem = T % NS
    if peel is not None:
        for l in lines:
            if l.startswith(";stage"):
                k = int(l[6:])
                if k in peel: peel[k]()
            elif not l.startswith((";", f"s_sub_u32 s{sCnt},", f"s_cmp_lg_u32 s{sCnt},")): A(l)
        n -= 1
    hooks = hooks or {}
    L = A.label(name + "loop")
    segs = sorted(h // NS for h in hooks); assert all(h % NS == 0 for h in hooks) and len(segs) <= 1
    A(f"s_mov_b32 s{sCnt}, {segs[0] if segs else n}")
    if segs: A(f"s_mov_b32 s{sCnt+1}, {n - segs[0]}")
    A(f"{L}:")
    for l in lines:
        if not l.startswith(";"): A(l)
    A(f"s_cbranch_scc1 {L}")
    if segs:
        Lx = A.label(name + "exit")
        A(f"s_cmp_eq_u32 s{sCnt+1}, 0")
        A(f"s_cbranch_scc1 {Lx}")
        hooks[segs[0] * NS]()
        A(f"s_mov_b32 s{sCnt}, s{sCnt+1}")
        A(f"s_mov_b32 s{sCnt+1}, 0")
        A(f"s_branch {L}")
        A(f"{Lx}:")
    if rem:
        for l in lines:
            if l == f";stage{rem-1}": break
            if not l.startswith(";"): A(l)
```

```python
from common import *
from k1 import job_stats as _js, job_gate as _jg
import k1
NAME = "gated_mix__softmax_full_mha__mixer_s_mlp__prompt_kernel"
P_X, P_WQKV, P_WO, P_BX, P_W1, P_W2, P_W3, P_W4, P_G, P_OUT, P_DBG, P_WS = [64 + 2*i for i in range(12)]
QSCALE = (DH ** -0.5) * 1.4426950408889634
S1 = 49152
L_MISC = 155648
L_ST = L_MISC
L_CS = L_ST + 2048
L_GT = L_CS + 1024
L_NON = L_GT + 512
L_JOB = L_NON + 64
LDS_BYTES = 163840
k1.L_JOB = L_JOB
KVS = 32768
kvslot = lambda st: ((st + 1) % 3) * KVS
L_W2W = 98304
L_XR = 131072
L_C3 = 147456
S3 = 45056; L3 = 20480
S4 = 32768
WOFF = int(os.environ.get("WOFF", "2"))
WS = "s[4:7]"
R2T, R2P = [int(x) for x in os.environ.get("ROT2", "0,0").split(",")]
MS = int(os.environ.get("MS", "0"))
FS = int(os.environ.get("FS", "2"))
dppadd = lambda r, sh: f"v_add_f32_dpp v{r}, v{r}, v{r} row_ror:{sh} row_mask:0xf bank_mask:0xf"

def flag_store(A, soff_sreg, vtmp=1):
    A(f"""v_mov_b32 v{vtmp}, s12
          s_mov_b64 exec, 1
          buffer_store_dword v{vtmp}, off, {WS}, s{soff_sreg} sc1
          s_mov_b64 exec, -1""")

def gen(A):
    kernel_header(A, NAME)
    Lend = A.label("end"); Lcomp = A.label("comp")
    A(f"s_cmp_ge_u32 s2, 256")
    A(f"s_cbranch_scc1 {Lend}")
    if PROF or "diag" in EXP:
        A("s_memrealtime s[92:93]"); A("s_memtime s[94:95]")
    A("s_load_dwordx16 s[64:79], s[0:1], 0")
    A("s_load_dwordx8 s[80:87], s[0:1], 64")
    A("""v_lshrrev_b32 v1, 6, v0
         v_and_b32 v2, 63, v0
         """ + ("s_lshr_b32 s14, s2, 5" if "badmap" in EXP else "s_and_b32 s14, s2, 7") + """
         v_readfirstlane_b32 s18, v1
         """ + ("s_and_b32 s15, s2, 31" if "badmap" in EXP else "s_lshr_b32 s15, s2, 3") + """
         s_and_b32 s16, s14, 1
         s_lshl_b32 s16, s16, 3
         s_and_b32 s3, s15, 7
         s_add_u32 s16, s16, s3
         s_lshr_b32 s17, s14, 1
         s_lshl_b32 s17, s17, 2
         s_lshr_b32 s3, s15, 3
         s_add_u32 s17, s17, s3""")
    A(f"""s_add_u32 s13, s17, {WOFF}
          s_and_b32 s13, s13, 15""")
    A("s_cmp_lt_u32 s18, 4")
    A(f"s_cbranch_scc1 {Lcomp}")
    helper(A)
    A(f"{Lend}:")
    A("s_endpgm")
    A("H_end:")
    A(f"{Lcomp}:")
    compute(A)
    return dict(name=NAME, grid=256, block=512, lds=LDS_BYTES, vgpr=256)

def helper(A):
    ROLE[0] = 1
    A("s_sub_u32 s18, s18, 4")
    if PROF: A("v_mov_b64 v[62:63], 0")
    A(f"""v_lshrrev_b32 v3, 3, v2
          v_and_b32 v4, 7, v2
          v_lshrrev_b32 v5, 1, v3
          v_xor_b32 v5, v5, v4
          s_lshl_b32 s3, s16, 7
          s_lshl_b32 s36, s18, 5
          s_add_u32 s3, s3, s36
          v_add_u32 v6, s3, v3
          v_lshlrev_b32 v6, 11, v6
          v_lshl_add_u32 v10, v5, 4, v6
          v_xor_b32 v11, 64, v10
          v_add_u32 v11, {8*2048 - 1024}, v11
          v_add_u32 v12, {16*2048 - 2048}, v10
          v_add_u32 v13, {16*2048 - 2048}, v11""")
    ra, rb = [int(x) for x in os.environ.get("ROT1", "1,1").split(",")]
    A(f"""s_mov_b32 s31, 0x20000
          s_lshl_b32 s37, s18, 12
          s_mul_i32 s52, s16, {ra}
          s_mul_i32 s3, s17, {rb}
          s_add_u32 s52, s52, s3
          s_and_b32 s52, s52, 15
          s_mov_b32 s55, s18
          s_mov_b32 s53, 0""")
    def wsetup(A, first=False):
        A(f"""s_lshl_b32 s3, s55, 11
              s_mov_b32 s30, {D*3*D*2}
              s_mov_b32 s32, 6144
              s_cmp_eq_u32 s55, 3
              s_cselect_b32 s30, {D*D*2}, s30
              s_cselect_b32 s32, 2048, s32
              s_cselect_b32 s33, 0, s3
              s_cselect_b32 s3, s13, s17
              s_lshl_b32 s3, s3, 7
              s_add_u32 s33, s33, s3
              s_lshl_b32 s34, s32, 4
              s_lshl_b32 s35, s32, 6
              s_lshl_b32 s38, s55, 13
              s_add_u32 s38, s38, 16384""")
        if not first:
            A("""s_lshl_b32 s3, s53, 12
                 s_add_u32 s38, s38, s3
                 s_mul_i32 s3, s53, s34
                 s_lshl_b32 s3, s3, 1
                 s_add_u32 s33, s33, s3""")
        A("""v_and_b32 v14, 2, v3
             v_and_b32 v15, 7, v2
             v_xor_b32 v14, v14, v15
             v_mul_lo_u32 v15, v3, s32
             v_lshl_add_u32 v14, v14, 4, v15
             s_lshl_b32 s3, s32, 3
             s_sub_u32 s3, s3, 1024
             v_xor_b32 v15, 64, v14
             v_add_u32 v15, s3, v15""")
        if first: A("s_waitcnt lgkmcnt(0)")
        A(f"""s_cmp_eq_u32 s55, 3
              s_cselect_b32 s28, s{P_W1}, s{P_WQKV}
              s_cselect_b32 s29, s{P_W1+1}, s{P_WQKV+1}
              s_and_b32 s29, s29, 0xffff""")
    wsetup(A, True)
    srd(A, 24, P_X, P_X + 1, S * D * 2)
    def issue(slot, mid=None, A=A, ng=4):
        A(f"s_add_u32 m0, s37, {slot}")
        A("s_lshl_b32 s39, s52, 7")
        for i in range(4):
            A(f"buffer_load_dwordx4 v{10+i}, s[24:27], s39 offen offset:{i*1024} lds")
        if mid: mid()
        A(f"s_add_u32 s45, s38, {slot}")
        A("s_mul_i32 s41, s52, s35")
        A("s_add_u32 s41, s41, s33")
        for i in range(ng):
            A(f"s_add_u32 m0, s45, {i*2048}")
            if i: A("s_add_u32 s41, s41, s34")
            else: A("s_add_u32 s52, s52, 1")
            A(f"buffer_load_dwordx4 v14, s[28:31], s41 offen lds")
            A(f"buffer_load_dwordx4 v15, s[28:31], s41 offen offset:1024 lds")
        A("s_and_b32 s52, s52, 15")
    fstamp(A, "start")
    issue(0)
    def barP():
        A("s_waitcnt vmcnt(4)")
        A("s_barrier")
    issue(S1, barP)
    slot = lambda t: (t % 3) * S1
    def endit(n, lg=False):
        A(f"s_waitcnt vmcnt({n})" + (" lgkmcnt(0)" if lg else ""))
        A("s_barrier")
    issue(slot(2))
    A(f"""s_lshl_b32 s46, s16, 7
          s_lshl_b32 s3, s17, 3
          s_add_u32 s46, s46, s3
          s_lshl_b32 s3, s18, 1
          s_add_u32 s46, s46, s3
          s_lshl_b32 s46, s46, 11
          v_lshlrev_b32 v8, 4, v2
          v_lshlrev_b32 v5, 11, v3
          v_lshl_add_u32 v7, v4, 4, v5
          s_lshl_b32 s47, s16, 17
          s_lshl_b32 s3, s17, 7
          s_add_u32 s47, s47, s3
          s_lshl_b32 s3, s18, 15
          s_add_u32 s47, s47, s3
          s_add_u32 s42, s47, 16384
          v_mov_b32 v9, 0xffff0000
          v_lshrrev_b32 v4, 4, v2""")
    srd(A, 8, P_G, P_G + 1, D * 2)
    srd(A, 20, P_W1, P_W1 + 1, D * D * 2)
    endit(12)
    A("""buffer_load_dwordx4 v[64:67], v8, s[24:27], s46 offen
         buffer_load_dwordx4 v[68:71], v8, s[24:27], s46 offen offset:1024
         buffer_load_dwordx4 v[72:75], v8, s[24:27], s46 offen offset:2048
         buffer_load_dwordx4 v[76:79], v8, s[24:27], s46 offen offset:3072
         buffer_load_dwordx4 v[80:83], v8, s[8:11], 0 offen
         buffer_load_dwordx4 v[84:87], v8, s[8:11], 0 offen offset:1024
         buffer_load_dwordx4 v[88:91], v7, s[20:23], s47 offen
         buffer_load_dwordx4 v[92:95], v7, s[20:23], s42 offen""")
    issue(slot(3))
    endit(20)
    srd(A, 8, P_DBG, P_DBG + 1, 256)
    A("buffer_load_dword v19, off, s[8:11], 0 sc1")
    issue(slot(4))
    srd(A, 4, P_WS, P_WS + 1, WS_END)
    A(f"""s_lshl_b32 s19, s16, 4
          s_add_u32 s19, s19, s17
          s_lshl_b32 s21, s19, 7
          s_add_u32 s21, s21, {WS_ST1}
          s_mov_b32 s22, 8
          s_mov_b32 s23, {L_JOB}
          s_lshl_b32 s3, s19, 9
          s_add_u32 s3, s3, {WS_CS1}
          s_cmp_eq_u32 s18, 1
          s_cselect_b32 s21, s3, s21
          s_cselect_b32 s22, 32, s22
          s_cselect_b32 s23, {L_JOB + 256}, s23
          s_cselect_b32 s54, -1, 0
          s_cmp_ge_u32 s18, 2
          s_cselect_b32 s22, 0, s22
          v_and_b32 v5, 31, v2
          v_lshl_add_u32 v17, v5, 3, s23
          v_cmp_gt_u32 vcc, s22, v2
          v_mov_b32 v5, {OOB}
          s_nop 0
          v_cndmask_b32 v16, v5, v8, vcc""")
    endit(12)
    spin_until(A, lambda: A("v_cmp_eq_u32 vcc, 0, v19"), lambda: A("buffer_load_dword v19, off, s[8:11], 0 sc1"), "nonce")
    A("v_readfirstlane_b32 s12, v19")
    fstamp(A, "p1j2")
    J = Asm(); _js(J)
    n = len(J.lines); cuts = [0, n // 3, 2 * n // 3, n]
    for c in range(3):
        I = Asm(); issue(slot(5 + c), None, I)
        interleave(A, I.lines, J.lines[cuts[c]:cuts[c+1]])
        endit(12, c == 2)
    fstamp(A, "p1B5")
    for i in range(4): A(f"ds_read_b64 {v(24+2*i,2)}, v17 offset:{i*256}")
    A("s_waitcnt lgkmcnt(0)")
    for i in range(2):
        A(f"""v_add_f32 v{26+i}, v{26+i}, v{28+i}
              v_add_f32 v{26+i}, v{26+i}, v{30+i}
              v_and_b32 v{26+i}, s54, v{26+i}
              v_add_f32 v{20+2*i}, v{24+i}, v{26+i}
              v_mov_b32 v{21+2*i}, s12""")
    issue(slot(8))
    A(f"buffer_store_dwordx4 v[20:23], v16, {WS}, s21 offen sc1")
    endit(13)
    J = Asm(); _jg(J)
    J(f"""s_lshr_b32 s46, s46, 9
          s_add_u32 s46, s46, {WS_G}
          v_and_b32 v5, 31, v2
          v_cmp_eq_u32 vcc, 0, v5
          v_lshrrev_b32 v30, 3, v2
          v_mov_b32 v6, {OOB}
          v_cndmask_b32 v30, v6, v30, vcc
          v_lshlrev_b32 v16, 4, v5
          s_lshl_b32 s21, s16, 11
          s_lshl_b32 s3, s18, 9
          s_add_u32 s21, s21, s3
          s_add_u32 s21, s21, {WS_ST1}
          v_lshrrev_b32 v7, 3, v2
          v_lshlrev_b32 v7, 14, v7
          v_and_b32 v6, 7, v2
          v_lshl_add_u32 v17, v6, 4, v7
          s_lshl_b32 s22, s13, 9
          s_lshl_b32 s3, s18, 7
          s_add_u32 s22, s22, s3
          s_add_u32 s22, s22, {WS_CS1}
          s_add_u32 s23, s22, 8192""")
    NT1 = 16 + MS
    def tile(t, Z):
        if t >= NT1: return 0
        if t == 16 - MS:
            Z("""s_lshr_b32 s55, s18, 1
                 s_add_u32 s55, s55, 1
                 s_and_b32 s53, s18, 1""")
            wsetup(Z)
        if t == 16:
            Z(f"""s_lshr_b32 s55, s18, 1
                  s_mul_i32 s55, s55, 3
                  s_add_u32 s52, s52, {16 - MS}
                  s_and_b32 s52, s52, 15""")
            wsetup(Z)
        full = t < 16 - MS
        issue(slot(t), None, Z, 4 if full else 2)
        return 12 if full else 8
    n = len(J.lines)
    NG = 6 if MS == 0 else (5 if MS <= 2 else 3)
    srd(A, 8, P_W2, P_W2 + 1, D * D * 2)
    for c in range(NG):
        I = Asm(); k = tile(9 + c, I)
        interleave(A, I.lines, J.lines[n * c // NG: n * (c + 1) // NG])
        if c == NG - 1:
            A(f"buffer_store_dword v28, v30, {WS}, s46 offen sc1"); k += 1
        endit(k)
        if c in (0, 1, 2, NG - 1): fstamp(A, f"p1B{7+c}")
    jp = 7 + NG
    def payload():
        A(f"""buffer_load_dwordx4 v[20:23], v16, {WS}, s21 offen sc1
              buffer_load_dwordx4 v[32:35], v17, {WS}, s22 offen sc1
              buffer_load_dwordx4 v[36:39], v17, {WS}, s23 offen sc1""")
    payload()
    k = tile(jp + 2, A)
    kt = code_touch(A, "C_p1a", "C_attend", 1) + code_touch(A, "H_p1j14", "H_end", 1) + 1
    A(f"""v_and_b32 v58, 15, v2
          v_lshlrev_b32 v58, 7, v58
          s_lshl_b32 s3, s2, 2
          s_add_u32 s3, s3, s18
          s_lshl_b32 s3, s3, 11
          buffer_load_dword v60, v58, s[8:11], s3 offen""")
    endit(k + kt)
    k14 = tile(jp + 3, A) + kt
    def chk():
        A("""v_xor_b32 v24, s12, v21
             v_xor_b32 v25, s12, v23
             v_xor_b32 v26, s12, v33
             v_xor_b32 v27, s12, v35
             v_or3_b32 v24, v24, v25, v26
             v_xor_b32 v25, s12, v37
             v_xor_b32 v26, s12, v39
             v_or3_b32 v24, v24, v25, v26
             v_or_b32 v24, v24, v27
             v_cmp_ne_u32 vcc, 0, v24""")
    A("H_p1j14:")
    spin_until(A, chk, payload, "pay")
    A(f"""v_add_f32 v32, v32, v36
          v_add_f32 v33, v34, v38
          v_mov_b32 v21, v22
          s_lshl_b32 s3, s18, 9
          s_add_u32 s3, s3, {L_ST}
          v_permlane32_swap_b32 v32, v33
          v_add_u32 v16, s3, v16
          v_add_f32 v32, v32, v33
          v_mov_b32 v33, v32""")
    ln_consts(A, 20, 24)
    A(f"""v_permlane16_swap_b32 v32, v33
          ds_write_b128 v16, v[20:23]
          v_add_f32 v32, v32, v33
          s_lshl_b32 s3, s18, 6
          s_add_u32 s3, s3, {L_CS}
          {dppadd(32, 8)}
          v_lshl_add_u32 v6, v6, 3, s3
          v_lshrrev_b32 v7, 5, v2
          v_lshl_add_u32 v6, v7, 2, v6
          ds_write_b32 v6, v32
          v_mov_b32 v5, {L_NON}
          ds_write_b32 v5, v19""")
    endit(k14, True)
    for j in range(jp + 2, NT1 - 1):
        endit(tile(j + 2, A))
    A(f"""s_lshl_b32 s33, s17, 19
          s_lshl_b32 s37, s18, 13
          s_add_u32 s33, s33, s37
          s_add_u32 s33, s33, {WS_KV}
          s_lshl_b32 s34, s17, 14
          s_lshl_b32 s3, s18, 7
          s_add_u32 s34, s34, s3
          s_add_u32 s34, s34, {F_KV}
          s_lshr_b32 s21, s18, 1
          s_and_b32 s22, s18, 1""")
    KVROT = int(os.environ.get("KVROT", "0"))
    A(f"""v_and_b32 v3, 15, v2
          s_mul_i32 s89, s16, {KVROT}
          v_lshrrev_b32 v5, 1, v2
          v_add_u32 v5, s89, v5
          v_and_b32 v5, 15, v5
          v_lshlrev_b32 v17, 10, v5
          s_sub_u32 s3, s16, s89
          s_and_b32 s3, s3, 15
          s_lshl_b32 s3, s3, 1
          s_lshl_b32 s35, 3, s3
          s_mov_b32 s36, 0""")
    V = VM(A)
    kvpoll = f"buffer_load_dword v20, v17, {WS}, s34 offen sc1"
    def kv_ready(A=A):
        A("v_cmp_eq_u32 vcc, s12, v20")
        A("s_mov_b32 s36, vcc_lo")
    A0 = A
    def kv_issue(st, A=A):
        slot = kvslot(st)
        Lr_ = A0.label("kvr"); Lok = A0.label("kvok")
        chk2 = f"""s_andn2_b32 s39, s36, s35
              s_bcnt1_i32_b32 s3, s39
              s_cmp_ge_u32 s3, 2
              s_cbranch_scc1 {Lok}"""
        A(chk2)
        A("s_mov_b32 s62, 0x8000")
        A(f"{Lr_}:")
        A(kvpoll)
        A("s_waitcnt vmcnt(0)")
        kv_ready(A)
        A(chk2)
        A(f"""s_sleep {os.environ.get("SLP", "8")}
              s_sub_u32 s62, s62, 1
              s_cmp_lg_u32 s62, 0
              s_cbranch_scc1 {Lr_}
              s_not_b32 s39, s35""")
        A(f"{Lok}:")
        for h in range(2):
            A(f"""s_ff1_i32_b32 s3, s39
                  s_bitset1_b32 s35, s3
                  s_bitset0_b32 s39, s3
                  s_and_b32 s41, s3, 1
                  s_lshl_b32 s41, s41, 12
                  s_add_u32 s41, s41, s33
                  s_lshr_b32 s3, s3, 1
                  s_add_u32 s3, s3, s89
                  s_and_b32 s3, s3, 15
                  s_add_u32 m0, s37, {slot + h*4096}
                  s_lshl_b32 s3, s3, 15
                  s_add_u32 s41, s41, s3""")
            for i in range(4): A(f"buffer_load_dwordx4 v8, {WS}, s41 offen offset:{i*1024} sc1 lds")
        V.note(8, ("kv", st))
    if "noprewarm" not in EXP: A(kvpoll)
    EARLY = "earlysetup" in EXP
    if not EARLY:
        A("s_barrier")
        fstamp(A, "p1B15")
        A("s_barrier")
    ACC, XB, WB, C3B = 64, 128, 192, 224
    acc = lambda tb, nb: ACC + 4 * (tb * 4 + nb)
    A(f"""v_cmp_le_u32 vcc, 28, v2
          s_lshl_b32 s3, s16, 6
          s_lshl_b32 s41, s18, 4
          v_cndmask_b32 v5, 0, 1, vcc
          v_mul_u32_u24 v6, 28, v5
          v_sub_u32 v22, v2, v6
          v_mul_u32_u24 v6, 7168, v5
          v_lshl_add_u32 v30, v22, 4, v6
          v_cmp_le_u32 vcc, 56, v2
          v_mov_b32 v6, {OOB}
          s_add_u32 s3, s3, s41
          v_cndmask_b32 v30, v30, v6, vcc
          s_mul_i32 s47, s3, 7168
          s_mul_i32 s3, s17, 448
          s_add_u32 s47, s47, s3
          v_lshlrev_b32 v22, 5, v22
          s_lshl_b32 s3, s18, 1
          v_add_u32 v5, s3, v5
          v_mul_u32_u24 v5, 896, v5
          v_add_u32 v22, v22, v5
          v_add_u32 v22, {L_C3}, v22""")
    A(f"""v_lshrrev_b32 v5, 3, v2
          v_and_b32 v6, 7, v2
          v_and_b32 v7, 6, v5
          v_xor_b32 v7, v7, v6
          v_lshlrev_b32 v5, 11, v5
          v_lshl_add_u32 v24, v7, 4, v5
          s_lshl_b32 s3, s17, 7
          v_add_u32 v24, s3, v24
          v_add_u32 v25, {8*2048 - 1024}, v24
          v_add_u32 v26, {16*2048 - 2048}, v24
          v_add_u32 v27, {24*2048 - 3072}, v24
          v_lshrrev_b32 v5, 2, v3
          v_and_b32 v6, 3, v3
          v_lshl_add_u32 v7, v4, 2, v5
          v_bfe_u32 v5, v7, 1, 2
          v_lshlrev_b32 v7, 7, v7
          v_lshl_add_u32 v7, v6, 3, v7
          v_lshl_add_u32 v7, v5, 5, v7
          s_lshl_b32 s46, s18, 12
          s_add_u32 s38, s46, {L_W2W}
          s_lshl_b32 s3, s21, 12
          s_add_u32 s3, s3, {L_W2W}
          v_add_u32 v32, s3, v7
          v_xor_b32 v33, 32, v32
          v_xor_b32 v34, 64, v32
          v_xor_b32 v35, 96, v32
          s_lshl_b32 s43, s16, 18
          s_lshl_b32 s3, s21, 13
          s_add_u32 s43, s43, s3
          s_lshl_b32 s3, s22, 12
          s_add_u32 s43, s43, s3
          s_add_u32 s43, s43, {WS_H1}
          s_lshl_b32 s44, s18, 16
          s_lshl_b32 s3, s21, 11
          v_add_u32 v28, s3, v8
          v_xor_b32 v29, 2048, v28
          s_mul_i32 s60, s17, {R2P}
          s_mul_i32 s3, s16, {R2T}
          s_add_u32 s60, s60, s3
          s_and_b32 s60, s60, 7
          s_mov_b32 s61, s60""")
    if EARLY: A("s_barrier")
    A(f"""s_add_u32 m0, s46, {L_XR}
          s_lshl_b32 s41, s17, 7""")
    for i in range(4): V.op(f"buffer_load_dwordx4 v{10+i}, s[24:27], s41 offen offset:{i*1024} lds", "xr")
    for i in range(32, 64, 2): A(f"v_mov_b64 {v(ACC+i,2)}, 0")
    for i in range(40, 48, 2): A(f"v_mov_b64 {v(i,2)}, 0")
    A(f"""v_lshlrev_b32 v21, 2, v2
          s_add_u32 s3, s16, 15
          s_and_b32 s3, s3, 15
          s_lshl_b32 s48, s3, {6+FS}
          s_add_u32 s48, s48, {F_H1}
          v_lshlrev_b32 v61, {FS}, v2
          s_lshl_b32 s49, s16, {6+FS}
          s_add_u32 s49, s49, {F_H1}
          s_add_u32 s3, s16, 1
          s_and_b32 s3, s3, 15
          s_lshl_b32 s50, s3, {6+FS}
          s_add_u32 s50, s50, {F_H1}
          v_and_b32 v5, 31, v2
          v_lshlrev_b32 v23, 2, v5
          v_and_b32 v5, 7, v2
          v_lshlrev_b32 v54, 7, v5
          s_lshl_b32 s3, s2, 2
          s_add_u32 s3, s3, s18
          s_lshl_b32 s63, s3, 10""")
    srd(A, 28, P_W2, P_W2 + 1, D * D * 2)
    srd(A, 8, P_W3, P_W3 + 1, D * F * 2)
    srd(A, 52, P_W4, P_W4 + 1, F * D * 2)
    srd(A, 56, P_WO, P_WO + 1, D * D * 2)
    if EARLY: A("s_barrier")
    fstamp(A, "setup")
    kv_issue(1)
    fstamp(A, "j0iss")
    if "late2" not in EXP: kv_issue(2)
    V.op(kvpoll, "poll")
    V.wait(("kv", 1), lg=True)
    A("s_barrier")
    fstamp(A, "B0")
    side = [0, 0]
    def cs3_loads(Z, n):
        for _ in range(n):
            k = side[0]; side[0] += 1
            Z(f"buffer_load_dwordx4 {v(C3B+4*k,4)}, v30, s[8:11], s47 offen")
            Z(f"s_add_u32 s47, s47, {2*7168}")
            V.note(1, "side")
    def touches(Z, n):
        for _ in range(n):
            k = side[1]; side[1] += 1
            if k == 2: Z(f"s_sub_u32 s63, s63, {2 << 20}")
            Z(f"buffer_load_dword v60, v54, {'s[56:59]' if k < 2 else 's[52:55]'}, s63 offen")
            Z(f"s_add_u32 s63, s63, {1 << 20}")
            V.note(1, "side")
    def cs3_acc(k):
        for q in range(4):
            r = C3B + 4*k + q
            A(f"""v_lshlrev_b32 v5, 16, v{r}
                  v_and_b32 v6, v9, v{r}
                  v_add_f32 v{40+2*q}, v{40+2*q}, v5
                  v_add_f32 v{41+2*q}, v{41+2*q}, v6""")
    C3N = [int(x) for x in os.environ.get("C3N", "3,3,2").split(",")]
    TCN = [int(x) for x in os.environ.get("TCN", "3,3,3,0").split(",")]
    A(f"""s_lshl_b32 s3, s22, 6
          s_lshl_b32 s42, s21, 5
          s_add_u32 s42, s42, s3
          v_add_u32 v5, s42, v3
          v_lshlrev_b32 v5, 7, v5
          v_lshrrev_b32 v6, 1, v3
          v_lshrrev_b32 v7, 1, v4
          v_xor_b32 v6, v6, v7
          v_lshl_add_u32 v5, v6, 4, v5
          v_and_b32 v7, 1, v4
          v_lshl_add_u32 v5, v7, 3, v5
          v_add_u32 v10, {L_XR}, v5
          v_xor_b32 v11, 32, v10
          v_xor_b32 v12, 64, v10
          v_xor_b32 v13, 96, v10""")
    for tb in range(2):
        for nb in range(4): A(f"ds_read_b64 {v(128+8*tb+2*nb,2)}, v{10+nb} offset:{tb*2048}")
    V.wait("poll"); kv_ready()
    if "late2" in EXP: kv_issue(2)
    kv_issue(3)
    V.op(kvpoll, "poll")
    cs3_loads(A, C3N[0])
    A("s_waitcnt lgkmcnt(0)")
    for i in range(16):
        A(f"v_lshlrev_b32 v{ACC+2*i}, 16, v{128+i}")
        A(f"v_and_b32 v{ACC+2*i+1}, v9, v{128+i}")
    V.wait(("kv", 2))
    A("s_barrier")
    fstamp(A, "B1")
    V.wait("poll"); kv_ready()
    kv_issue(4)
    V.op(kvpoll, "poll")
    cs3_loads(A, C3N[1])
    A("s_barrier")
    fstamp(A, "B2")
    V.wait("poll"); kv_ready()
    A("H_j3:")
    def ldh1():
        for i in range(3): A(f"buffer_load_dword v{18+i}, v61, {WS}, s{48+i} offen sc1")
    def chkh1():
        A("""v_xor_b32 v18, s12, v18
             v_xor_b32 v19, s12, v19
             v_xor_b32 v20, s12, v20
             v_or3_b32 v18, v18, v19, v20
             v_cmp_ne_u32 vcc, 0, v18""")
    def w2_w(Z, b):
        Z(f"s_add_u32 m0, s38, {b*16384}")
        Z("s_lshl_b32 s41, s60, 18")
        Z("s_add_u32 s41, s41, s44")
        for i in range(4): Z(f"buffer_load_dwordx4 v{24+i}, s[28:31], s41 offen offset:{i*1024} lds")
        Z("s_add_u32 s60, s60, 1"); Z("s_and_b32 s60, s60, 7")
        V.note(4, "w")
    def w2_x(Z, b):
        Z("s_lshl_b32 s41, s61, 15")
        Z("s_add_u32 s41, s41, s43")
        for st in range(2):
            for tb in range(4):
                Z(f"buffer_load_dwordx4 {v(XB+32*b+16*st+4*tb,4)}, v{28+(tb>>1)}, {WS}, s41 offen offset:{(tb&1)*1024} sc1")
            if st == 0: Z("s_add_u32 s41, s41, 16384")
        Z("s_add_u32 s61, s61, 1"); Z("s_and_b32 s61, s61, 7")
        V.note(8, "x")
    def w2_loads(Z, b):
        w2_w(Z, b); w2_x(Z, b)
    w2_w(A, 0)
    kv_issue(5)
    ldh1(); V.note(3, "poll"); V.wait("poll")
    spin_until(A, chkh1, ldh1, "h1")
    fstamp(A, "h1ok")
    def w2_reads(b):
        for st in range(2):
            for nb in range(4):
                for e in range(2): A(f"ds_read_b64_tr_b16 {v(WB+16*st+4*nb+2*e,2)}, v{32+nb} offset:{b*16384 + st*8192 + e*2048}")
    def w2_mfma(Z, b):
        if "now2m" in EXP: return
        for st in range(2):
            for nb in range(4):
                for tb in (range(4) if nb % 2 == 0 else reversed(range(4))):
                    Z(f"v_mfma_f32_16x16x32_bf16 {v(acc(tb,nb),4)}, {v(WB+16*st+4*nb,4)}, {v(XB+32*b+16*st+4*tb,4)}, {v(acc(tb,nb),4)}")
    V.op(f"""s_lshl_b32 s41, s16, 9
          s_lshl_b32 s3, s18, 7
          s_add_u32 s41, s41, s3
          s_add_u32 s41, s41, {WS_G}
          buffer_load_dword v36, v23, {WS}, s41 offen sc1""", "g")
    w2_x(A, 0)
    cs3_loads(A, C3N[2])
    A("s_barrier")
    fstamp(A, "B3")
    A(f"s_setprio {os.environ.get('HPRIO', '2')}")
    for j in range(4, 11):
        b = (j - 4) & 1
        w2_reads(b)
        V.wait("x", lg=True)
        I = Asm(); M = Asm()
        w2_loads(I, 1 - b)
        kv_issue(j + 2, I)
        w2_mfma(M, b)
        interleave(A, I.lines, M.lines)
        V.wait("w")
        cs3_acc(j - 4)
        if j == 10: cs3_acc(7)
        A("s_barrier")
        if j in (4, 10): fstamp(A, f"B{j}")
    w2_reads(1)
    V.wait("x", lg=True)
    I = Asm(); M = Asm()
    kv_issue(13, I)
    w2_mfma(M, 1)
    interleave(A, I.lines, M.lines)
    touches(A, TCN[0])
    A(f"""s_mov_b32 exec_hi, 0x00ffffff
          ds_write_b128 v22, v[40:43]
          ds_write_b128 v22, v[44:47] offset:16
          s_mov_b32 exec_hi, -1
          s_lshl_b32 s3, s18, 7
          s_add_u32 s3, s3, {L_GT}
          v_add_u32 v5, s3, v23
          ds_write_b32 v5, v36
          s_lshl_b32 s41, s22, 13
          s_lshl_b32 s3, s21, 15
          s_add_u32 s45, s41, s3
          s_add_u32 s45, s45, {L_W2W}
          v_add_u32 v18, s45, v8
          s_xor_b32 s3, s3, 32768
          s_add_u32 s45, s41, s3
          s_add_u32 s45, s45, {L_W2W}
          v_add_u32 v19, s45, v8
          s_lshl_b32 s3, s18, 6
          v_add_u32 v5, s3, v2
          v_lshlrev_b32 v31, 2, v5
          v_add_u32 v30, {L_C3}, v31""")
    for i in range(8): A(f"ds_write_b128 v18, {v(ACC+32+4*i,4)} offset:{i*1024}")
    V.wait(("kv", 12), lg=True)
    A("s_barrier")
    fstamp(A, "B11")
    for i in range(8): A(f"ds_read_b128 {v(96+4*i,4)}, v19 offset:{i*1024}")
    A(f"""s_lshl_b32 s45, s16, 18
          s_lshl_b32 s3, s17, 14
          s_add_u32 s45, s45, s3
          s_lshl_b32 s3, s42, 6
          s_add_u32 s45, s45, s3
          s_add_u32 s45, s45, {WS_X1}
          s_add_u32 s47, s45, 8192""")
    A("s_waitcnt lgkmcnt(0)")
    for i in range(8): A(f"ds_read_b32 v{160+i}, v30 offset:{i*896}")
    for tb in range(2):
        for nb in range(4):
            a = ACC + 4 * (tb * 4 + nb); xr = 128 + 8 * tb + 2 * nb
            for r in range(4): A(f"v_add_f32 v{a+r}, v{a+r}, v{a+r+32}")
            A(f"""v_cvt_pk_bf16_f32 v{xr}, v{a}, v{a+1}
                  v_cvt_pk_bf16_f32 v{xr+1}, v{a+2}, v{a+3}""")
        V.op(f"buffer_store_dwordx4 {v(128+8*tb,4)}, v8, {WS}, s45 offen offset:{tb*1024} sc1", "st")
        V.op(f"buffer_store_dwordx4 {v(132+8*tb,4)}, v8, {WS}, s47 offen offset:{tb*1024} sc1", "st")
    for tb in range(2):
        sm, sq = 40 + 2*tb, 41 + 2*tb
        for i in range(8):
            r = 128 + 8*tb + i
            A(f"""v_lshlrev_b32 v5, 16, v{r}
                  v_and_b32 v6, v9, v{r}""")
            if i == 0:
                A(f"v_add_f32 v{sm}, v5, v6"); A(f"v_mul_f32 v{sq}, v5, v5")
            else:
                A(f"""v_add_f32 v{sm}, v{sm}, v5
                      v_fmac_f32 v{sq}, v5, v5
                      v_add_f32 v{sm}, v{sm}, v6""")
            A(f"v_fmac_f32 v{sq}, v6, v6")
    V.op(f"""s_lshl_b32 s41, s19, 10
          v_permlane32_swap_b32 v40, v41
          v_permlane32_swap_b32 v42, v43
          s_lshl_b32 s3, s42, 3
          v_add_f32 v40, v40, v41
          v_add_f32 v42, v42, v43
          s_add_u32 s41, s41, s3
          s_add_u32 s41, s41, {WS_ST}
          v_permlane16_swap_b32 v40, v42
          s_nop 0
          v_add_f32 v40, v40, v42
          buffer_store_dword v40, v21, {WS}, s41 offen sc1""", "st")
    kv_issue(14)
    touches(A, TCN[1])
    V.wait(("kv", 13), lg=True)
    A("s_barrier")
    fstamp(A, "B12")
    kv_issue(15)
    A(f"""s_lshl_b32 s45, s19, {2+FS}
          s_lshl_b32 s3, s18, {FS}
          s_add_u32 s45, s45, s3
          s_add_u32 s45, s45, {F_X1}""")
    V.wait("st")
    flag_store(A, 45); V.note(1, "st")
    for i in range(1, 8): A(f"v_add_f32 v160, v160, v{160+i}")
    V.op(f"""s_mul_i32 s41, s16, {F*8}
          s_mul_i32 s3, s17, 1792
          s_add_u32 s41, s41, s3
          s_add_u32 s41, s41, {WS_CS3}
          v_cmp_gt_u32 vcc, 896, v31
          v_lshlrev_b32 v31, 1, v31
          v_mov_b32 v5, {OOB}
          v_mov_b32 v161, s12
          v_cndmask_b32 v5, v5, v31, vcc
          buffer_store_dwordx2 v[160:161], v5, {WS}, s41 offen sc1""", "st")
    for i in range(7):
        A(f"""v_add_u32 v5, {i*64}, v2
              v_mul_u32_u24 v6, 2341, v5
              v_lshrrev_b32 v6, 16, v6
              v_mul_u32_u24 v7, 28, v6
              v_sub_u32 v7, v5, v7
              v_bfe_u32 v5, v6, 2, 1
              v_lshlrev_b32 v5, 1, v5
              v_xor_b32 v7, v7, v5
              v_mul_u32_u24 v6, 7168, v6
              v_lshl_add_u32 v{10+i}, v7, 4, v6""")
        if i & 3: A(f"v_subrev_u32 v{10+i}, {(i&3)*1024}, v{10+i}")
    srd(A, 28, P_W3, P_W3 + 1, D * F * 2)
    A(f"""s_lshl_b32 s43, s16, 18
          s_add_u32 s43, s43, s46
          s_add_u32 s43, s43, {WS_X1}
          s_mul_i32 s44, s18, {16*7168}
          s_mul_i32 s3, s17, 448
          s_add_u32 s44, s44, s3
          s_mul_i32 s38, s18, 7168
          s_add_u32 s38, s38, 16384
          s_lshl_b32 s48, s16, {6+FS}
          s_add_u32 s48, s48, {F_X1}""")
    touches(A, TCN[2])
    V.wait(("kv", 14))
    A("s_barrier")
    fstamp(A, "B13")
    A("s_setprio 0")
    r3a, r3b = [int(x) for x in os.environ.get("ROT3", "2,0").split(",")]
    A(f"""s_mul_i32 s50, s16, {r3a}
          s_mul_i32 s3, s17, {r3b}
          s_add_u32 s50, s50, s3
          s_and_b32 s50, s50, 15
          s_mov_b32 s51, s50""")
    def p3_x(slot):
        A(f"s_add_u32 m0, s46, {slot}")
        A("s_lshl_b32 s41, s50, 14")
        A("s_add_u32 s41, s41, s43")
        for i in range(4): A(f"buffer_load_dwordx4 v8, {WS}, s41 offen offset:{i*1024} sc1 lds")
        A("s_add_u32 s50, s50, 1"); A("s_and_b32 s50, s50, 15")
    def p3_w(slot):
        A(f"s_add_u32 m0, s38, {slot}")
        A(f"s_mul_i32 s41, s51, {64*7168}")
        A("s_add_u32 s41, s41, s44")
        for i in range(7):
            if i == 4:
                A("s_add_u32 m0, m0, 4096"); A("s_add_u32 s51, s51, 1")
            A(f"buffer_load_dwordx4 v{10+i}, s[28:31], s41 offen offset:{(i&3)*1024} lds")
        A("s_and_b32 s51, s51, 15")
    def p3_issue(slot):
        p3_x(slot); p3_w(slot)
    p3_w(L3 + S3)
    p3_w(L3 + 2 * S3)
    k = code_touch(A, "C_attend", "C_slow", 1)
    V.note(14 + k, "p3")
    touches(A, TCN[3])
    V.wait(("kv", 15))
    A("s_barrier")
    fstamp(A, "B14")
    ld = lambda: A(f"buffer_load_dword v20, v61, {WS}, s48 offen sc1")
    ld()
    A("s_waitcnt vmcnt(0)")
    spin_until(A, lambda: A("v_cmp_ne_u32 vcc, s12, v20"), ld, "x1")
    fstamp(A, "x1ok")
    p3_x(L3 + S3); p3_x(L3 + 2 * S3)
    A("s_barrier")
    A(f"""s_lshl_b32 s41, s16, 14
          s_lshl_b32 s3, s18, 8
          s_add_u32 s41, s41, s3
          s_add_u32 s41, s41, {WS_ST}""")
    for i in range(16):
        A(f"buffer_load_dword v{64+i}, v21, {WS}, s41 offen offset:{(i&3)*1024} sc1")
        if i & 3 == 3: A("s_add_u32 s41, s41, 4096")
    A(f"""s_lshl_b32 s3, s18, 6
          v_add_u32 v5, s3, v2
          v_min_u32 v5, 223, v5
          v_lshlrev_b32 v22, 3, v5
          s_mul_i32 s49, s17, 1792
          s_add_u32 s49, s49, {WS_CS3}""")
    def ldcs():
        A("s_mov_b32 s41, s49")
        for i in range(16):
            A(f"buffer_load_dwordx2 {v(96+2*i,2)}, v22, {WS}, s41 offen sc1")
            if i < 15: A(f"s_add_u32 s41, s41, {F*8}")
    ldcs()
    endit(36)
    p3_issue(L3)
    endit(11)
    p3_issue(L3 + S3)
    def chkcs():
        A("v_xor_b32 v5, s12, v97")
        for i in range(1, 16):
            A(f"v_xor_b32 v6, s12, v{97+2*i}"); A("v_or_b32 v5, v5, v6")
        A("v_cmp_ne_u32 vcc, 0, v5")
    spin_until(A, chkcs, ldcs, "cs3")
    for i in range(1, 16): A(f"v_add_f32 v64, v64, v{64+i}")
    for i in range(1, 16): A(f"v_add_f32 v96, v96, v{96+2*i}")
    A(f"""v_mul_f32 v64, {hexf(1.0/1024)}, v64
          v_lshrrev_b32 v22, 1, v22
          v_mov_b32 v65, v64
          v_add_u32 v22, {L_CS}, v22
          v_sub_f32 v37, 1.0, v36
          v_permlane32_swap_b32 v64, v65
          ds_write_b32 v22, v96
          v_cvt_pk_bf16_f32 v37, v37, v37
          v_and_b32 v37, v9, v37
          v_max_f32 v37, {hexf(2.0**-60)}, v37""")
    ln_consts(A, 64, 5, 37)
    A(f"""s_lshl_b32 s3, s18, 9
          s_add_u32 s3, s3, {L_ST}
          v_lshl_add_u32 v5, v23, 2, s3
          ds_write_b128 v5, v[64:67]""")
    endit(11, True)
    A(f"s_mov_b32 s45, {L3 + 2*S3}")
    A("s_mov_b32 s40, 12")
    L = A.label("p3loop")
    A(f"{L}:")
    if "p3now" in EXP: p3_x("s45")
    else: p3_issue("s45")
    A(f"""s_add_u32 s45, s45, {S3}
          s_cmp_eq_u32 s45, {L3 + 3*S3}
          s_cselect_b32 s45, {L3}, s45
          s_waitcnt vmcnt(11)
          s_barrier
          s_sub_u32 s40, s40, 1
          s_cmp_lg_u32 s40, 0
          s_cbranch_scc1 {L}""")
    A(f"""s_lshr_b32 s21, s17, 3
          s_lshl_b32 s48, s16, {6+FS}
          s_lshl_b32 s3, s21, {5+FS}
          s_add_u32 s48, s48, s3
          s_add_u32 s48, s48, {F_O}
          v_and_b32 v61, {(32 << FS) - 1}, v61""")
    ld()
    A(f"""v_lshrrev_b32 v5, 4, v2
          v_and_b32 v6, 15, v2
          v_lshlrev_b32 v7, 1, v5
          v_xor_b32 v7, v7, v6
          s_lshl_b32 s3, s18, 4
          v_add_u32 v5, s3, v5
          v_lshlrev_b32 v5, 11, v5
          v_lshl_add_u32 v11, v7, 4, v5
          s_and_b32 s3, s17, 7
          s_lshl_b32 s3, s3, 8
          v_add_u32 v11, s3, v11
          v_xor_b32 v12, 128, v11
          v_add_u32 v12, {4*2048 - 1024}, v12
          v_add_u32 v13, {8*2048 - 2048}, v11
          v_add_u32 v14, {8*2048 - 2048}, v12
          s_lshr_b32 s21, s17, 3
          s_mul_i32 s33, s16, {HO_PANEL}
          s_add_u32 s33, s33, s46
          s_add_u32 s33, s33, {WS_HO}
          s_lshl_b32 s3, s21, 17
          s_add_u32 s43, s33, s3
          s_add_u32 s43, s43, {112*8192}
          s_lshl_b32 s44, s21, 20
          s_add_u32 s38, s46, 16384""")
    srd(A, 28, P_WO, P_WO + 1, D * D * 2)
    k = code_touch(A, "C_p3end", "C_p4end", 1)
    endit(k)
    spin_until(A, lambda: A("v_cmp_ne_u32 vcc, s12, v20"), ld, "o")
    A("s_barrier")
    fstamp(A, "p3B15")
    V = VM(A)
    RW = [int(x) for x in os.environ.get("RW", "").split(",") if x]
    rwreg = {t: 64 + 16 * i for i, t in enumerate(RW)}
    def p4_x(t):
        slot = (t % 4) * S4
        A(f"s_add_u32 m0, s46, {slot}")
        A("s_nop 0")
        for i in range(4): V.op(f"buffer_load_dwordx4 v8, {WS}, s43 offen offset:{i*1024} sc1 lds", ("t", t))
        A("s_add_u32 s43, s43, 16384")
    def p4_w(t):
        slot = (t % 4) * S4
        if t not in rwreg:
            A(f"s_add_u32 m0, s38, {slot}")
            A("s_nop 0")
            for i in range(4): V.op(f"buffer_load_dwordx4 v{11+i}, {'s[28:31]' if t < 8 else 's[52:55]'}, s44 offen offset:{i*1024} lds", ("t", t))
        if t == 7: A(f"s_mul_i32 s44, s21, {1792*2048}")
        else: A(f"s_add_u32 s44, s44, {64*2048}")
    def p4_issue(t):
        p4_x(t); p4_w(t)
    def p4_end(j):
        V.wait(("t", min(j + 1, 35)))
        A("s_barrier")
    PP = os.environ.get("PP", "")
    for t in range(4):
        p4_x(t)
        if PP: A(f"s_waitcnt vmcnt({PP})")
        p4_w(t)
        if PP: A(f"s_waitcnt vmcnt({PP})")
    A(f"s_add_u32 s48, s48, {F_H2 - F_O}")
    V.wait(("t", 0))
    fstamp(A, "p4pre")
    A("s_barrier")
    p4_end(0)
    for j in range(1, 5):
        p4_issue(j + 3)
        p4_end(j)
    fstamp(A, "p4j5")
    A(f"""s_mul_i32 s3, s21, {56*8192}
          s_add_u32 s43, s33, s3""")
    ldp = f"buffer_load_dword v20, v61, {WS}, s48 offen sc1"
    L6 = A.label("h2at6"); L7 = A.label("h2at7"); Lj6 = A.label("h2j6"); Lj7 = A.label("h2j7")
    V.op(ldp, "poll"); p4_w(8); V.wait("poll")
    A("v_cmp_ne_u32 vcc, s12, v20")
    A(f"s_cbranch_vccnz {L6}")
    base = list(V.log)
    p4_x(8); A("s_barrier")
    p4_w(9)
    A(f"{Lj6}:")
    p4_x(9); A("s_barrier")
    p4_w(10)
    A(f"{Lj7}:")
    p4_x(10)
    fstamp(A, "h2ok")
    A("s_waitcnt vmcnt(8)")
    A("s_barrier")
    Lgo = A.label("h2go")
    A(f"s_branch {Lgo}")
    keep = list(V.log)
    A(f"{L6}:")
    A("s_barrier")
    A(ldp); p4_w(9); A("s_waitcnt vmcnt(4)")
    A("v_cmp_ne_u32 vcc, s12, v20")
    A(f"s_cbranch_vccnz {L7}")
    p4_x(8)
    A(f"s_branch {Lj6}")
    A(f"{L7}:")
    A("s_barrier")
    A(ldp); p4_w(10); A("s_waitcnt vmcnt(4)")
    spin_until(A, lambda: A("v_cmp_ne_u32 vcc, s12, v20"), ld, "h2")
    p4_x(8); p4_x(9)
    A(f"s_branch {Lj7}")
    A(f"{Lgo}:")
    V.log = [("t", 8)] * 4 + [("t", 9)] * 4 + [("t", 10)] * 4
    for j in range(8, 33):
        p4_issue(j + 3)
        if j == 28: V.note(code_touch(A, "C_p4end", "C_slow", 1), "ct")
        p4_end(j)
    p4_end(33); p4_end(34)
    A("s_barrier")
    fstamp(A, "end")
    fstamp_flush(A, 1)

def compute(A):
    ROLE[0] = 0
    ACC, XB0, WB0 = 128, 64, 96
    acc = lambda tb, nb: ACC + 4 * (tb * 8 + nb)
    XB = lambda p, tb: XB0 + 16 * p + 4 * tb
    WB = lambda nb: WB0 + 4 * nb
    if PROF: A("v_mov_b64 v[62:63], 0")
    A("""s_lshr_b32 s19, s18, 1
         s_and_b32 s20, s18, 1
         v_and_b32 v3, 15, v2
         v_lshrrev_b32 v4, 4, v2""")
    A("""s_lshl_b32 s3, s19, 6
         v_add_u32 v5, s3, v3
         v_lshlrev_b32 v5, 7, v5
         v_lshrrev_b32 v6, 1, v3
         v_xor_b32 v6, v6, v4
         v_lshlrev_b32 v7, 4, v6
         v_add_u32 v14, v5, v7
         v_xor_b32 v15, 64, v14""")
    A("""v_lshrrev_b32 v5, 2, v3
         v_and_b32 v6, 3, v3
         v_lshl_add_u32 v7, v4, 3, v5
         v_lshlrev_b32 v7, 7, v7
         v_lshl_add_u32 v7, v6, 3, v7
         v_lshrrev_b32 v8, 1, v5
         v_and_b32 v9, 1, v4
         v_lshl_or_b32 v8, v9, 1, v8
         s_lshl_b32 s3, s20, 1
         v_xor_b32 v8, s3, v8
         v_lshl_add_u32 v16, v8, 5, v7
         v_xor_b32 v17, 32, v16""")
    A("""v_mov_b32 v10, v14
         v_mov_b32 v11, v15
         v_mov_b32 v12, v16
         v_mov_b32 v13, v17
         s_mov_b32 s21, 0""")
    Lnn = A.label("nononce")
    A(f"""s_memrealtime s[28:29]
          s_waitcnt lgkmcnt(0)
          s_or_b32 s3, s2, s18
          s_cmp_lg_u32 s3, 0
          s_cbranch_scc1 {Lnn}""")
    srd(A, 24, P_DBG, P_DBG + 1, 4)
    A(f"""s_or_b32 s28, s28, 1
          v_mov_b32 v5, s28
          v_lshlrev_b32 v6, 2, v2
          buffer_store_dword v5, v6, s[24:27], 0 offen sc1""")
    A(f"{Lnn}:")
    srd(A, 4, P_WS, P_WS + 1, WS_END)
    fstamp(A, "start")
    for i in range(0, 128, 2): A(f"v_mov_b64 {v(ACC+i,2)}, 0")
    A(f"""v_and_b32 v5, 1, v4
          v_lshrrev_b32 v6, 1, v4
          v_lshlrev_b32 v5, 6, v5
          v_lshl_add_u32 v5, v6, 9, v5
          v_lshrrev_b32 v6, 2, v3
          v_and_b32 v7, 3, v3
          v_lshl_add_u32 v6, v6, 3, v7
          v_lshl_add_u32 v21, v6, 4, v5
          v_lshlrev_b32 v5, 9, v4
          v_lshrrev_b32 v6, 3, v3
          v_and_b32 v7, 7, v3
          v_lshl_add_u32 v6, v6, 4, v7
          v_lshl_add_u32 v22, v6, 4, v5
          s_lshl_b32 s3, s20, 14
          s_lshl_b32 s22, s19, 13
          s_add_u32 s3, s3, s22
          v_add_u32 v21, s3, v21
          v_add_u32 v22, s3, v22
          s_lshl_b32 s3, s19, 10
          v_lshl_add_u32 v18, v3, 4, s3
          v_add_u32 v18, {L_ST}, v18
          s_lshl_b32 s3, s20, 7
          v_lshl_add_u32 v19, v4, 4, s3
          v_add_u32 v19, {L_CS}, v19
          v_mov_b32 v20, {L_NON}
          s_mov_b32 s38, {hexf(QSCALE)}
          s_lshl_b32 s22, s13, 1
          s_add_u32 s22, s22, s20
          s_lshr_b32 s3, s22, 3
          s_lshr_b32 s32, s3, 1
          s_add_u32 s32, s32, 1
          s_sub_u32 s33, 0, s32
          s_and_b32 s3, s3, 1
          s_cmp_eq_u32 s3, 1
          s_cselect_b32 s32, s33, s32
          s_lshl_b32 s33, s16, 7
          s_lshl_b32 s3, s19, 6
          s_add_u32 s33, s33, s3
          s_add_u32 s33, s33, s32
          s_lshl_b32 s34, s22, 13
          s_add_u32 s34, s34, {WS_H1}
          v_add_u32 v50, s33, v3
          v_and_b32 v49, 15, v50
          v_lshlrev_b32 v49, 4, v49
          v_lshl_add_u32 v49, v4, 8, v49
          v_cmp_gt_u32 vcc, 2048, v50
          s_mov_b64 s[42:43], vcc""")
    for tb in range(4):
        A(f"""v_bfe_u32 v51, v50, 7, 4
              v_bfe_u32 v48, v50, 4, 3
              v_lshl_add_u32 v51, v51, 18, v49
              v_lshl_add_u32 v{56+tb}, v48, 10, v51""")
        if tb < 3: A("v_add_u32 v50, 16, v50")
    A(f"""v_cmp_gt_u32 vcc, 2048, v50
         s_mov_b64 s[44:45], vcc
         s_lshl_b32 s23, s16, {6+FS}
         s_lshl_b32 s3, s17, {2+FS}
         s_add_u32 s23, s23, s3
         s_lshl_b32 s3, s18, {FS}
         s_add_u32 s23, s23, s3""")
    A(f"""s_lshl_b32 s3, s17, 4
          s_add_u32 s3, s3, s16
          s_lshl_b32 s46, s3, 15
          s_add_u32 s46, s46, {WS_KV}
          s_add_u32 s47, s46, 4096
          s_lshl_b32 s48, s3, 10
          s_lshl_b32 s3, s20, 8
          s_add_u32 s48, s48, s3
          s_lshl_b32 s3, s19, 7
          s_add_u32 s48, s48, s3
          s_add_u32 s48, s48, {F_KV}
          s_mov_b32 s49, 1""")
    def try_flag(Z, soff, block=False, lane=30):
        Ls = A.label("tf")
        if block:
            Z("s_cmp_eq_u32 s49, 0")
        else:
            Z("s_getreg_b32 s3, hwreg(HW_REG_IB_STS, 0, 4)")
            Z("s_cmp_ge_u32 s3, s49")
        Z(f"s_cbranch_scc1 {Ls}")
        Z("s_waitcnt vmcnt(0)")
        Z("s_mov_b32 s49, 0")
        if PROF:
            Z("s_memrealtime s[96:97]"); Z("s_waitcnt lgkmcnt(0)"); Z(f"v_writelane_b32 v62, s96, {lane}")
        flag_store(Z, soff)
        Z(f"{Ls}:")
    xread = lambda st, tb, dst: f"ds_read_b128 {v(dst,4)}, v{10+st} offset:{tb*2048}"
    wread = lambda st, nb, e, dst: f"ds_read_b64_tr_b16 {v(dst,2)}, v{12+(nb&1)} offset:{16384 + (nb>>1)*8192 + st*4096 + e*512}"
    def advance():
        return [f"s_add_u32 s21, s21, {S1}", f"s_cmp_eq_u32 s21, {3*S1}", "s_cselect_b32 s21, 0, s21",
                "v_add_u32 v10, s21, v14", "v_add_u32 v11, s21, v15", "v_add_u32 v12, s21, v16", "v_add_u32 v13, s21, v17"]
    for sl in range(3):
        for i in range(4): A(f"v_add_u32 v{24+4*sl+i}, {sl*S1}, v{14+i}")
    A("s_barrier")
    fstamp(A, "P")
    if MS or "oldp1" in EXP: compute_loop(A, 4, 8, 2, 16 - MS, acc, XB, WB, xread, wread, advance, swapped=(4, 5), name="p1c")
    else:
        xr1 = lambda sl, st, tb, dst: f"ds_read_b128 {v(dst,4)}, v{24+4*sl+st} offset:{tb*2048}"
        wr1 = lambda sl, st, nb, e, dst: f"ds_read_b64_tr_b16 {v(dst,2)}, v{26+4*sl+(nb&1)} offset:{16384 + (nb>>1)*8192 + st*4096 + e*512}"
        gemm_loop(A, 4, list(range(8)), 16, 3, 0, acc, XB, lambda p, nb: WB(nb), xr1, wr1, swapped=(4, 5), bar_gap=int(os.environ.get("BG1", "8")), name="p1c")
    A("C_p1a:")
    fstamp(A, "p1a")
    if MS: compute_loop(A, 4, 8, 2, MS, acc, XB, WB, xread, wread, advance, swapped=(4, 5), name="p1a", nbs=[2, 3, 4, 5], skip_pre=True, bar_after=1)
    fstamp(A, "p1b")
    def pack(t, a0, a1):
        A(f"v_cvt_pk_bf16_f32 v{t}, v{a0}, v{a0+1}"); A(f"v_cvt_pk_bf16_f32 v{t+1}, v{a0+2}, v{a0+3}")
        A(f"v_cvt_pk_bf16_f32 v{t+2}, v{a1}, v{a1+1}"); A(f"v_cvt_pk_bf16_f32 v{t+3}, v{a1+2}, v{a1+3}")
    for nb in ((0, 1, 6, 7) if MS else ()):
        for e in range(2): A(wread(0, nb, e, WB(nb) + 2*e))
    gst = []; lst = []
    for u in range(2):
        for a in range(2):
            t = acc(2*u + a, 2)
            pack(t, t, acc(2*u + a, 3))
            lst.append(f"ds_write_b128 v21, {v(t,4)} offset:{kvslot(0) + u*4096 + a*1024}")
            gst.append(f"buffer_store_dwordx4 {v(t,4)}, v21, {WS}, s{46 + u} offen offset:{a*1024} sc1")
        for nbv in range(2):
            t = acc(2*u + nbv, 3)
            pack(t, acc(2*u, 4+nbv), acc(2*u+1, 4+nbv))
            lst.append(f"ds_write_b128 v22, {v(t,4)} offset:{kvslot(0) + u*4096 + 2048 + nbv*128}")
            gst.append(f"buffer_store_dwordx4 {v(t,4)}, v22, {WS}, s{46 + u} offen offset:{2048 + nbv*128} sc1")
    for u in range(2):
        for i in range(4): A(f"v_permlane16_swap_b32 v{acc(2*u,2)+i}, v{acc(2*u+1,2)+i}")
    pace = int(os.environ.get("PACE", "4"))
    un = [dict() for _ in range(MS)]
    for i, g_ in enumerate(gst):
        if MS == 0: A(g_); continue
        pos = min(i * pace, MS * 32 - 8 + i)
        un[pos // 32][pos % 32] = g_
    if MS: compute_loop(A, 4, 8, 2, MS, acc, XB, WB, xread, wread, advance, name="p1b", nbs=[0, 1, 6, 7], skip_pre=True, bar_after=1, unroll=un)
    A("C_p1end:")
    fstamp(A, "p1end")
    SB = lambda i: 64 + 16 * (i & 3)
    O = lambda q: 128 + 16 * q
    Lr = lambda q: 160 + 4 * q
    Q = lambda q, b: 168 + 8 * q + 4 * b
    KB = lambda p, b: 184 + 8 * p + 4 * b
    VB = lambda p, b: 200 + 8 * p + 4 * b
    ONES, IDX, VBASE, VL16, H1P, VB0 = 216, 220, 10, 11, 224, 17
    for l in lst: A(l)
    for tb in range(4): A(f"ds_read_b128 {v(24+4*tb,4)}, v18 offset:{tb*256}")
    A("ds_read_b128 v[40:43], v19")
    A("ds_read_b128 v[44:47], v19 offset:64")
    A("ds_read_b32 v20, v20")
    A("s_waitcnt lgkmcnt(0)")
    A("s_barrier")
    A("v_readfirstlane_b32 s12, v20")
    for tb in range(4):
        a0 = acc(tb, 0)
        for r in range(0, 8, 2): A(f"v_pk_mul_f32 {v(a0+r,2)}, {v(a0+r,2)}, s[38:39] op_sel_hi:[1,0]")
        pack(Q(tb >> 1, tb & 1), a0, a0 + 4)
    try_flag(A, 48)
    for tb in range(4):
        a0 = acc(tb, 6); t = H1P + 4 * tb
        gelu_pk(A, [a0 + 2*i for i in range(4)], [40 + 2*i for i in range(4)], 24 + 4*tb, [48 + 2*i for i in range(4)], [t + i for i in range(4)])
        if tb in (0, 3):
            for r in range(4): A(f"v_cndmask_b32 v{t+r}, 0, v{t+r}, {'s[42:43]' if tb == 0 else 's[44:45]'}")
        try_flag(A, 48)
    for q in range(2):
        for i in range(4): A(f"v_permlane16_swap_b32 v{Q(q,0)+i}, v{Q(q,1)+i}")
    A(f"""v_lshlrev_b32 v{VL16}, 4, v2
          s_lshl_b32 s3, s20, 14
          v_add_u32 v{VB0}, s3, v{VL16}
          s_mov_b32 s21, {kvslot(0)}
          v_add_u32 v{VBASE}, s21, v{VB0}""")
    rdK = lambda t: [Item(f"ds_read_b128 {v(KB(t&1,b),4)}, v{VBASE} offset:{(t&3)*4096 + b*1024}", gives=("K", t&1, b)) for b in range(2)]
    rdV = lambda t: [Item(f"ds_read_b128 {v(VB(t&1,b),4)}, v{VBASE} offset:{(t&3)*4096 + 2048 + b*1024}", gives=("V", t&1, b)) for b in range(2)]
    pre = [Item("", gives=("V", 1, 0)), Item("", gives=("V", 1, 1))] + rdK(0) + rdV(0)
    for it in pre[2:]: A(it.text)
    A(f"""v_and_b32 v5, 7, v2
          v_cmp_eq_u32 vcc, 0, v5
          v_cmp_eq_u32 s[42:43], 4, v5
          v_mov_b32 v5, 0x3f803f80
          v_mov_b32 v{IDX}, 0xdddddddd
          v_cndmask_b32 v{ONES}, 0, v5, vcc
          v_cndmask_b32 v{ONES+1}, 0, v5, vcc
          v_cndmask_b32 v{ONES+2}, 0, v5, s[42:43]
          v_cndmask_b32 v{ONES+3}, 0, v5, s[42:43]""")
    for i in range(0, 40, 2): A(f"v_mov_b64 {v(128+i,2)}, 0")
    for i in range(0, 16, 2): A(f"v_mov_b64 {v(SB(3)+i,2)}, 0")
    for i in range(0, 8, 2): A(f"v_mov_b64 {v(VB(1,0)+i,2)}, 0")
    def qk(u):
        t, q = u >> 1, u & 1
        d = SB(u)
        return [Item(f"v_mfma_f32_32x32x16_bf16 {v(d,16)}, {v(KB(t&1,0),4)}, {v(Q(q,0),4)}, 0", needs=[("K", t&1, 0), ("K", t&1, 1)]),
                Item(f"v_mfma_f32_32x32x16_bf16 {v(d,16)}, {v(KB(t&1,1),4)}, {v(Q(q,1),4)}, {v(d,16)}")]
    def pv(u, need=True):
        t, q = u >> 1, u & 1
        d = SB(u)
        r = []
        for b in range(2):
            r.append(Item(f"v_smfmac_f32_32x32x32_bf16 {v(O(q),16)}, {v(VB(t&1,b),4)}, {v(d+8*b,8)}, v{IDX}", needs=[("V", t&1, b)] if need else []))
            r.append(Item(f"v_smfmac_f32_16x16x64_bf16 {v(Lr(q),4)}, {v(ONES,4)}, {v(d+8*b,8)}, v{IDX}"))
        return r
    A("s_waitcnt lgkmcnt(2)")
    for it in qk(0): A(it.text)
    fstamp(A, "att0")
    A("s_nop 9")
    body = []
    for u in range(8):
        e = [Item(f"v_exp_f32 v{SB(u)+i}, v{SB(u)+i}") for i in range(16)]
        m = qk(u + 1) + pv(u - 1)
        t1 = (u >> 1) + 1
        extra = rdK(t1) if (u & 1) == 0 else rdV(t1)
        if u == 5: extra += [Item(f"s_add_u32 s21, s21, {KVS}"), Item(f"s_cmp_eq_u32 s21, {3*KVS}"), Item("s_cselect_b32 s21, 0, s21"), Item(f"v_add_u32 v{VBASE}, s21, v{VB0}")]
        if u == 7: extra += [Item("s_sub_u32 s40, s40, 1"), Item("s_cmp_lg_u32 s40, 0")]
        cnt = [3, 3, 3, 1, 3, 3]
        k = 0
        for mi in range(6):
            body.append(m[mi])
            if mi == 0 and u == 6: body.append(Item("s_barrier", drain=True))
            if extra: body.append(extra.pop(0))
            for j in range(cnt[mi]):
                body.append(e[k]); k += 1
    lines = insert_lgkm_waits(pre, body, maxcnt=15)
    try_flag(A, 48, block=True)
    nq = 0
    h1u = [int(x) for x in os.environ.get("H1U", "2,3,4,5").split(",")]
    for l in lines:
        if l.startswith(("s_sub_u32 s40", "s_cmp_lg_u32 s40")): continue
        A(l)
        if l.startswith("v_mfma") and l.endswith(", 0"):
            for tb in range(4):
                if h1u[tb] == nq: A(f"buffer_store_dwordx4 {v(H1P+4*tb,4)}, v{56+tb}, {WS}, s34 offen sc1")
            nq += 1
    A(f"s_add_u32 s48, s23, {F_H1}")
    A("s_mov_b32 s49, 1")
    try_flag(A, 48, lane=31)
    fstamp(A, "st0end")
    L = A.label("aloop"); Lx = A.label("aexit")
    A("s_mov_b32 s40, 1")
    A("s_mov_b32 s41, 14")
    A(f"{L}:")
    for l in lines: A(l)
    A(f"s_cbranch_scc1 {L}")
    A(f"""s_cmp_eq_u32 s41, 0
          s_cbranch_scc1 {Lx}""")
    try_flag(A, 48, block=True, lane=31)
    fstamp(A, "st1end")
    A(f"""s_mov_b32 s40, s41
          s_mov_b32 s41, 0
          s_branch {L}""")
    A(f"{Lx}:")
    A("C_attend:")
    for it in pv(7, False): A(it.text)
    fstamp(A, "attend")
    A(f"""v_and_b32 v5, 31, v2
          s_lshl_b32 s3, s19, 8
          s_add_u32 s3, s3, {L_GT}
          v_lshl_add_u32 v5, v5, 2, s3
          ds_read_b32 v12, v5
          ds_read_b32 v13, v5 offset:128
          s_mul_i32 s28, s16, {HO_PANEL}
          s_add_u32 s28, s28, {WS_HO}
          s_lshl_b32 s3, s17, 1
          s_add_u32 s3, s3, s20
          s_add_u32 s3, s3, 112
          s_lshl_b32 s3, s3, 13
          s_add_u32 s29, s28, s3
          s_lshl_b32 s3, s19, 12
          s_add_u32 s29, s29, s3
          v_bfe_u32 v6, v2, 4, 1
          v_lshlrev_b32 v6, 10, v6
          v_lshl_add_u32 v6, v3, 4, v6
          v_lshrrev_b32 v7, 5, v2
          v_lshl_add_u32 v16, v7, 8, v6""")
    Lslow = A.label("slow"); Lfin = A.label("fin")
    A(f"""v_min_f32 v8, v{Lr(0)}, v{Lr(1)}
          v_max_f32 v5, v{Lr(0)}, v{Lr(1)}
          v_pk_mul_f32 v[6:7], v[128:129], 0 op_sel_hi:[1,0]""")
    for i in range(2, 32, 2): A(f"v_pk_fma_f32 v[6:7], {v(128+i,2)}, 0, v[6:7] op_sel_hi:[1,0,1]")
    A(f"""v_add_f32 v7, v6, v7
          v_fmac_f32 v7, 0, v{Lr(0)}
          v_fmac_f32 v7, 0, v{Lr(1)}
          v_cmp_le_f32 vcc, {hexf(2.0**-20)}, v8
          s_mov_b64 s[44:45], vcc
          v_cmp_ge_f32 vcc, {hexf(2.0**60)}, v5
          s_and_b64 s[44:45], s[44:45], vcc
          v_cmp_eq_f32 vcc, 0, v7
          s_and_b64 s[44:45], s[44:45], vcc
          s_cmp_eq_u64 s[44:45], -1""")
    if "forceslow" in EXP: A(f"s_branch {Lslow}")
    A(f"s_cbranch_scc0 {Lslow}")
    A(f"{Lfin}:")
    A(f"""v_rcp_f32 v6, v{Lr(0)}
          v_rcp_f32 v7, v{Lr(1)}
          s_waitcnt lgkmcnt(0)
          v_mul_f32 v6, v6, v12
          v_mul_f32 v7, v7, v13""")
    for q in range(2):
        for i in range(0, 16, 2): A(f"v_pk_mul_f32 {v(O(q)+i,2)}, {v(O(q)+i,2)}, v[6:7] op_sel:[0,{q}] op_sel_hi:[1,{q}]")
        for b in range(2):
            t = 32 + 8 * q + 4 * b
            for i in range(4): A(f"v_cvt_pk_bf16_f32 v{t+i}, v{O(q)+8*b+2*i}, v{O(q)+8*b+2*i+1}")
            A(f"buffer_store_dwordx4 {v(t,4)}, v16, {WS}, s29 offen offset:{q*2048 + b*512} sc1")
    acc = lambda tb, nb: ACC + 4 * (tb * 7 + nb)
    A(f"""s_lshl_b32 s3, s19, 12
          v_add_u32 v14, s3, v{VL16}
          v_mov_b32 v9, v{VL16}
          v_lshrrev_b32 v5, 2, v3
          v_and_b32 v6, 3, v3
          v_lshl_add_u32 v7, v4, 2, v5
          v_mul_u32_u24 v7, 448, v7
          v_add_u32 v7, 16384, v7
          v_and_b32 v8, 1, v4
          v_lshl_add_u32 v5, v6, 3, v7
          s_lshl_b32 s3, s20, 8
          v_add_u32 v5, s3, v5
          v_lshl_add_u32 v15, v8, 5, v5
          v_xor_b32 v18, 1, v8
          v_lshl_add_u32 v18, v18, 5, v5
          v_and_b32 v5, 1, v6
          v_xor_b32 v5, v5, v8
          v_lshl_add_u32 v7, v5, 5, v7
          v_lshrrev_b32 v5, 1, v6
          v_lshl_add_u32 v7, v5, 3, v7
          s_lshl_b32 s3, s20, 4
          s_add_u32 s3, s3, 192
          v_add_u32 v17, s3, v7
          v_mov_b32 v16, v18
          s_mov_b32 s21, {L3 + S3}""")
    for sl in range(3):
        for i in range(4): A(f"v_add_u32 v{48+4*sl+i}, {L3 + sl*S3}, v{14+i}")
    for i in range(0, 112, 2): A(f"v_mov_b64 {v(ACC+i,2)}, 0")
    xread = lambda sl, st, tb, dst: f"ds_read_b128 {v(dst,4)}, v{48+4*sl} offset:{st*8192 + tb*1024}"
    wread = lambda sl, st, nb, e, dst: f"ds_read_b64_tr_b16 {v(dst,2)}, v{48+4*sl+(3 if nb == 6 else 1+(nb&1))} offset:{(0 if nb == 6 else (nb>>1)*64) + (st*32 + e*16)*448}"
    fstamp(A, "p3rdy")
    A("s_barrier")
    fstamp(A, "P3")
    def flagO():
        A(f"""s_add_u32 s3, s23, {F_O}
              s_waitcnt vmcnt(0)""")
        flag_store(A, 3)
    gemm_loop(A, 4, list(range(7)), 16, 3, 1, acc, XB, lambda p, nb: WB(nb), xread, wread, bar_gap=int(os.environ.get("BG3", "8")), name="p3c", hooks={3: flagO})
    A("C_p3end:")
    fstamp(A, "p3end")
    A(f"""s_lshl_b32 s3, s19, 10
          v_lshl_add_u32 v5, v3, 4, s3
          v_add_u32 v5, {L_ST}, v5
          s_lshl_b32 s3, s20, 9
          v_lshl_add_u32 v6, v4, 4, s3
          v_add_u32 v6, {L_CS}, v6
          v_and_b32 v7, 1, v4
          v_lshlrev_b32 v7, 6, v7
          v_lshrrev_b32 v8, 1, v4
          v_lshl_add_u32 v7, v8, 4, v7
          s_lshl_b32 s3, s20, 5
          s_add_u32 s3, s3, {L_CS + 384}
          v_add_u32 v7, s3, v7
          s_waitcnt lgkmcnt(0)""")
    for tb in range(4): A(f"ds_read_b128 {v(16+4*tb,4)}, v5 offset:{tb*256}")
    for nb in range(6): A(f"ds_read_b128 {v(32+4*nb,4)}, v6 offset:{nb*64}")
    A("ds_read_b128 v[56:59], v7")
    A(f"""s_mul_i32 s29, s17, {7*8192}
          s_add_u32 s29, s29, s28
          s_lshl_b32 s3, s19, 12
          s_add_u32 s29, s29, s3
          s_add_u32 s33, s29, {3*8192}
          s_lshl_b32 s3, s20, 9
          s_add_u32 s33, s33, s3
          s_lshl_b32 s3, s20, 15
          s_add_u32 s29, s29, s3
          s_add_u32 s30, s29, 8192
          s_add_u32 s31, s29, 16384
          v_and_b32 v5, 1, v4
          v_lshlrev_b32 v5, 10, v5
          v_lshl_add_u32 v5, v8, 8, v5
          v_lshl_add_u32 v8, v3, 4, v5
          s_waitcnt lgkmcnt(0)""")
    k = 0
    for tb in range(4):
        st = 16 + 4 * tb
        for pr in range(3):
            a0 = acc(tb, 2 * pr); o = 72 + 4 * (k % 6); k += 1
            gelu_pk(A, [a0 + 2*i for i in range(4)], [32 + 8*pr + 2*i for i in range(4)], st, [64 + 2*i for i in range(4)], [o + i for i in range(4)])
            A(f"buffer_store_dwordx4 {v(o,4)}, v9, {WS}, s{29+pr} offen offset:{tb*1024} sc1")
        a0 = acc(tb, 6); o = 96 + 4 * (tb >> 1) + 2 * (tb & 1)
        gelu_pk(A, [a0, a0 + 2], [56, 58], st, [64, 66], [o, o + 1])
        if tb & 1:
            o = 96 + 4 * (tb >> 1)
            A(f"""s_nop 1
                  v_permlane16_swap_b32 v{o}, v{o+2}
                  v_permlane16_swap_b32 v{o+1}, v{o+3}
                  buffer_store_dwordx4 {v(o,4)}, v8, {WS}, s33 offen offset:{(tb>>1)*2048} sc1""")
    acc = lambda tb, nb: ACC + 4 * (tb * 4 + nb)
    A(f"""s_lshr_b32 s22, s17, 3
          s_lshl_b32 s3, s19, 12
          s_lshl_b32 s41, s22, 11
          s_add_u32 s3, s3, s41
          v_add_u32 v16, s3, v9
          v_xor_b32 v17, 2048, v16
          v_lshrrev_b32 v5, 2, v3
          v_and_b32 v6, 3, v3
          v_lshl_add_u32 v7, v4, 2, v5
          v_and_b32 v8, 7, v7
          v_lshlrev_b32 v7, 8, v7
          v_lshl_add_u32 v7, v6, 3, v7
          s_lshl_b32 s3, s20, 2
          v_xor_b32 v8, s3, v8
          v_lshl_add_u32 v18, v8, 5, v7
          v_xor_b32 v19, 32, v18
          v_xor_b32 v20, 64, v18
          v_xor_b32 v21, 96, v18
          s_mov_b32 s21, 0""")
    for i in range(6): A(f"v_add_u32 v{10+i}, 0x10000, v{16+i}")
    for i in range(0, 64, 2): A(f"v_mov_b64 {v(ACC+i,2)}, 0")
    xread = lambda sl, st, tb, dst: f"ds_read_b128 {v(dst,4)}, v{(10 if sl >> 1 else 16)+(tb>>1)} offset:{(sl&1)*S4 + st*8192 + (tb&1)*1024}"
    wread = lambda sl, st, nb, e, dst: f"ds_read_b64_tr_b16 {v(dst,2)}, v{(12 if sl >> 1 else 18)+nb} offset:{(sl&1)*S4 + 16384 + st*8192 + e*4096}"
    fstamp(A, "p4rdy")
    A("s_barrier")
    fstamp(A, "P4")
    A(f"s_add_u32 s48, s23, {F_H2}")
    A("s_mov_b32 s49, 1")
    def resid():
        try_flag(A, 48, block=True, lane=29)
        fstamp(A, "p4it4")
        A(f"""s_lshl_b32 s3, s19, 6
              s_lshl_b32 s42, s22, 5
              s_add_u32 s42, s42, s3
              s_lshl_b32 s29, s16, 18
              s_and_b32 s3, s17, 7
              s_lshl_b32 s3, s3, 15
              s_add_u32 s29, s29, s3
              s_lshl_b32 s3, s20, 14
              s_add_u32 s29, s29, s3
              s_lshl_b32 s3, s42, 6
              s_add_u32 s29, s29, s3
              s_add_u32 s29, s29, {WS_X1}
              s_add_u32 s30, s29, 8192""")
        for tb in range(2):
            A(f"buffer_load_dwordx4 {v(32+8*tb,4)}, v9, {WS}, s29 offen offset:{tb*1024} sc1")
            A(f"buffer_load_dwordx4 {v(36+8*tb,4)}, v9, {WS}, s30 offen offset:{tb*1024} sc1")
    gemm_loop(A, 4, [0, 1, 2, 3], 36, 4, 0, acc, XB, lambda p, nb: WB0 + 16*p + 4*nb, xread, wread, wdb=True, bar_gap=int(os.environ.get("BG4", "2")), name="p4c",
              peel={0: lambda: try_flag(A, 48, lane=29), 1: lambda: try_flag(A, 48, lane=29), 2: lambda: try_flag(A, 48, lane=29), 3: resid})
    A("C_p4end:")
    fstamp(A, "p4end")
    A(f"""s_lshl_b32 s3, s16, 4
          s_add_u32 s3, s3, s17
          s_lshl_b32 s29, s3, 14
          s_lshl_b32 s41, s18, 12
          s_add_u32 s29, s29, s41
          s_add_u32 s29, s29, {WS_EX}
          s_xor_b32 s30, s29, {8 << 14}
          s_lshl_b32 s31, s3, 9
          s_lshl_b32 s41, s18, 7
          s_add_u32 s31, s31, s41
          s_add_u32 s31, s31, {F_EX}
          s_xor_b32 s32, s31, {8 << 9}
          s_waitcnt lgkmcnt(0)""")
    for i in range(4):
        a0 = ACC + 32 + 8 * i
        pack(64 + 4 * i, a0, a0 + 4)
        A(f"buffer_store_dwordx4 {v(64+4*i,4)}, v9, {WS}, s29 offen offset:{i*1024} sc1")
    A(f"""s_lshl_b32 s3, s42, 2
          s_add_u32 s3, s3, {L_GT}
          v_lshl_add_u32 v5, v3, 2, s3
          ds_read_b32 v48, v5
          ds_read_b32 v49, v5 offset:64
          v_mov_b32 v8, 0xffff0000""")
    srd(A, 24, P_OUT, P_OUT + 1, S * D * 2)
    A(f"""s_waitcnt lgkmcnt(0) vmcnt(4)
          v_sub_f32 v48, 1.0, v48
          v_sub_f32 v49, 1.0, v49
          v_cvt_pk_bf16_f32 v48, v48, v48
          v_cvt_pk_bf16_f32 v49, v49, v49
          v_and_b32 v48, v8, v48
          v_and_b32 v49, v8, v49""")
    for tb in range(2):
        for nb in range(4):
            a = ACC + 4 * (tb * 4 + nb); xr = 32 + 8 * tb + 2 * nb
            A(f"""v_lshlrev_b32 v22, 16, v{xr}
                  v_and_b32 v23, v8, v{xr}
                  v_lshlrev_b32 v24, 16, v{xr+1}
                  v_and_b32 v25, v8, v{xr+1}
                  v_pk_fma_f32 {v(a,2)}, v[22:23], v[48:49], {v(a,2)} op_sel:[0,{tb},0] op_sel_hi:[1,{tb},1]
                  v_pk_fma_f32 {v(a+2,2)}, v[24:25], v[48:49], {v(a+2,2)} op_sel:[0,{tb},0] op_sel_hi:[1,{tb},1]""")
    A("s_waitcnt vmcnt(0)")
    flag_store(A, 31)
    fstamp(A, "exflag")
    ld = lambda: A(f"buffer_load_dword v20, off, {WS}, s32 sc1")
    ld()
    A(f"""v_lshlrev_b32 v5, 11, v3
          v_and_b32 v6, 1, v4
          v_lshl_add_u32 v5, v6, 5, v5
          v_lshrrev_b32 v6, 1, v4
          v_lshl_add_u32 v5, v6, 4, v5
          s_lshl_b32 s41, s16, 7
          s_add_u32 s41, s41, s42
          s_lshl_b32 s41, s41, 11
          s_and_b32 s3, s17, 7
          s_lshl_b32 s3, s3, 8
          s_add_u32 s41, s41, s3
          s_lshl_b32 s3, s20, 7
          s_add_u32 s41, s41, s3
          s_add_u32 s43, s41, {16*2048}
          s_waitcnt vmcnt(0)""")
    spin_until(A, lambda: A("v_cmp_ne_u32 vcc, s12, v20"), ld, "ex")
    for i in range(4): A(f"buffer_load_dwordx4 {v(64+4*i,4)}, v9, {WS}, s30 offen offset:{i*1024} sc1")
    fstamp(A, "exok")
    for i in range(4):
        tb, pr = i >> 1, i & 1
        a0 = ACC + 8 * i; o = 96 + 4 * i
        A("s_waitcnt vmcnt(3)")
        for k in range(4):
            A(f"""v_lshlrev_b32 v22, 16, v{64+4*i+k}
                  v_and_b32 v23, v8, v{64+4*i+k}
                  v_pk_add_f32 {v(a0+2*k,2)}, {v(a0+2*k,2)}, v[22:23]""")
        pack(o, a0, a0 + 4)
        A(f"""s_nop 1
              v_permlane16_swap_b32 v{o}, v{o+2}
              v_permlane16_swap_b32 v{o+1}, v{o+3}
              buffer_store_dwordx4 {v(o,4)}, v5, s[24:27], s{41 if tb == 0 else 43} offen offset:{pr*64}{os.environ.get("OUTF", "")}""")
    fstamp(A, "stored")
    if PROF: A("s_waitcnt vmcnt(0)")
    fstamp(A, "drained")
    fstamp_flush(A, 0)
    if "diag" in EXP:
        Ld = A.label("diag")
        A(f"""s_waitcnt vmcnt(0)
              s_memrealtime s[96:97]
              s_memtime s[98:99]
              s_or_b32 s3, s2, s18
              s_cmp_lg_u32 s3, 0
              s_cbranch_scc1 {Ld}
              s_waitcnt lgkmcnt(0)
              s_sub_u32 s96, s96, s92
              s_sub_u32 s98, s98, s94
              v_mov_b32 v4, s96
              v_mov_b32 v5, s98""")
        srd(A, 24, P_DBG, P_DBG + 1, 256)
        A("buffer_store_dwordx2 v[4:5], off, s[24:27], 0 offset:16")
        A(f"{Ld}:")
    A("s_endpgm")
    A("C_slow:")
    A(f"{Lslow}:")
    A("s_waitcnt lgkmcnt(0)")
    for i in range(0, 40, 2): A(f"v_mov_b64 {v(128+i,2)}, 0")
    A(f"""v_mov_b32 v14, 0xff7fffff
          v_mov_b32 v15, 0xff7fffff
          s_lshl_b32 s41, s17, 19
          s_lshl_b32 s3, s20, 14
          s_add_u32 s41, s41, s3
          s_add_u32 s41, s41, {WS_KV}
          s_mov_b32 s40, 64""")
    Ls = A.label("sloop")
    A(f"{Ls}:")
    for b in range(2): A(f"buffer_load_dwordx4 {v(KB(0,b),4)}, v{VL16}, {WS}, s41 offen offset:{b*1024} sc1")
    for b in range(2): A(f"buffer_load_dwordx4 {v(VB(0,b),4)}, v{VL16}, {WS}, s41 offen offset:{2048 + b*1024} sc1")
    A("s_waitcnt vmcnt(0)")
    for q in range(2):
        for it in qk(q): A(it.text)
    A("s_nop 15")
    for q in range(2):
        d = SB(q); m = 14 + q
        A(f"v_max3_f32 v6, v{d}, v{d+1}, v{m}")
        for i in range(2, 16, 2): A(f"v_max3_f32 v6, v{d+i}, v{d+i+1}, v6")
        A(f"""v_mov_b32 v5, v6
              s_nop 1
              v_permlane32_swap_b32 v5, v6
              s_nop 1
              v_max_f32 v6, v6, v5
              v_sub_f32 v5, v{m}, v6
              v_exp_f32 v5, v5
              v_mov_b32 v{m}, v6""")
        for i in range(16): A(f"v_sub_f32 v{d+i}, v{d+i}, v6")
        for i in range(16): A(f"v_exp_f32 v{d+i}, v{d+i}")
        for i in range(16): A(f"v_mul_f32 v{O(q)+i}, v{O(q)+i}, v5")
        for i in range(4): A(f"v_mul_f32 v{Lr(q)+i}, v{Lr(q)+i}, v5")
        A("s_nop 1")
        for it in pv(q, False): A(it.text)
    A(f"""s_nop 15
          s_sub_u32 s40, s40, 1
          s_and_b32 s3, s40, 3
          s_cmp_eq_u32 s3, 0
          s_cselect_b32 s3, 16384, 0
          s_add_u32 s41, s41, s3
          s_add_u32 s41, s41, 4096
          s_cmp_lg_u32 s40, 0
          s_cbranch_scc1 {Ls}
          s_branch {Lfin}""")
```

```python
from common import *
from k1 import job_stats as _js, job_gate as _jg
import k1
NAME = "gated_mix__softmax_full_mha__mixer_s_mlp__prompt_kernel"
P_X, P_WQKV, P_WO, P_BX, P_W1, P_W2, P_W3, P_W4, P_G, P_OUT, P_DBG, P_WS = [64 + 2*i for i in range(12)]
QSCALE = (DH ** -0.5) * 1.4426950408889634
S1 = 49152
L_MISC = 155648
L_ST = L_MISC
L_CS = L_ST + 2048
L_GT = L_CS + 1024
L_NON = L_GT + 512
L_JOB = L_NON + 64
LDS_BYTES = 163840
k1.L_JOB = L_JOB
KVS = 32768
kvslot = lambda st: ((st + 1) % 3) * KVS
L_W2W = 98304
L_XR = 131072
L_C3 = 147456
S3 = 45056; L3 = 20480
S4 = 32768
WOFF = int(os.environ.get("WOFF", "2"))
WS = "s[4:7]"
R2T, R2P = [int(x) for x in os.environ.get("ROT2", "0,0").split(",")]
MS = int(os.environ.get("MS", "0"))
FS = int(os.environ.get("FS", "2"))
dppadd = lambda r, sh: f"v_add_f32_dpp v{r}, v{r}, v{r} row_ror:{sh} row_mask:0xf bank_mask:0xf"

def flag_store(A, soff_sreg, vtmp=1):
    A(f"""v_mov_b32 v{vtmp}, s12
          s_mov_b64 exec, 1
          buffer_store_dword v{vtmp}, off, {WS}, s{soff_sreg} sc1
          s_mov_b64 exec, -1""")

def gen(A):
    kernel_header(A, NAME)
    Lend = A.label("end"); Lcomp = A.label("comp")
    A(f"s_cmp_ge_u32 s2, 256")
    A(f"s_cbranch_scc1 {Lend}")
    if PROF or "diag" in EXP:
        A("s_memrealtime s[92:93]"); A("s_memtime s[94:95]")
    A("s_load_dwordx16 s[64:79], s[0:1], 0")
    A("s_load_dwordx8 s[80:87], s[0:1], 64")
    A("""v_lshrrev_b32 v1, 6, v0
         v_and_b32 v2, 63, v0
         """ + ("s_lshr_b32 s14, s2, 5" if "badmap" in EXP else "s_and_b32 s14, s2, 7") + """
         v_readfirstlane_b32 s18, v1
         """ + ("s_and_b32 s15, s2, 31" if "badmap" in EXP else "s_lshr_b32 s15, s2, 3") + """
         s_and_b32 s16, s14, 1
         s_lshl_b32 s16, s16, 3
         s_and_b32 s3, s15, 7
         s_add_u32 s16, s16, s3
         s_lshr_b32 s17, s14, 1
         s_lshl_b32 s17, s17, 2
         s_lshr_b32 s3, s15, 3
         s_add_u32 s17, s17, s3""")
    A(f"""s_add_u32 s13, s17, {WOFF}
          s_and_b32 s13, s13, 15""")
    A("s_cmp_lt_u32 s18, 4")
    A(f"s_cbranch_scc1 {Lcomp}")
    helper(A)
    A(f"{Lend}:")
    A("s_endpgm")
    A("H_end:")
    A(f"{Lcomp}:")
    compute(A)
    return dict(name=NAME, grid=256, block=512, lds=LDS_BYTES, vgpr=256)

def helper(A):
    ROLE[0] = 1
    A("s_sub_u32 s18, s18, 4")
    if PROF: A("v_mov_b64 v[62:63], 0")
    A(f"""v_lshrrev_b32 v3, 3, v2
          v_and_b32 v4, 7, v2
          v_lshrrev_b32 v5, 1, v3
          v_xor_b32 v5, v5, v4
          s_lshl_b32 s3, s16, 7
          s_lshl_b32 s36, s18, 5
          s_add_u32 s3, s3, s36
          v_add_u32 v6, s3, v3
          v_lshlrev_b32 v6, 11, v6
          v_lshl_add_u32 v10, v5, 4, v6
          v_xor_b32 v11, 64, v10
          v_add_u32 v11, {8*2048 - 1024}, v11
          v_add_u32 v12, {16*2048 - 2048}, v10
          v_add_u32 v13, {16*2048 - 2048}, v11""")
    ra, rb = [int(x) for x in os.environ.get("ROT1", "1,1").split(",")]
    A(f"""s_mov_b32 s31, 0x20000
          s_lshl_b32 s37, s18, 12
          s_mul_i32 s52, s16, {ra}
          s_mul_i32 s3, s17, {rb}
          s_add_u32 s52, s52, s3
          s_and_b32 s52, s52, 15
          s_mov_b32 s55, s18
          s_mov_b32 s53, 0""")
    def wsetup(A, first=False):
        A(f"""s_lshl_b32 s3, s55, 11
              s_mov_b32 s30, {D*3*D*2}
              s_mov_b32 s32, 6144
              s_cmp_eq_u32 s55, 3
              s_cselect_b32 s30, {D*D*2}, s30
              s_cselect_b32 s32, 2048, s32
              s_cselect_b32 s33, 0, s3
              s_cselect_b32 s3, s13, s17
              s_lshl_b32 s3, s3, 7
              s_add_u32 s33, s33, s3
              s_lshl_b32 s34, s32, 4
              s_lshl_b32 s35, s32, 6
              s_lshl_b32 s38, s55, 13
              s_add_u32 s38, s38, 16384""")
        if not first:
            A("""s_lshl_b32 s3, s53, 12
                 s_add_u32 s38, s38, s3
                 s_mul_i32 s3, s53, s34
                 s_lshl_b32 s3, s3, 1
                 s_add_u32 s33, s33, s3""")
        A("""v_and_b32 v14, 2, v3
             v_and_b32 v15, 7, v2
             v_xor_b32 v14, v14, v15
             v_mul_lo_u32 v15, v3, s32
             v_lshl_add_u32 v14, v14, 4, v15
             s_lshl_b32 s3, s32, 3
             s_sub_u32 s3, s3, 1024
             v_xor_b32 v15, 64, v14
             v_add_u32 v15, s3, v15""")
        if first: A("s_waitcnt lgkmcnt(0)")
        A(f"""s_cmp_eq_u32 s55, 3
              s_cselect_b32 s28, s{P_W1}, s{P_WQKV}
              s_cselect_b32 s29, s{P_W1+1}, s{P_WQKV+1}
              s_and_b32 s29, s29, 0xffff""")
    wsetup(A, True)
    srd(A, 24, P_X, P_X + 1, S * D * 2)
    def issue(slot, mid=None, A=A, ng=4):
        A(f"s_add_u32 m0, s37, {slot}")
        A("s_lshl_b32 s39, s52, 7")
        for i in range(4):
            A(f"buffer_load_dwordx4 v{10+i}, s[24:27], s39 offen offset:{i*1024} lds")
        if mid: mid()
        A(f"s_add_u32 s45, s38, {slot}")
        A("s_mul_i32 s41, s52, s35")
        A("s_add_u32 s41, s41, s33")
        for i in range(ng):
            A(f"s_add_u32 m0, s45, {i*2048}")
            if i: A("s_add_u32 s41, s41, s34")
            else: A("s_add_u32 s52, s52, 1")
            A(f"buffer_load_dwordx4 v14, s[28:31], s41 offen lds")
            A(f"buffer_load_dwordx4 v15, s[28:31], s41 offen offset:1024 lds")
        A("s_and_b32 s52, s52, 15")
    fstamp(A, "start")
    issue(0)
    def barP():
        A("s_waitcnt vmcnt(4)")
        A("s_barrier")
    issue(S1, barP)
    slot = lambda t: (t % 3) * S1
    def endit(n, lg=False):
        A(f"s_waitcnt vmcnt({n})" + (" lgkmcnt(0)" if lg else ""))
        A("s_barrier")
    issue(slot(2))
    A(f"""s_lshl_b32 s46, s16, 7
          s_lshl_b32 s3, s17, 3
          s_add_u32 s46, s46, s3
          s_lshl_b32 s3, s18, 1
          s_add_u32 s46, s46, s3
          s_lshl_b32 s46, s46, 11
          v_lshlrev_b32 v8, 4, v2
          v_lshlrev_b32 v5, 11, v3
          v_lshl_add_u32 v7, v4, 4, v5
          s_lshl_b32 s47, s16, 17
          s_lshl_b32 s3, s17, 7
          s_add_u32 s47, s47, s3
          s_lshl_b32 s3, s18, 15
          s_add_u32 s47, s47, s3
          s_add_u32 s42, s47, 16384
          v_mov_b32 v9, 0xffff0000
          v_lshrrev_b32 v4, 4, v2""")
    srd(A, 8, P_G, P_G + 1, D * 2)
    srd(A, 20, P_W1, P_W1 + 1, D * D * 2)
    endit(12)
    A("""buffer_load_dwordx4 v[64:67], v8, s[24:27], s46 offen
         buffer_load_dwordx4 v[68:71], v8, s[24:27], s46 offen offset:1024
         buffer_load_dwordx4 v[72:75], v8, s[24:27], s46 offen offset:2048
         buffer_load_dwordx4 v[76:79], v8, s[24:27], s46 offen offset:3072
         buffer_load_dwordx4 v[80:83], v8, s[8:11], 0 offen
         buffer_load_dwordx4 v[84:87], v8, s[8:11], 0 offen offset:1024
         buffer_load_dwordx4 v[88:91], v7, s[20:23], s47 offen
         buffer_load_dwordx4 v[92:95], v7, s[20:23], s42 offen""")
    issue(slot(3))
    endit(20)
    srd(A, 8, P_DBG, P_DBG + 1, 256)
    A("buffer_load_dword v19, off, s[8:11], 0 sc1")
    issue(slot(4))
    srd(A, 4, P_WS, P_WS + 1, WS_END)
    A(f"""s_lshl_b32 s19, s16, 4
          s_add_u32 s19, s19, s17
          s_lshl_b32 s21, s19, 7
          s_add_u32 s21, s21, {WS_ST1}
          s_mov_b32 s22, 8
          s_mov_b32 s23, {L_JOB}
          s_lshl_b32 s3, s19, 9
          s_add_u32 s3, s3, {WS_CS1}
          s_cmp_eq_u32 s18, 1
          s_cselect_b32 s21, s3, s21
          s_cselect_b32 s22, 32, s22
          s_cselect_b32 s23, {L_JOB + 256}, s23
          s_cselect_b32 s54, -1, 0
          s_cmp_ge_u32 s18, 2
          s_cselect_b32 s22, 0, s22
          v_and_b32 v5, 31, v2
          v_lshl_add_u32 v17, v5, 3, s23
          v_cmp_gt_u32 vcc, s22, v2
          v_mov_b32 v5, {OOB}
          s_nop 0
          v_cndmask_b32 v16, v5, v8, vcc""")
    endit(12)
    spin_until(A, lambda: A("v_cmp_eq_u32 vcc, 0, v19"), lambda: A("buffer_load_dword v19, off, s[8:11], 0 sc1"), "nonce")
    A("v_readfirstlane_b32 s12, v19")
    fstamp(A, "p1j2")
    J = Asm(); _js(J)
    n = len(J.lines); cuts = [0, n // 3, 2 * n // 3, n]
    for c in range(3):
        I = Asm(); issue(slot(5 + c), None, I)
        interleave(A, I.lines, J.lines[cuts[c]:cuts[c+1]])
        endit(12, c == 2)
    fstamp(A, "p1B5")
    for i in range(4): A(f"ds_read_b64 {v(24+2*i,2)}, v17 offset:{i*256}")
    A("s_waitcnt lgkmcnt(0)")
    for i in range(2):
        A(f"""v_add_f32 v{26+i}, v{26+i}, v{28+i}
              v_add_f32 v{26+i}, v{26+i}, v{30+i}
              v_and_b32 v{26+i}, s54, v{26+i}
              v_add_f32 v{20+2*i}, v{24+i}, v{26+i}
              v_mov_b32 v{21+2*i}, s12""")
    issue(slot(8))
    A(f"buffer_store_dwordx4 v[20:23], v16, {WS}, s21 offen sc1")
    endit(13)
    J = Asm(); _jg(J)
    J(f"""s_lshr_b32 s46, s46, 9
          s_add_u32 s46, s46, {WS_G}
          v_and_b32 v5, 31, v2
          v_cmp_eq_u32 vcc, 0, v5
          v_lshrrev_b32 v30, 3, v2
          v_mov_b32 v6, {OOB}
          v_cndmask_b32 v30, v6, v30, vcc
          v_lshlrev_b32 v16, 4, v5
          s_lshl_b32 s21, s16, 11
          s_lshl_b32 s3, s18, 9
          s_add_u32 s21, s21, s3
          s_add_u32 s21, s21, {WS_ST1}
          v_lshrrev_b32 v7, 3, v2
          v_lshlrev_b32 v7, 14, v7
          v_and_b32 v6, 7, v2
          v_lshl_add_u32 v17, v6, 4, v7
          s_lshl_b32 s22, s13, 9
          s_lshl_b32 s3, s18, 7
          s_add_u32 s22, s22, s3
          s_add_u32 s22, s22, {WS_CS1}
          s_add_u32 s23, s22, 8192""")
    NT1 = 16 + MS
    def tile(t, Z):
        if t >= NT1: return 0
        if t == 16 - MS:
            Z("""s_lshr_b32 s55, s18, 1
                 s_add_u32 s55, s55, 1
                 s_and_b32 s53, s18, 1""")
            wsetup(Z)
        if t == 16:
            Z(f"""s_lshr_b32 s55, s18, 1
                  s_mul_i32 s55, s55, 3
                  s_add_u32 s52, s52, {16 - MS}
                  s_and_b32 s52, s52, 15""")
            wsetup(Z)
        full = t < 16 - MS
        issue(slot(t), None, Z, 4 if full else 2)
        return 12 if full else 8
    n = len(J.lines)
    NG = 6 if MS == 0 else (5 if MS <= 2 else 3)
    srd(A, 8, P_W2, P_W2 + 1, D * D * 2)
    for c in range(NG):
        I = Asm(); k = tile(9 + c, I)
        interleave(A, I.lines, J.lines[n * c // NG: n * (c + 1) // NG])
        if c == NG - 1:
            A(f"buffer_store_dword v28, v30, {WS}, s46 offen sc1"); k += 1
        endit(k)
        if c in (0, 1, 2, NG - 1): fstamp(A, f"p1B{7+c}")
    jp = 7 + NG
    def payload():
        A(f"""buffer_load_dwordx4 v[20:23], v16, {WS}, s21 offen sc1
              buffer_load_dwordx4 v[32:35], v17, {WS}, s22 offen sc1
              buffer_load_dwordx4 v[36:39], v17, {WS}, s23 offen sc1""")
    payload()
    k = tile(jp + 2, A)
    kt = code_touch(A, "C_p1a", "C_attend", 1) + code_touch(A, "H_p1j14", "H_end", 1) + 1
    A(f"""v_and_b32 v58, 15, v2
          v_lshlrev_b32 v58, 7, v58
          s_lshl_b32 s3, s2, 2
          s_add_u32 s3, s3, s18
          s_lshl_b32 s3, s3, 11
          buffer_load_dword v60, v58, s[8:11], s3 offen""")
    endit(k + kt)
    k14 = tile(jp + 3, A) + kt
    def chk():
        A("""v_xor_b32 v24, s12, v21
             v_xor_b32 v25, s12, v23
             v_xor_b32 v26, s12, v33
             v_xor_b32 v27, s12, v35
             v_or3_b32 v24, v24, v25, v26
             v_xor_b32 v25, s12, v37
             v_xor_b32 v26, s12, v39
             v_or3_b32 v24, v24, v25, v26
             v_or_b32 v24, v24, v27
             v_cmp_ne_u32 vcc, 0, v24""")
    A("H_p1j14:")
    spin_until(A, chk, payload, "pay")
    A(f"""v_add_f32 v32, v32, v36
          v_add_f32 v33, v34, v38
          v_mov_b32 v21, v22
          s_lshl_b32 s3, s18, 9
          s_add_u32 s3, s3, {L_ST}
          v_permlane32_swap_b32 v32, v33
          v_add_u32 v16, s3, v16
          v_add_f32 v32, v32, v33
          v_mov_b32 v33, v32""")
    ln_consts(A, 20, 24)
    A(f"""v_permlane16_swap_b32 v32, v33
          ds_write_b128 v16, v[20:23]
          v_add_f32 v32, v32, v33
          s_lshl_b32 s3, s18, 6
          s_add_u32 s3, s3, {L_CS}
          {dppadd(32, 8)}
          v_lshl_add_u32 v6, v6, 3, s3
          v_lshrrev_b32 v7, 5, v2
          v_lshl_add_u32 v6, v7, 2, v6
          ds_write_b32 v6, v32
          v_mov_b32 v5, {L_NON}
          ds_write_b32 v5, v19""")
    endit(k14, True)
    for j in range(jp + 2, NT1 - 1):
        endit(tile(j + 2, A))
    A(f"""s_lshl_b32 s33, s17, 19
          s_lshl_b32 s37, s18, 13
          s_add_u32 s33, s33, s37
          s_add_u32 s33, s33, {WS_KV}
          s_lshl_b32 s34, s17, 14
          s_lshl_b32 s3, s18, 7
          s_add_u32 s34, s34, s3
          s_add_u32 s34, s34, {F_KV}
          s_lshr_b32 s21, s18, 1
          s_and_b32 s22, s18, 1""")
    KVROT = int(os.environ.get("KVROT", "0"))
    A(f"""v_and_b32 v3, 15, v2
          s_mul_i32 s14, s16, {KVROT}
          v_lshrrev_b32 v5, 1, v2
          v_add_u32 v5, s14, v5
          v_and_b32 v5, 15, v5
          v_lshlrev_b32 v17, 10, v5
          s_sub_u32 s3, s16, s14
          s_and_b32 s3, s3, 15
          s_lshl_b32 s3, s3, 1
          s_lshl_b32 s35, 3, s3
          s_mov_b32 s36, 0""")
    V = VM(A)
    kvpoll = f"buffer_load_dword v20, v17, {WS}, s34 offen sc1"
    def kv_ready(A=A):
        A("v_cmp_eq_u32 vcc, s12, v20")
        A("s_mov_b32 s36, vcc_lo")
    A0 = A
    def kv_issue(st, A=A):
        slot = kvslot(st)
        Lr_ = A0.label("kvr"); Lok = A0.label("kvok")
        chk2 = f"""s_andn2_b32 s39, s36, s35
              s_bcnt1_i32_b32 s3, s39
              s_cmp_ge_u32 s3, 2
              s_cbranch_scc1 {Lok}"""
        A(chk2)
        A("s_mov_b32 s62, 0x8000")
        A(f"{Lr_}:")
        A(kvpoll)
        A("s_waitcnt vmcnt(0)")
        kv_ready(A)
        A(chk2)
        A(f"""s_sleep {os.environ.get("SLP", "8")}
              s_sub_u32 s62, s62, 1
              s_cmp_lg_u32 s62, 0
              s_cbranch_scc1 {Lr_}
              s_not_b32 s39, s35""")
        A(f"{Lok}:")
        for h in range(2):
            A(f"""s_ff1_i32_b32 s3, s39
                  s_bitset1_b32 s35, s3
                  s_bitset0_b32 s39, s3
                  s_and_b32 s41, s3, 1
                  s_lshl_b32 s41, s41, 12
                  s_add_u32 s41, s41, s33
                  s_lshr_b32 s3, s3, 1
                  s_add_u32 s3, s3, s14
                  s_and_b32 s3, s3, 15
                  s_add_u32 m0, s37, {slot + h*4096}
                  s_lshl_b32 s3, s3, 15
                  s_add_u32 s41, s41, s3""")
            for i in range(4): A(f"buffer_load_dwordx4 v8, {WS}, s41 offen offset:{i*1024} sc1 lds")
        V.note(8, ("kv", st))
    if "noprewarm" not in EXP: A(kvpoll)
    EARLY = "earlysetup" in EXP
    if not EARLY:
        A("s_barrier")
        fstamp(A, "p1B15")
        A("s_barrier")
    ACC, P3V, SEL, ONE, SAC, XB, WB, C3B = 64, 96, 104, 108, 112, 128, 192, 224
    acc = lambda tb, nb: ACC + 4 * (tb * 4 + nb)
    A(f"""v_lshrrev_b32 v5, 3, v2
          v_and_b32 v6, 7, v2
          v_mul_u32_u24 v7, 7168, v5
          v_cmp_eq_u32 vcc, 7, v6
          v_lshl_add_u32 v30, v6, 4, v7
          v_mov_b32 v7, {OOB}
          s_mul_i32 s47, s16, {64*7168}
          v_cndmask_b32 v30, v30, v7, vcc
          s_mul_i32 s3, s17, 448
          s_add_u32 s47, s47, s3
          s_mul_i32 s3, s18, 112
          s_add_u32 s47, s47, s3
          v_and_b32 v7, 6, v5
          v_xor_b32 v7, v7, v6
          v_lshlrev_b32 v5, 11, v5
          v_lshl_add_u32 v24, v7, 4, v5
          s_lshl_b32 s3, s17, 7
          v_add_u32 v24, s3, v24
          v_add_u32 v25, {8*2048 - 1024}, v24
          v_add_u32 v26, {16*2048 - 2048}, v24
          v_add_u32 v27, {24*2048 - 3072}, v24
          v_lshrrev_b32 v5, 2, v3
          v_and_b32 v6, 3, v3
          v_lshl_add_u32 v7, v4, 2, v5
          v_bfe_u32 v5, v7, 1, 2
          v_lshlrev_b32 v7, 7, v7
          v_lshl_add_u32 v7, v6, 3, v7
          v_lshl_add_u32 v7, v5, 5, v7
          s_lshl_b32 s46, s18, 12
          s_add_u32 s38, s46, {L_W2W}
          v_add_u32 v32, {L_W2W}, v7
          v_xor_b32 v33, 32, v32
          v_xor_b32 v34, 64, v32
          v_xor_b32 v35, 96, v32
          s_lshl_b32 s43, s16, 18
          s_lshl_b32 s3, s18, 11
          s_add_u32 s43, s43, s3
          s_add_u32 s43, s43, {WS_H1}
          s_lshl_b32 s44, s18, 16""")
    if EARLY: A("s_barrier")
    A(f"""s_add_u32 m0, s46, {L_XR}
          s_lshl_b32 s41, s17, 7""")
    for i in range(4): V.op(f"buffer_load_dwordx4 v{10+i}, s[24:27], s41 offen offset:{i*1024} lds", "xr")
    A(f"""v_lshlrev_b32 v21, 2, v2
          s_add_u32 s3, s16, 15
          s_and_b32 s3, s3, 15
          s_lshl_b32 s48, s3, {6+FS}
          s_add_u32 s48, s48, {F_H1}
          v_lshlrev_b32 v61, {FS}, v2
          s_lshl_b32 s49, s16, {6+FS}
          s_add_u32 s49, s49, {F_H1}
          s_add_u32 s3, s16, 1
          s_and_b32 s3, s3, 15
          s_lshl_b32 s50, s3, {6+FS}
          s_add_u32 s50, s50, {F_H1}
          v_and_b32 v5, 31, v2
          v_lshlrev_b32 v23, 2, v5
          v_and_b32 v5, 7, v2
          v_lshlrev_b32 v54, 7, v5
          s_lshl_b32 s3, s2, 2
          s_add_u32 s3, s3, s18
          s_lshl_b32 s63, s3, 10""")
    srd(A, 28, P_W2, P_W2 + 1, D * D * 2)
    srd(A, 8, P_W3, P_W3 + 1, D * F * 2)
    srd(A, 52, P_W4, P_W4 + 1, F * D * 2)
    srd(A, 56, P_WO, P_WO + 1, D * D * 2)
    A(f"""v_and_b32 v5, 1, v3
          v_lshlrev_b32 v5, 4, v5
          v_mov_b32 v6, 0x3f80
          v_lshlrev_b32 v6, v5, v6
          v_lshrrev_b32 v5, 1, v3""")
    for q in range(4):
        A(f"""v_cmp_eq_u32 vcc, {q}, v5
              v_mov_b32 v{ONE+q}, 0x3f803f80
              s_nop 0
              v_cndmask_b32 v{SEL+q}, 0, v6, vcc""")
    A(f"""s_lshl_b32 s42, s18, 5
          v_add_u32 v5, s42, v3
          v_lshlrev_b32 v5, 7, v5
          v_lshrrev_b32 v6, 1, v3
          v_lshrrev_b32 v7, 1, v4
          v_xor_b32 v6, v6, v7
          v_lshl_add_u32 v5, v6, 4, v5
          v_and_b32 v7, 1, v4
          v_lshl_add_u32 v5, v7, 3, v5
          v_add_u32 v10, {L_XR}, v5
          v_xor_b32 v11, 32, v10
          v_xor_b32 v12, 64, v10
          v_xor_b32 v13, 96, v10""")
    if EARLY: A("s_barrier")
    fstamp(A, "setup")
    kv_issue(1)
    fstamp(A, "j0iss")
    kv_issue(2)
    V.op(kvpoll, "poll")
    for tb in range(2):
        for nb in range(4): A(f"ds_read_b64 {v(128+8*tb+2*nb,2)}, v{10+nb} offset:{tb*2048}")
    for i in range(7):
        A(f"""v_add_u32 v5, {i*64}, v2
              v_mul_u32_u24 v6, 2341, v5
              v_lshrrev_b32 v6, 16, v6
              v_mul_u32_u24 v7, 28, v6
              v_sub_u32 v7, v5, v7
              v_bfe_u32 v5, v6, 2, 1
              v_lshlrev_b32 v5, 1, v5
              v_xor_b32 v7, v7, v5
              v_mul_u32_u24 v6, 7168, v6
              v_lshl_add_u32 v{P3V+i}, v7, 4, v6""")
        if i & 3: A(f"v_subrev_u32 v{P3V+i}, {(i&3)*1024}, v{P3V+i}")
    A("s_waitcnt lgkmcnt(0)")
    for i in range(16):
        A(f"v_lshlrev_b32 v{ACC+2*i}, 16, v{128+i}")
        A(f"v_and_b32 v{ACC+2*i+1}, v9, v{128+i}")
    V.wait(("kv", 1))
    A("s_barrier")
    fstamp(A, "B0")
    side = [0, 0]
    def cs3_loads(Z, n):
        for _ in range(n):
            k = side[0]; side[0] += 1
            Z(f"buffer_load_dwordx4 {v(C3B+4*k,4)}, v30, s[8:11], s47 offen")
            Z(f"s_add_u32 s47, s47, {8*7168}")
            V.note(1, "side")
    def touches(Z, n):
        for _ in range(n):
            k = side[1]; side[1] += 1
            if k == 2: Z(f"s_sub_u32 s63, s63, {2 << 20}")
            Z(f"buffer_load_dword v60, v54, {'s[56:59]' if k < 2 else 's[52:55]'}, s63 offen")
            Z(f"s_add_u32 s63, s63, {1 << 20}")
            V.note(1, "side")
    C3N = [int(x) for x in os.environ.get("C3N", "3,3,2").split(",")]
    TCN = [int(x) for x in os.environ.get("TCN", "3,3,3,0").split(",")]
    V.wait("poll"); kv_ready()
    kv_issue(3)
    V.op(kvpoll, "poll")
    cs3_loads(A, C3N[0])
    A("s_barrier")
    fstamp(A, "B1")
    V.wait("poll"); kv_ready()
    kv_issue(4)
    V.op(kvpoll, "poll")
    cs3_loads(A, C3N[1])
    A("s_barrier")
    fstamp(A, "B2")
    V.wait("poll"); kv_ready()
    A("H_j3:")
    def ldh1():
        for i in range(3): A(f"buffer_load_dword v{18+i}, v61, {WS}, s{48+i} offen sc1")
    def chkh1():
        A("""v_xor_b32 v18, s12, v18
             v_xor_b32 v19, s12, v19
             v_xor_b32 v20, s12, v20
             v_or3_b32 v18, v18, v19, v20
             v_cmp_ne_u32 vcc, 0, v18""")
    def w2_w(Z, b):
        Z(f"s_add_u32 m0, s38, {b*16384}")
        Z("s_nop 0")
        for i in range(4): Z(f"buffer_load_dwordx4 v{24+i}, s[28:31], s44 offen offset:{i*1024} lds")
        Z(f"s_add_u32 s44, s44, {128*2048}")
        V.note(4, "w")
    def w2_x(Z, b):
        for st in range(4):
            for tb in range(2):
                Z(f"buffer_load_dwordx4 {v(XB+32*b+8*st+4*tb,4)}, v8, {WS}, s43 offen offset:{tb*1024} sc1")
            Z("s_add_u32 s43, s43, 8192")
        V.note(8, "x")
    def w2_loads(Z, b):
        w2_w(Z, b); w2_x(Z, b)
    w2_w(A, 0)
    kv_issue(5)
    ldh1(); V.note(3, "poll"); V.wait("poll")
    spin_until(A, chkh1, ldh1, "h1")
    fstamp(A, "h1ok")
    def w2_reads(Z, b, st):
        for nb in range(4):
            for e in range(2): Z(f"ds_read_b64_tr_b16 {v(WB+16*(st&1)+4*nb+2*e,2)}, v{32+nb} offset:{b*16384 + st*4096 + e*2048}")
    def w2_mfma(Z, b):
        for st in range(4):
            Z(f"s_waitcnt lgkmcnt({8 if st < 3 else 0})")
            for nb in range(4):
                for tb in ((0, 1) if nb % 2 == 0 else (1, 0)):
                    Z(f"v_mfma_f32_16x16x32_bf16 {v(acc(tb,nb),4)}, {v(WB+16*(st&1)+4*nb,4)}, {v(XB+32*b+8*st+4*tb,4)}, {v(acc(tb,nb),4)}")
            if st < 2: w2_reads(Z, b, st + 2)
    V.op(f"""s_lshl_b32 s41, s16, 9
          s_lshl_b32 s3, s18, 7
          s_add_u32 s41, s41, s3
          s_add_u32 s41, s41, {WS_G}
          buffer_load_dword v36, v23, {WS}, s41 offen sc1""", "g")
    w2_x(A, 0)
    cs3_loads(A, C3N[2])
    A("s_barrier")
    fstamp(A, "B3")
    A(f"s_setprio {os.environ.get('HPRIO', '2')}")
    for j in range(4, 12):
        b = (j - 4) & 1
        w2_reads(A, b, 0); w2_reads(A, b, 1)
        V.wait("x")
        I = Asm(); M = Asm()
        if j < 11: w2_loads(I, 1 - b)
        kv_issue(j + 2, I)
        w2_mfma(M, b)
        interleave(A, I.lines, M.lines)
        if j == 11: break
        V.wait("w")
        if j == 5:
            for k in range(8): A(f"v_mfma_f32_16x16x32_bf16 {v(SAC,4)}, {v(SEL,4)}, {v(C3B+4*k,4)}, {'0' if k == 0 else v(SAC,4)}")
            A(f"""s_lshl_b32 s3, s18, 7
                  s_add_u32 s3, s3, {L_GT}
                  v_add_u32 v5, s3, v23
                  ds_write_b32 v5, v36""")
        if j == 6:
            for r in range(4): A(dppadd(SAC + r, 8))
            V.op(f"""v_lshlrev_b32 v5, 5, v3
                  v_lshl_add_u32 v5, v4, 4, v5
                  s_mul_i32 s41, s16, {F*4}
                  s_mul_i32 s49, s17, 896
                  s_mul_i32 s3, s18, 224
                  s_add_u32 s49, s49, s3
                  s_add_u32 s49, s49, {WS_CS3}
                  s_add_u32 s41, s41, s49
                  s_mov_b32 exec_lo, 0x007f007f
                  s_mov_b32 exec_hi, 0
                  buffer_store_dwordx4 {v(SAC,4)}, v5, {WS}, s41 offen sc1
                  s_mov_b64 exec, -1""", "st")
        A("s_barrier")
        if j in (4, 10): fstamp(A, f"B{j}")
    A(f"""s_lshl_b32 s45, s16, 18
          s_lshl_b32 s3, s17, 14
          s_add_u32 s45, s45, s3
          s_lshl_b32 s3, s18, 11
          s_add_u32 s45, s45, s3
          s_add_u32 s45, s45, {WS_X1}
          s_add_u32 s47, s45, 8192
          s_nop 1""")
    for tb in range(2):
        for nb in range(4):
            a = ACC + 4 * (tb * 4 + nb); xr = 128 + 8 * tb + 2 * nb
            A(f"""v_cvt_pk_bf16_f32 v{xr}, v{a}, v{a+1}
                  v_cvt_pk_bf16_f32 v{xr+1}, v{a+2}, v{a+3}""")
    for tb in range(2):
        V.op(f"buffer_store_dwordx4 {v(128+8*tb,4)}, v8, {WS}, s45 offen offset:{tb*1024} sc1", "st")
        V.op(f"buffer_store_dwordx4 {v(132+8*tb,4)}, v8, {WS}, s47 offen offset:{tb*1024} sc1", "st")
    for h in range(2):
        for tb in range(2):
            x = v(128 + 8*tb + 4*h, 4)
            A(f"v_mfma_f32_16x16x32_bf16 {v(SAC+4*tb,4)}, {v(ONE,4)}, {x}, {'0' if h == 0 else v(SAC+4*tb,4)}")
            A(f"v_mfma_f32_16x16x32_bf16 {v(SAC+8+4*tb,4)}, {x}, {x}, {'0' if h == 0 else v(SAC+8+4*tb,4)}")
    A(f"""v_and_b32 v5, 3, v3
          v_cmp_eq_u32 s[88:89], 1, v5
          v_cmp_eq_u32 s[90:91], 2, v5
          v_cmp_eq_u32 vcc, 3, v5
          s_lshl_b32 s41, s19, 10
          s_lshl_b32 s3, s18, 8
          s_add_u32 s41, s41, s3
          s_add_u32 s41, s41, {WS_ST}
          v_lshlrev_b32 v6, 4, v3""")
    for tb in range(2):
        q = SAC + 8 + 4*tb
        A(f"""v_cndmask_b32 v{q}, v{q}, v{q+1}, s[88:89]
              v_cndmask_b32 v{q}, v{q}, v{q+2}, s[90:91]
              v_cndmask_b32 v{SAC+2+tb}, v{q}, v{q+3}, vcc""")
    V.op(f"""v_mov_b32 v{SAC+1}, v{SAC+4}
          s_mov_b32 exec_lo, 0x00f0000f
          s_mov_b32 exec_hi, 0xf0000f00
          buffer_store_dwordx4 {v(SAC,4)}, v6, {WS}, s41 offen sc1
          s_mov_b64 exec, -1""", "st")
    touches(A, TCN[0])
    V.wait(("kv", 12))
    A("s_barrier")
    fstamp(A, "B11")
    kv_issue(14)
    A(f"""s_lshl_b32 s45, s19, {2+FS}
          s_lshl_b32 s3, s18, {FS}
          s_add_u32 s45, s45, s3
          s_add_u32 s45, s45, {F_X1}""")
    V.wait("st")
    flag_store(A, 45); V.note(1, "st")
    touches(A, TCN[1])
    A("s_barrier")
    fstamp(A, "B12")
    kv_issue(15)
    srd(A, 28, P_W3, P_W3 + 1, D * F * 2)
    A(f"""s_lshl_b32 s43, s16, 18
          s_add_u32 s43, s43, s46
          s_add_u32 s43, s43, {WS_X1}
          s_mul_i32 s44, s18, {16*7168}
          s_mul_i32 s3, s17, 448
          s_add_u32 s44, s44, s3
          s_mul_i32 s38, s18, 7168
          s_add_u32 s38, s38, 16384
          s_lshl_b32 s48, s16, {6+FS}
          s_add_u32 s48, s48, {F_X1}""")
    touches(A, TCN[2])
    V.wait(("kv", 14))
    A("s_barrier")
    fstamp(A, "B13")
    A("s_setprio 0")
    r3a, r3b = [int(x) for x in os.environ.get("ROT3", "0,0").split(",")]
    A(f"""s_mul_i32 s50, s16, {r3a}
          s_mul_i32 s3, s17, {r3b}
          s_add_u32 s50, s50, s3
          s_and_b32 s50, s50, 15
          s_mov_b32 s51, s50""")
    def p3_x(slot):
        A(f"s_add_u32 m0, s46, {slot}")
        A("s_lshl_b32 s41, s50, 14")
        A("s_add_u32 s41, s41, s43")
        for i in range(4): A(f"buffer_load_dwordx4 v8, {WS}, s41 offen offset:{i*1024} sc1 lds")
        A("s_add_u32 s50, s50, 1"); A("s_and_b32 s50, s50, 15")
    def p3_w(slot):
        A(f"s_add_u32 m0, s38, {slot}")
        A(f"s_mul_i32 s41, s51, {64*7168}")
        A("s_add_u32 s41, s41, s44")
        for i in range(7):
            if i == 4:
                A("s_add_u32 m0, m0, 4096"); A("s_add_u32 s51, s51, 1")
            A(f"buffer_load_dwordx4 v{P3V+i}, s[28:31], s41 offen offset:{(i&3)*1024} lds")
        A("s_and_b32 s51, s51, 15")
    def p3_issue(slot):
        p3_x(slot); p3_w(slot)
    ld = lambda: A(f"buffer_load_dword v20, v61, {WS}, s48 offen sc1")
    A(f"""s_lshl_b32 s47, s17, {2+FS}
          s_lshl_b32 s3, s18, {FS}
          s_add_u32 s47, s47, s3
          s_add_u32 s47, s47, {F_X1}
          v_lshlrev_b32 v18, {6+FS}, v3""")
    ld2 = lambda: A(f"buffer_load_dword v19, v18, {WS}, s47 offen sc1")
    p3_w(L3 + S3)
    p3_w(L3 + 2 * S3)
    k = code_touch(A, "C_attend", "C_slow", 1)
    ld(); ld2()
    A(f"""s_lshl_b32 s45, s16, 14
          s_lshl_b32 s3, s18, 8
          s_add_u32 s45, s45, s3
          s_add_u32 s45, s45, {WS_ST}
          v_lshlrev_b32 v21, 4, v3
          v_mul_u32_u24 v22, {F*4}, v4
          v_add_u32 v22, v22, v21
          v_lshl_add_u32 v21, v4, 10, v21""")
    endit(16 + k)
    fstamp(A, "B14")
    A("s_waitcnt vmcnt(0)")
    spin_until(A, lambda: A("v_cmp_ne_u32 vcc, s12, v20"), ld, "x1")
    fstamp(A, "x1ok")
    p3_x(L3 + S3)
    for i in range(4):
        A(f"buffer_load_dwordx4 {v(64+4*i,4)}, v21, {WS}, s45 offen sc1")
        if i < 3: A("s_add_u32 s45, s45, 4096")
    spin_until(A, lambda: A("v_cmp_ne_u32 vcc, s12, v19"), ld2, "cs")
    for i in range(4):
        A(f"buffer_load_dwordx4 {v(128+4*i,4)}, v22, {WS}, s49 offen sc1")
        if i < 3: A(f"s_add_u32 s49, s49, {4*F*4}")
    p3_x(L3 + 2 * S3)
    A("s_barrier")
    A("s_waitcnt vmcnt(4)")
    for b_ in (64, 128):
        for r in range(0, 4, 2):
            A(f"v_pk_add_f32 {v(b_+r,2)}, {v(b_+r,2)}, {v(b_+4+r,2)}")
            A(f"v_pk_add_f32 {v(b_+8+r,2)}, {v(b_+8+r,2)}, {v(b_+12+r,2)}")
        for r in range(0, 4, 2): A(f"v_pk_add_f32 {v(b_+r,2)}, {v(b_+r,2)}, {v(b_+8+r,2)}")
    A(f"""v_sub_f32 v37, 1.0, v36
          v_permlane32_swap_b32 v64, v66
          v_permlane32_swap_b32 v65, v67
          v_permlane32_swap_b32 v128, v130
          v_permlane32_swap_b32 v129, v131
          v_pk_add_f32 v[64:65], v[64:65], v[66:67]
          v_pk_add_f32 v[128:129], v[128:129], v[130:131]
          v_cvt_pk_bf16_f32 v37, v37, v37
          s_mul_i32 s3, s18, 224
          v_permlane16_swap_b32 v64, v65
          v_permlane16_swap_b32 v128, v129
          v_add_f32 v64, v64, v65
          v_add_f32 v128, v128, v129
          v_mul_f32 v64, {hexf(1.0/1024)}, v64
          s_add_u32 s3, s3, {L_CS}
          v_mov_b32 v65, v64
          v_lshl_add_u32 v22, v3, 4, s3
          v_lshl_add_u32 v22, v4, 2, v22
          v_permlane32_swap_b32 v64, v65
          s_mov_b32 exec_lo, 0x3fff3fff
          s_mov_b32 exec_hi, 0x3fff3fff
          ds_write_b32 v22, v128
          s_mov_b64 exec, -1
          v_and_b32 v37, v9, v37
          v_max_f32 v37, {hexf(2.0**-60)}, v37""")
    ln_consts(A, 64, 5, 37)
    A(f"""s_lshl_b32 s3, s18, 9
          s_add_u32 s3, s3, {L_ST}
          v_lshl_add_u32 v5, v23, 2, s3
          ds_write_b128 v5, v[64:67]
          s_waitcnt lgkmcnt(0)
          s_barrier""")
    A(f"s_mov_b32 s45, {L3}")
    A("s_mov_b32 s40, 14")
    L = A.label("p3loop")
    A(f"{L}:")
    if "p3now" in EXP: p3_x("s45")
    else: p3_issue("s45")
    A(f"""s_add_u32 s45, s45, {S3}
          s_cmp_eq_u32 s45, {L3 + 3*S3}
          s_cselect_b32 s45, {L3}, s45
          s_waitcnt vmcnt(11)
          s_barrier
          s_sub_u32 s40, s40, 1
          s_cmp_lg_u32 s40, 0
          s_cbranch_scc1 {L}""")
    A(f"""s_lshr_b32 s21, s17, 3
          s_lshl_b32 s48, s16, {6+FS}
          s_lshl_b32 s3, s21, {5+FS}
          s_add_u32 s48, s48, s3
          s_add_u32 s48, s48, {F_O}
          v_and_b32 v61, {(32 << FS) - 1}, v61""")
    ld()
    A(f"""v_lshrrev_b32 v5, 4, v2
          v_and_b32 v6, 15, v2
          v_lshlrev_b32 v7, 1, v5
          v_xor_b32 v7, v7, v6
          s_lshl_b32 s3, s18, 4
          v_add_u32 v5, s3, v5
          v_lshlrev_b32 v5, 11, v5
          v_lshl_add_u32 v11, v7, 4, v5
          s_and_b32 s3, s17, 7
          s_lshl_b32 s3, s3, 8
          v_add_u32 v11, s3, v11
          v_xor_b32 v12, 128, v11
          v_add_u32 v12, {4*2048 - 1024}, v12
          v_add_u32 v13, {8*2048 - 2048}, v11
          v_add_u32 v14, {8*2048 - 2048}, v12
          s_lshr_b32 s21, s17, 3
          s_mul_i32 s33, s16, {HO_PANEL}
          s_add_u32 s33, s33, s46
          s_add_u32 s33, s33, {WS_HO}
          s_lshl_b32 s3, s21, 17
          s_add_u32 s43, s33, s3
          s_add_u32 s43, s43, {112*8192}
          s_lshl_b32 s44, s21, 20
          s_add_u32 s38, s46, 16384""")
    srd(A, 28, P_WO, P_WO + 1, D * D * 2)
    k = code_touch(A, "C_p3end", "C_p4end", 1)
    endit(k)
    spin_until(A, lambda: A("v_cmp_ne_u32 vcc, s12, v20"), ld, "o")
    A("s_barrier")
    fstamp(A, "p3B15")
    V = VM(A)
    RW = [int(x) for x in os.environ.get("RW", "").split(",") if x]
    rwreg = {t: 64 + 16 * i for i, t in enumerate(RW)}
    def p4_x(t):
        slot = (t % 4) * S4
        A(f"s_add_u32 m0, s46, {slot}")
        A("s_nop 0")
        for i in range(4): V.op(f"buffer_load_dwordx4 v8, {WS}, s43 offen offset:{i*1024} sc1 lds", ("t", t))
        A("s_add_u32 s43, s43, 16384")
    def p4_w(t):
        slot = (t % 4) * S4
        if t not in rwreg:
            A(f"s_add_u32 m0, s38, {slot}")
            A("s_nop 0")
            for i in range(4): V.op(f"buffer_load_dwordx4 v{11+i}, {'s[28:31]' if t < 8 else 's[52:55]'}, s44 offen offset:{i*1024} lds", ("t", t))
        if t == 7: A(f"s_mul_i32 s44, s21, {1792*2048}")
        else: A(f"s_add_u32 s44, s44, {64*2048}")
    def p4_issue(t):
        p4_x(t); p4_w(t)
    def p4_end(j):
        V.wait(("t", min(j + 1, 35)))
        A("s_barrier")
    PP = os.environ.get("PP", "")
    for t in range(4):
        p4_x(t)
        if PP: A(f"s_waitcnt vmcnt({PP})")
        p4_w(t)
        if PP: A(f"s_waitcnt vmcnt({PP})")
    A(f"s_add_u32 s48, s48, {F_H2 - F_O}")
    V.wait(("t", 0))
    fstamp(A, "p4pre")
    A("s_barrier")
    p4_end(0)
    for j in range(1, 5):
        p4_issue(j + 3)
        p4_end(j)
    fstamp(A, "p4j5")
    A(f"""s_mul_i32 s3, s21, {56*8192}
          s_add_u32 s43, s33, s3""")
    ldp = f"buffer_load_dword v20, v61, {WS}, s48 offen sc1"
    L6 = A.label("h2at6"); L7 = A.label("h2at7"); Lj6 = A.label("h2j6"); Lj7 = A.label("h2j7")
    V.op(ldp, "poll"); p4_w(8); V.wait("poll")
    A("v_cmp_ne_u32 vcc, s12, v20")
    A(f"s_cbranch_vccnz {L6}")
    base = list(V.log)
    p4_x(8); A("s_barrier")
    p4_w(9)
    A(f"{Lj6}:")
    p4_x(9); A("s_barrier")
    p4_w(10)
    A(f"{Lj7}:")
    p4_x(10)
    fstamp(A, "h2ok")
    A("s_waitcnt vmcnt(8)")
    A("s_barrier")
    Lgo = A.label("h2go")
    A(f"s_branch {Lgo}")
    keep = list(V.log)
    A(f"{L6}:")
    A("s_barrier")
    A(ldp); p4_w(9); A("s_waitcnt vmcnt(4)")
    A("v_cmp_ne_u32 vcc, s12, v20")
    A(f"s_cbranch_vccnz {L7}")
    p4_x(8)
    A(f"s_branch {Lj6}")
    A(f"{L7}:")
    A("s_barrier")
    A(ldp); p4_w(10); A("s_waitcnt vmcnt(4)")
    spin_until(A, lambda: A("v_cmp_ne_u32 vcc, s12, v20"), ld, "h2")
    p4_x(8); p4_x(9)
    A(f"s_branch {Lj7}")
    A(f"{Lgo}:")
    V.log = [("t", 8)] * 4 + [("t", 9)] * 4 + [("t", 10)] * 4
    for j in range(8, 33):
        p4_issue(j + 3)
        if j == 28: V.note(code_touch(A, "C_p4end", "C_slow", 1), "ct")
        p4_end(j)
    p4_end(33); p4_end(34)
    A("s_barrier")
    fstamp(A, "end")
    fstamp_flush(A, 1)

def compute(A):
    ROLE[0] = 0
    ACC, XB0, WB0 = 128, 64, 96
    acc = lambda tb, nb: ACC + 4 * (tb * 8 + nb)
    XB = lambda p, tb: XB0 + 16 * p + 4 * tb
    WB = lambda nb: WB0 + 4 * nb
    if PROF: A("v_mov_b64 v[62:63], 0")
    A("""s_lshr_b32 s19, s18, 1
         s_and_b32 s20, s18, 1
         v_and_b32 v3, 15, v2
         v_lshrrev_b32 v4, 4, v2""")
    A("""s_lshl_b32 s3, s19, 6
         v_add_u32 v5, s3, v3
         v_lshlrev_b32 v5, 7, v5
         v_lshrrev_b32 v6, 1, v3
         v_xor_b32 v6, v6, v4
         v_lshlrev_b32 v7, 4, v6
         v_add_u32 v14, v5, v7
         v_xor_b32 v15, 64, v14""")
    A("""v_lshrrev_b32 v5, 2, v3
         v_and_b32 v6, 3, v3
         v_lshl_add_u32 v7, v4, 3, v5
         v_lshlrev_b32 v7, 7, v7
         v_lshl_add_u32 v7, v6, 3, v7
         v_lshrrev_b32 v8, 1, v5
         v_and_b32 v9, 1, v4
         v_lshl_or_b32 v8, v9, 1, v8
         s_lshl_b32 s3, s20, 1
         v_xor_b32 v8, s3, v8
         v_lshl_add_u32 v16, v8, 5, v7
         v_xor_b32 v17, 32, v16""")
    A("""v_mov_b32 v10, v14
         v_mov_b32 v11, v15
         v_mov_b32 v12, v16
         v_mov_b32 v13, v17
         s_mov_b32 s21, 0""")
    Lnn = A.label("nononce")
    A(f"""s_memrealtime s[28:29]
          s_waitcnt lgkmcnt(0)
          s_or_b32 s3, s2, s18
          s_cmp_lg_u32 s3, 0
          s_cbranch_scc1 {Lnn}""")
    srd(A, 24, P_DBG, P_DBG + 1, 4)
    A(f"""s_or_b32 s28, s28, 1
          v_mov_b32 v5, s28
          v_lshlrev_b32 v6, 2, v2
          buffer_store_dword v5, v6, s[24:27], 0 offen sc1""")
    A(f"{Lnn}:")
    srd(A, 4, P_WS, P_WS + 1, WS_END)
    fstamp(A, "start")
    for i in range(0, 128, 2): A(f"v_mov_b64 {v(ACC+i,2)}, 0")
    A(f"""v_and_b32 v5, 1, v4
          v_lshrrev_b32 v6, 1, v4
          v_lshlrev_b32 v5, 6, v5
          v_lshl_add_u32 v5, v6, 9, v5
          v_lshrrev_b32 v6, 2, v3
          v_and_b32 v7, 3, v3
          v_lshl_add_u32 v6, v6, 3, v7
          v_lshl_add_u32 v21, v6, 4, v5
          v_lshlrev_b32 v5, 9, v4
          v_lshrrev_b32 v6, 3, v3
          v_and_b32 v7, 7, v3
          v_lshl_add_u32 v6, v6, 4, v7
          v_lshl_add_u32 v22, v6, 4, v5
          s_lshl_b32 s3, s20, 14
          s_lshl_b32 s22, s19, 13
          s_add_u32 s3, s3, s22
          v_add_u32 v21, s3, v21
          v_add_u32 v22, s3, v22
          s_lshl_b32 s3, s19, 10
          v_lshl_add_u32 v18, v3, 4, s3
          v_add_u32 v18, {L_ST}, v18
          s_lshl_b32 s3, s20, 7
          v_lshl_add_u32 v19, v4, 4, s3
          v_add_u32 v19, {L_CS}, v19
          v_mov_b32 v20, {L_NON}
          s_mov_b32 s38, {hexf(QSCALE)}
          s_lshl_b32 s22, s13, 1
          s_add_u32 s22, s22, s20
          s_lshr_b32 s3, s22, 3
          s_lshr_b32 s32, s3, 1
          s_add_u32 s32, s32, 1
          s_sub_u32 s33, 0, s32
          s_and_b32 s3, s3, 1
          s_cmp_eq_u32 s3, 1
          s_cselect_b32 s32, s33, s32
          s_lshl_b32 s33, s16, 7
          s_lshl_b32 s3, s19, 6
          s_add_u32 s33, s33, s3
          s_add_u32 s33, s33, s32
          s_lshl_b32 s34, s22, 13
          s_add_u32 s34, s34, {WS_H1}
          v_add_u32 v50, s33, v3
          v_and_b32 v49, 15, v50
          v_lshlrev_b32 v49, 4, v49
          v_lshl_add_u32 v49, v4, 8, v49
          v_cmp_gt_u32 vcc, 2048, v50
          s_mov_b64 s[42:43], vcc""")
    for tb in range(4):
        A(f"""v_bfe_u32 v51, v50, 7, 4
              v_bfe_u32 v48, v50, 4, 3
              v_lshl_add_u32 v51, v51, 18, v49
              v_lshl_add_u32 v{56+tb}, v48, 10, v51""")
        if tb < 3: A("v_add_u32 v50, 16, v50")
    A(f"""v_cmp_gt_u32 vcc, 2048, v50
         s_mov_b64 s[44:45], vcc
         s_lshl_b32 s23, s16, {6+FS}
         s_lshl_b32 s3, s17, {2+FS}
         s_add_u32 s23, s23, s3
         s_lshl_b32 s3, s18, {FS}
         s_add_u32 s23, s23, s3""")
    A(f"""s_lshl_b32 s3, s17, 4
          s_add_u32 s3, s3, s16
          s_lshl_b32 s46, s3, 15
          s_add_u32 s46, s46, {WS_KV}
          s_add_u32 s47, s46, 4096
          s_lshl_b32 s48, s3, 10
          s_lshl_b32 s3, s20, 8
          s_add_u32 s48, s48, s3
          s_lshl_b32 s3, s19, 7
          s_add_u32 s48, s48, s3
          s_add_u32 s48, s48, {F_KV}
          s_mov_b32 s49, 1""")
    def try_flag(Z, soff, block=False, lane=30):
        Ls = A.label("tf")
        if block:
            Z("s_cmp_eq_u32 s49, 0")
        else:
            Z("s_getreg_b32 s3, hwreg(HW_REG_IB_STS, 0, 4)")
            Z("s_cmp_ge_u32 s3, s49")
        Z(f"s_cbranch_scc1 {Ls}")
        Z("s_waitcnt vmcnt(0)")
        Z("s_mov_b32 s49, 0")
        if PROF:
            Z("s_memrealtime s[96:97]"); Z("s_waitcnt lgkmcnt(0)"); Z(f"v_writelane_b32 v62, s96, {lane}")
        flag_store(Z, soff)
        Z(f"{Ls}:")
    xread = lambda st, tb, dst: f"ds_read_b128 {v(dst,4)}, v{10+st} offset:{tb*2048}"
    wread = lambda st, nb, e, dst: f"ds_read_b64_tr_b16 {v(dst,2)}, v{12+(nb&1)} offset:{16384 + (nb>>1)*8192 + st*4096 + e*512}"
    def advance():
        return [f"s_add_u32 s21, s21, {S1}", f"s_cmp_eq_u32 s21, {3*S1}", "s_cselect_b32 s21, 0, s21",
                "v_add_u32 v10, s21, v14", "v_add_u32 v11, s21, v15", "v_add_u32 v12, s21, v16", "v_add_u32 v13, s21, v17"]
    for sl in range(3):
        for i in range(4): A(f"v_add_u32 v{24+4*sl+i}, {sl*S1}, v{14+i}")
    A("s_barrier")
    fstamp(A, "P")
    if MS or "oldp1" in EXP: compute_loop(A, 4, 8, 2, 16 - MS, acc, XB, WB, xread, wread, advance, swapped=(4, 5), name="p1c")
    else:
        xr1 = lambda sl, st, tb, dst: f"ds_read_b128 {v(dst,4)}, v{24+4*sl+st} offset:{tb*2048}"
        wr1 = lambda sl, st, nb, e, dst: f"ds_read_b64_tr_b16 {v(dst,2)}, v{26+4*sl+(nb&1)} offset:{16384 + (nb>>1)*8192 + st*4096 + e*512}"
        gemm_loop(A, 4, list(range(8)), 16, 3, 0, acc, XB, lambda p, nb: WB(nb), xr1, wr1, swapped=(4, 5), bar_gap=int(os.environ.get("BG1", "8")), name="p1c")
    A("C_p1a:")
    fstamp(A, "p1a")
    if MS: compute_loop(A, 4, 8, 2, MS, acc, XB, WB, xread, wread, advance, swapped=(4, 5), name="p1a", nbs=[2, 3, 4, 5], skip_pre=True, bar_after=1)
    fstamp(A, "p1b")
    def pack(t, a0, a1):
        A(f"v_cvt_pk_bf16_f32 v{t}, v{a0}, v{a0+1}"); A(f"v_cvt_pk_bf16_f32 v{t+1}, v{a0+2}, v{a0+3}")
        A(f"v_cvt_pk_bf16_f32 v{t+2}, v{a1}, v{a1+1}"); A(f"v_cvt_pk_bf16_f32 v{t+3}, v{a1+2}, v{a1+3}")
    for nb in ((0, 1, 6, 7) if MS else ()):
        for e in range(2): A(wread(0, nb, e, WB(nb) + 2*e))
    gst = []; lst = []
    for u in range(2):
        for a in range(2):
            t = acc(2*u + a, 2)
            pack(t, t, acc(2*u + a, 3))
            lst.append(f"ds_write_b128 v21, {v(t,4)} offset:{kvslot(0) + u*4096 + a*1024}")
            gst.append(f"buffer_store_dwordx4 {v(t,4)}, v21, {WS}, s{46 + u} offen offset:{a*1024} sc1")
        for nbv in range(2):
            t = acc(2*u + nbv, 3)
            pack(t, acc(2*u, 4+nbv), acc(2*u+1, 4+nbv))
            lst.append(f"ds_write_b128 v22, {v(t,4)} offset:{kvslot(0) + u*4096 + 2048 + nbv*128}")
            gst.append(f"buffer_store_dwordx4 {v(t,4)}, v22, {WS}, s{46 + u} offen offset:{2048 + nbv*128} sc1")
    for u in range(2):
        for i in range(4): A(f"v_permlane16_swap_b32 v{acc(2*u,2)+i}, v{acc(2*u+1,2)+i}")
    pace = int(os.environ.get("PACE", "4"))
    un = [dict() for _ in range(MS)]
    for i, g_ in enumerate(gst):
        if MS == 0: A(g_); continue
        pos = min(i * pace, MS * 32 - 8 + i)
        un[pos // 32][pos % 32] = g_
    if MS: compute_loop(A, 4, 8, 2, MS, acc, XB, WB, xread, wread, advance, name="p1b", nbs=[0, 1, 6, 7], skip_pre=True, bar_after=1, unroll=un)
    A("C_p1end:")
    fstamp(A, "p1end")
    SB = lambda i: 64 + 16 * (i & 3)
    O = lambda q: 128 + 16 * q
    Lr = lambda q: 160 + 4 * q
    Q = lambda q, b: 168 + 8 * q + 4 * b
    KB = lambda p, b: 184 + 8 * p + 4 * b
    VB = lambda p, b: 200 + 8 * p + 4 * b
    ONES, IDX, VBASE, VL16, H1P, VB0 = 216, 220, 10, 11, 224, 17
    for l in lst: A(l)
    for tb in range(4): A(f"ds_read_b128 {v(24+4*tb,4)}, v18 offset:{tb*256}")
    A("ds_read_b128 v[40:43], v19")
    A("ds_read_b128 v[44:47], v19 offset:64")
    A("ds_read_b32 v20, v20")
    A("s_waitcnt lgkmcnt(0)")
    A("s_barrier")
    A("v_readfirstlane_b32 s12, v20")
    for tb in range(4):
        a0 = acc(tb, 0)
        for r in range(0, 8, 2): A(f"v_pk_mul_f32 {v(a0+r,2)}, {v(a0+r,2)}, s[38:39] op_sel_hi:[1,0]")
        pack(Q(tb >> 1, tb & 1), a0, a0 + 4)
    try_flag(A, 48)
    for tb in range(4):
        a0 = acc(tb, 6); t = H1P + 4 * tb
        gelu_pk(A, [a0 + 2*i for i in range(4)], [40 + 2*i for i in range(4)], 24 + 4*tb, [48 + 2*i for i in range(4)], [t + i for i in range(4)])
        if tb in (0, 3):
            for r in range(4): A(f"v_cndmask_b32 v{t+r}, 0, v{t+r}, {'s[42:43]' if tb == 0 else 's[44:45]'}")
        try_flag(A, 48)
    for q in range(2):
        for i in range(4): A(f"v_permlane16_swap_b32 v{Q(q,0)+i}, v{Q(q,1)+i}")
    A(f"""v_lshlrev_b32 v{VL16}, 4, v2
          s_lshl_b32 s3, s20, 14
          v_add_u32 v{VB0}, s3, v{VL16}
          s_mov_b32 s21, {kvslot(0)}
          v_add_u32 v{VBASE}, s21, v{VB0}""")
    rdK = lambda t: [Item(f"ds_read_b128 {v(KB(t&1,b),4)}, v{VBASE} offset:{(t&3)*4096 + b*1024}", gives=("K", t&1, b)) for b in range(2)]
    rdV = lambda t: [Item(f"ds_read_b128 {v(VB(t&1,b),4)}, v{VBASE} offset:{(t&3)*4096 + 2048 + b*1024}", gives=("V", t&1, b)) for b in range(2)]
    pre = [Item("", gives=("V", 1, 0)), Item("", gives=("V", 1, 1))] + rdK(0) + rdV(0)
    for it in pre[2:]: A(it.text)
    A(f"""v_and_b32 v5, 7, v2
          v_cmp_eq_u32 vcc, 0, v5
          v_cmp_eq_u32 s[42:43], 4, v5
          v_mov_b32 v5, 0x3f803f80
          v_mov_b32 v{IDX}, 0xdddddddd
          v_cndmask_b32 v{ONES}, 0, v5, vcc
          v_cndmask_b32 v{ONES+1}, 0, v5, vcc
          v_cndmask_b32 v{ONES+2}, 0, v5, s[42:43]
          v_cndmask_b32 v{ONES+3}, 0, v5, s[42:43]""")
    for i in range(0, 40, 2): A(f"v_mov_b64 {v(128+i,2)}, 0")
    for i in range(0, 16, 2): A(f"v_mov_b64 {v(SB(3)+i,2)}, 0")
    for i in range(0, 8, 2): A(f"v_mov_b64 {v(VB(1,0)+i,2)}, 0")
    def qk(u):
        t, q = u >> 1, u & 1
        d = SB(u)
        return [Item(f"v_mfma_f32_32x32x16_bf16 {v(d,16)}, {v(KB(t&1,0),4)}, {v(Q(q,0),4)}, 0", needs=[("K", t&1, 0), ("K", t&1, 1)]),
                Item(f"v_mfma_f32_32x32x16_bf16 {v(d,16)}, {v(KB(t&1,1),4)}, {v(Q(q,1),4)}, {v(d,16)}")]
    def pv(u, need=True):
        t, q = u >> 1, u & 1
        d = SB(u)
        r = []
        for b in range(2):
            r.append(Item(f"v_smfmac_f32_32x32x32_bf16 {v(O(q),16)}, {v(VB(t&1,b),4)}, {v(d+8*b,8)}, v{IDX}", needs=[("V", t&1, b)] if need else []))
            r.append(Item(f"v_smfmac_f32_16x16x64_bf16 {v(Lr(q),4)}, {v(ONES,4)}, {v(d+8*b,8)}, v{IDX}"))
        return r
    A("s_waitcnt lgkmcnt(2)")
    for it in qk(0): A(it.text)
    fstamp(A, "att0")
    A("s_nop 9")
    body = []
    for u in range(8):
        e = [Item(f"v_exp_f32 v{SB(u)+i}, v{SB(u)+i}") for i in range(16)]
        m = qk(u + 1) + pv(u - 1)
        t1 = (u >> 1) + 1
        extra = rdK(t1) if (u & 1) == 0 else rdV(t1)
        if u == 5: extra += [Item(f"s_add_u32 s21, s21, {KVS}"), Item(f"s_cmp_eq_u32 s21, {3*KVS}"), Item("s_cselect_b32 s21, 0, s21"), Item(f"v_add_u32 v{VBASE}, s21, v{VB0}")]
        if u == 7: extra += [Item("s_sub_u32 s40, s40, 1"), Item("s_cmp_lg_u32 s40, 0")]
        cnt = [3, 3, 3, 1, 3, 3]
        k = 0
        for mi in range(6):
            body.append(m[mi])
            if mi == 0 and u == 6: body.append(Item("s_barrier", drain=True))
            if extra: body.append(extra.pop(0))
            for j in range(cnt[mi]):
                body.append(e[k]); k += 1
    lines = insert_lgkm_waits(pre, body, maxcnt=15)
    try_flag(A, 48, block=True)
    nq = 0
    h1u = [int(x) for x in os.environ.get("H1U", "2,3,4,5").split(",")]
    for l in lines:
        if l.startswith(("s_sub_u32 s40", "s_cmp_lg_u32 s40")): continue
        A(l)
        if l.startswith("v_mfma") and l.endswith(", 0"):
            for tb in range(4):
                if h1u[tb] == nq: A(f"buffer_store_dwordx4 {v(H1P+4*tb,4)}, v{56+tb}, {WS}, s34 offen sc1")
            nq += 1
    A(f"s_add_u32 s48, s23, {F_H1}")
    A("s_mov_b32 s49, 1")
    try_flag(A, 48, lane=31)
    fstamp(A, "st0end")
    L = A.label("aloop"); Lx = A.label("aexit")
    A("s_mov_b32 s40, 1")
    A("s_mov_b32 s41, 14")
    A(f"{L}:")
    for l in lines: A(l)
    A(f"s_cbranch_scc1 {L}")
    A(f"""s_cmp_eq_u32 s41, 0
          s_cbranch_scc1 {Lx}""")
    try_flag(A, 48, block=True, lane=31)
    fstamp(A, "st1end")
    A(f"""s_mov_b32 s40, s41
          s_mov_b32 s41, 0
          s_branch {L}""")
    A(f"{Lx}:")
    A("C_attend:")
    for it in pv(7, False): A(it.text)
    fstamp(A, "attend")
    A(f"""v_and_b32 v5, 31, v2
          s_lshl_b32 s3, s19, 8
          s_add_u32 s3, s3, {L_GT}
          v_lshl_add_u32 v5, v5, 2, s3
          ds_read_b32 v12, v5
          ds_read_b32 v13, v5 offset:128
          s_mul_i32 s28, s16, {HO_PANEL}
          s_add_u32 s28, s28, {WS_HO}
          s_lshl_b32 s3, s17, 1
          s_add_u32 s3, s3, s20
          s_add_u32 s3, s3, 112
          s_lshl_b32 s3, s3, 13
          s_add_u32 s29, s28, s3
          s_lshl_b32 s3, s19, 12
          s_add_u32 s29, s29, s3
          v_bfe_u32 v6, v2, 4, 1
          v_lshlrev_b32 v6, 10, v6
          v_lshl_add_u32 v6, v3, 4, v6
          v_lshrrev_b32 v7, 5, v2
          v_lshl_add_u32 v16, v7, 8, v6""")
    Lslow = A.label("slow"); Lfin = A.label("fin")
    A(f"""v_min_f32 v8, v{Lr(0)}, v{Lr(1)}
          v_max_f32 v5, v{Lr(0)}, v{Lr(1)}
          v_pk_mul_f32 v[6:7], v[128:129], 0 op_sel_hi:[1,0]""")
    for i in range(2, 32, 2): A(f"v_pk_fma_f32 v[6:7], {v(128+i,2)}, 0, v[6:7] op_sel_hi:[1,0,1]")
    A(f"""v_add_f32 v7, v6, v7
          v_fmac_f32 v7, 0, v{Lr(0)}
          v_fmac_f32 v7, 0, v{Lr(1)}
          v_cmp_le_f32 vcc, {hexf(2.0**-20)}, v8
          s_mov_b64 s[44:45], vcc
          v_cmp_ge_f32 vcc, {hexf(2.0**60)}, v5
          s_and_b64 s[44:45], s[44:45], vcc
          v_cmp_eq_f32 vcc, 0, v7
          s_and_b64 s[44:45], s[44:45], vcc
          s_cmp_eq_u64 s[44:45], -1""")
    if "forceslow" in EXP: A(f"s_branch {Lslow}")
    A(f"s_cbranch_scc0 {Lslow}")
    A(f"{Lfin}:")
    A(f"""v_rcp_f32 v6, v{Lr(0)}
          v_rcp_f32 v7, v{Lr(1)}
          s_waitcnt lgkmcnt(0)
          v_mul_f32 v6, v6, v12
          v_mul_f32 v7, v7, v13""")
    for q in range(2):
        for i in range(0, 16, 2): A(f"v_pk_mul_f32 {v(O(q)+i,2)}, {v(O(q)+i,2)}, v[6:7] op_sel:[0,{q}] op_sel_hi:[1,{q}]")
        for b in range(2):
            t = 32 + 8 * q + 4 * b
            for i in range(4): A(f"v_cvt_pk_bf16_f32 v{t+i}, v{O(q)+8*b+2*i}, v{O(q)+8*b+2*i+1}")
            A(f"buffer_store_dwordx4 {v(t,4)}, v16, {WS}, s29 offen offset:{q*2048 + b*512} sc1")
    acc = lambda tb, nb: ACC + 4 * (tb * 7 + nb)
    A(f"""s_lshl_b32 s3, s19, 12
          v_add_u32 v14, s3, v{VL16}
          v_mov_b32 v9, v{VL16}
          v_lshrrev_b32 v5, 2, v3
          v_and_b32 v6, 3, v3
          v_lshl_add_u32 v7, v4, 2, v5
          v_mul_u32_u24 v7, 448, v7
          v_add_u32 v7, 16384, v7
          v_and_b32 v8, 1, v4
          v_lshl_add_u32 v5, v6, 3, v7
          s_lshl_b32 s3, s20, 8
          v_add_u32 v5, s3, v5
          v_lshl_add_u32 v15, v8, 5, v5
          v_xor_b32 v18, 1, v8
          v_lshl_add_u32 v18, v18, 5, v5
          v_and_b32 v5, 1, v6
          v_xor_b32 v5, v5, v8
          v_lshl_add_u32 v7, v5, 5, v7
          v_lshrrev_b32 v5, 1, v6
          v_lshl_add_u32 v7, v5, 3, v7
          s_lshl_b32 s3, s20, 4
          s_add_u32 s3, s3, 192
          v_add_u32 v17, s3, v7
          v_mov_b32 v16, v18
          s_mov_b32 s21, {L3 + S3}""")
    for sl in range(3):
        for i in range(4): A(f"v_add_u32 v{48+4*sl+i}, {L3 + sl*S3}, v{14+i}")
    for i in range(0, 112, 2): A(f"v_mov_b64 {v(ACC+i,2)}, 0")
    xread = lambda sl, st, tb, dst: f"ds_read_b128 {v(dst,4)}, v{48+4*sl} offset:{st*8192 + tb*1024}"
    wread = lambda sl, st, nb, e, dst: f"ds_read_b64_tr_b16 {v(dst,2)}, v{48+4*sl+(3 if nb == 6 else 1+(nb&1))} offset:{(0 if nb == 6 else (nb>>1)*64) + (st*32 + e*16)*448}"
    fstamp(A, "p3rdy")
    A("s_barrier")
    fstamp(A, "P3")
    def flagO():
        A(f"""s_add_u32 s3, s23, {F_O}
              s_waitcnt vmcnt(0)""")
        flag_store(A, 3)
    gemm_loop(A, 4, list(range(7)), 16, 3, 1, acc, XB, lambda p, nb: WB(nb), xread, wread, bar_gap=int(os.environ.get("BG3", "8")), name="p3c", hooks={3: flagO})
    A("C_p3end:")
    fstamp(A, "p3end")
    A(f"""s_lshl_b32 s3, s19, 10
          v_lshl_add_u32 v5, v3, 4, s3
          v_add_u32 v5, {L_ST}, v5
          s_lshl_b32 s3, s20, 9
          v_lshl_add_u32 v6, v4, 4, s3
          v_add_u32 v6, {L_CS}, v6
          v_and_b32 v7, 1, v4
          v_lshlrev_b32 v7, 6, v7
          v_lshrrev_b32 v8, 1, v4
          v_lshl_add_u32 v7, v8, 4, v7
          s_lshl_b32 s3, s20, 5
          s_add_u32 s3, s3, {L_CS + 384}
          v_add_u32 v7, s3, v7
          s_waitcnt lgkmcnt(0)""")
    for tb in range(4): A(f"ds_read_b128 {v(16+4*tb,4)}, v5 offset:{tb*256}")
    for nb in range(6): A(f"ds_read_b128 {v(32+4*nb,4)}, v6 offset:{nb*64}")
    A("ds_read_b128 v[56:59], v7")
    A(f"""s_mul_i32 s29, s17, {7*8192}
          s_add_u32 s29, s29, s28
          s_lshl_b32 s3, s19, 12
          s_add_u32 s29, s29, s3
          s_add_u32 s33, s29, {3*8192}
          s_lshl_b32 s3, s20, 9
          s_add_u32 s33, s33, s3
          s_lshl_b32 s3, s20, 15
          s_add_u32 s29, s29, s3
          s_add_u32 s30, s29, 8192
          s_add_u32 s31, s29, 16384
          v_and_b32 v5, 1, v4
          v_lshlrev_b32 v5, 10, v5
          v_lshl_add_u32 v5, v8, 8, v5
          v_lshl_add_u32 v8, v3, 4, v5
          s_waitcnt lgkmcnt(0)""")
    k = 0
    for tb in range(4):
        st = 16 + 4 * tb
        for pr in range(3):
            a0 = acc(tb, 2 * pr); o = 72 + 4 * (k % 6); k += 1
            gelu_pk(A, [a0 + 2*i for i in range(4)], [32 + 8*pr + 2*i for i in range(4)], st, [64 + 2*i for i in range(4)], [o + i for i in range(4)])
            A(f"buffer_store_dwordx4 {v(o,4)}, v9, {WS}, s{29+pr} offen offset:{tb*1024} sc1")
        a0 = acc(tb, 6); o = 96 + 4 * (tb >> 1) + 2 * (tb & 1)
        gelu_pk(A, [a0, a0 + 2], [56, 58], st, [64, 66], [o, o + 1])
        if tb & 1:
            o = 96 + 4 * (tb >> 1)
            A(f"""s_nop 1
                  v_permlane16_swap_b32 v{o}, v{o+2}
                  v_permlane16_swap_b32 v{o+1}, v{o+3}
                  buffer_store_dwordx4 {v(o,4)}, v8, {WS}, s33 offen offset:{(tb>>1)*2048} sc1""")
    acc = lambda tb, nb: ACC + 4 * (tb * 4 + nb)
    A(f"""s_lshr_b32 s22, s17, 3
          s_lshl_b32 s3, s19, 12
          s_lshl_b32 s41, s22, 11
          s_add_u32 s3, s3, s41
          v_add_u32 v16, s3, v9
          v_xor_b32 v17, 2048, v16
          v_lshrrev_b32 v5, 2, v3
          v_and_b32 v6, 3, v3
          v_lshl_add_u32 v7, v4, 2, v5
          v_and_b32 v8, 7, v7
          v_lshlrev_b32 v7, 8, v7
          v_lshl_add_u32 v7, v6, 3, v7
          s_lshl_b32 s3, s20, 2
          v_xor_b32 v8, s3, v8
          v_lshl_add_u32 v18, v8, 5, v7
          v_xor_b32 v19, 32, v18
          v_xor_b32 v20, 64, v18
          v_xor_b32 v21, 96, v18
          s_mov_b32 s21, 0""")
    for i in range(6): A(f"v_add_u32 v{10+i}, 0x10000, v{16+i}")
    for i in range(0, 64, 2): A(f"v_mov_b64 {v(ACC+i,2)}, 0")
    xread = lambda sl, st, tb, dst: f"ds_read_b128 {v(dst,4)}, v{(10 if sl >> 1 else 16)+(tb>>1)} offset:{(sl&1)*S4 + st*8192 + (tb&1)*1024}"
    wread = lambda sl, st, nb, e, dst: f"ds_read_b64_tr_b16 {v(dst,2)}, v{(12 if sl >> 1 else 18)+nb} offset:{(sl&1)*S4 + 16384 + st*8192 + e*4096}"
    fstamp(A, "p4rdy")
    A("s_barrier")
    fstamp(A, "P4")
    A(f"s_add_u32 s48, s23, {F_H2}")
    A("s_mov_b32 s49, 1")
    def resid():
        try_flag(A, 48, block=True, lane=29)
        fstamp(A, "p4it4")
        A(f"""s_lshl_b32 s3, s19, 6
              s_lshl_b32 s42, s22, 5
              s_add_u32 s42, s42, s3
              s_lshl_b32 s29, s16, 18
              s_and_b32 s3, s17, 7
              s_lshl_b32 s3, s3, 15
              s_add_u32 s29, s29, s3
              s_lshl_b32 s3, s20, 14
              s_add_u32 s29, s29, s3
              s_lshl_b32 s3, s42, 6
              s_add_u32 s29, s29, s3
              s_add_u32 s29, s29, {WS_X1}
              s_add_u32 s30, s29, 8192""")
        for tb in range(2):
            A(f"buffer_load_dwordx4 {v(32+8*tb,4)}, v9, {WS}, s29 offen offset:{tb*1024} sc1")
            A(f"buffer_load_dwordx4 {v(36+8*tb,4)}, v9, {WS}, s30 offen offset:{tb*1024} sc1")
    gemm_loop(A, 4, [0, 1, 2, 3], 36, 4, 0, acc, XB, lambda p, nb: WB0 + 16*p + 4*nb, xread, wread, wdb=True, bar_gap=int(os.environ.get("BG4", "2")), name="p4c",
              peel={0: lambda: try_flag(A, 48, lane=29), 1: lambda: try_flag(A, 48, lane=29), 2: lambda: try_flag(A, 48, lane=29), 3: resid})
    A("C_p4end:")
    fstamp(A, "p4end")
    A(f"""s_lshl_b32 s3, s16, 4
          s_add_u32 s3, s3, s17
          s_lshl_b32 s29, s3, 14
          s_lshl_b32 s41, s18, 12
          s_add_u32 s29, s29, s41
          s_add_u32 s29, s29, {WS_EX}
          s_xor_b32 s30, s29, {8 << 14}
          s_lshl_b32 s31, s3, 9
          s_lshl_b32 s41, s18, 7
          s_add_u32 s31, s31, s41
          s_add_u32 s31, s31, {F_EX}
          s_xor_b32 s32, s31, {8 << 9}
          s_waitcnt lgkmcnt(0)""")
    for i in range(4):
        a0 = ACC + 32 + 8 * i
        pack(64 + 4 * i, a0, a0 + 4)
        A(f"buffer_store_dwordx4 {v(64+4*i,4)}, v9, {WS}, s29 offen offset:{i*1024} sc1")
    A(f"""s_lshl_b32 s3, s42, 2
          s_add_u32 s3, s3, {L_GT}
          v_lshl_add_u32 v5, v3, 2, s3
          ds_read_b32 v48, v5
          ds_read_b32 v49, v5 offset:64
          v_mov_b32 v8, 0xffff0000""")
    srd(A, 24, P_OUT, P_OUT + 1, S * D * 2)
    A(f"""s_waitcnt lgkmcnt(0) vmcnt(4)
          v_sub_f32 v48, 1.0, v48
          v_sub_f32 v49, 1.0, v49
          v_cvt_pk_bf16_f32 v48, v48, v48
          v_cvt_pk_bf16_f32 v49, v49, v49
          v_and_b32 v48, v8, v48
          v_and_b32 v49, v8, v49""")
    for tb in range(2):
        for nb in range(4):
            a = ACC + 4 * (tb * 4 + nb); xr = 32 + 8 * tb + 2 * nb
            A(f"""v_lshlrev_b32 v22, 16, v{xr}
                  v_and_b32 v23, v8, v{xr}
                  v_lshlrev_b32 v24, 16, v{xr+1}
                  v_and_b32 v25, v8, v{xr+1}
                  v_pk_fma_f32 {v(a,2)}, v[22:23], v[48:49], {v(a,2)} op_sel:[0,{tb},0] op_sel_hi:[1,{tb},1]
                  v_pk_fma_f32 {v(a+2,2)}, v[24:25], v[48:49], {v(a+2,2)} op_sel:[0,{tb},0] op_sel_hi:[1,{tb},1]""")
    A("s_waitcnt vmcnt(0)")
    flag_store(A, 31)
    fstamp(A, "exflag")
    ld = lambda: A(f"buffer_load_dword v20, off, {WS}, s32 sc1")
    ld()
    A(f"""v_lshlrev_b32 v5, 11, v3
          v_and_b32 v6, 1, v4
          v_lshl_add_u32 v5, v6, 5, v5
          v_lshrrev_b32 v6, 1, v4
          v_lshl_add_u32 v5, v6, 4, v5
          s_lshl_b32 s41, s16, 7
          s_add_u32 s41, s41, s42
          s_lshl_b32 s41, s41, 11
          s_and_b32 s3, s17, 7
          s_lshl_b32 s3, s3, 8
          s_add_u32 s41, s41, s3
          s_lshl_b32 s3, s20, 7
          s_add_u32 s41, s41, s3
          s_add_u32 s43, s41, {16*2048}
          s_waitcnt vmcnt(0)""")
    spin_until(A, lambda: A("v_cmp_ne_u32 vcc, s12, v20"), ld, "ex")
    for i in range(4): A(f"buffer_load_dwordx4 {v(64+4*i,4)}, v9, {WS}, s30 offen offset:{i*1024} sc1")
    fstamp(A, "exok")
    for i in range(4):
        tb, pr = i >> 1, i & 1
        a0 = ACC + 8 * i; o = 96 + 4 * i
        A("s_waitcnt vmcnt(3)")
        for k in range(4):
            A(f"""v_lshlrev_b32 v22, 16, v{64+4*i+k}
                  v_and_b32 v23, v8, v{64+4*i+k}
                  v_pk_add_f32 {v(a0+2*k,2)}, {v(a0+2*k,2)}, v[22:23]""")
        pack(o, a0, a0 + 4)
        A(f"""s_nop 1
              v_permlane16_swap_b32 v{o}, v{o+2}
              v_permlane16_swap_b32 v{o+1}, v{o+3}
              buffer_store_dwordx4 {v(o,4)}, v5, s[24:27], s{41 if tb == 0 else 43} offen offset:{pr*64}{os.environ.get("OUTF", "")}""")
    fstamp(A, "stored")
    if PROF: A("s_waitcnt vmcnt(0)")
    fstamp(A, "drained")
    fstamp_flush(A, 0)
    if "diag" in EXP:
        Ld = A.label("diag")
        A(f"""s_waitcnt vmcnt(0)
              s_memrealtime s[96:97]
              s_memtime s[98:99]
              s_or_b32 s3, s2, s18
              s_cmp_lg_u32 s3, 0
              s_cbranch_scc1 {Ld}
              s_waitcnt lgkmcnt(0)
              s_sub_u32 s96, s96, s92
              s_sub_u32 s98, s98, s94
              v_mov_b32 v4, s96
              v_mov_b32 v5, s98""")
        srd(A, 24, P_DBG, P_DBG + 1, 256)
        A("buffer_store_dwordx2 v[4:5], off, s[24:27], 0 offset:16")
        A(f"{Ld}:")
    A("s_endpgm")
    A("C_slow:")
    A(f"{Lslow}:")
    A("s_waitcnt lgkmcnt(0)")
    for i in range(0, 40, 2): A(f"v_mov_b64 {v(128+i,2)}, 0")
    A(f"""v_mov_b32 v14, 0xff7fffff
          v_mov_b32 v15, 0xff7fffff
          s_lshl_b32 s41, s17, 19
          s_lshl_b32 s3, s20, 14
          s_add_u32 s41, s41, s3
          s_add_u32 s41, s41, {WS_KV}
          s_mov_b32 s40, 64""")
    Ls = A.label("sloop")
    A(f"{Ls}:")
    for b in range(2): A(f"buffer_load_dwordx4 {v(KB(0,b),4)}, v{VL16}, {WS}, s41 offen offset:{b*1024} sc1")
    for b in range(2): A(f"buffer_load_dwordx4 {v(VB(0,b),4)}, v{VL16}, {WS}, s41 offen offset:{2048 + b*1024} sc1")
    A("s_waitcnt vmcnt(0)")
    for q in range(2):
        for it in qk(q): A(it.text)
    A("s_nop 15")
    for q in range(2):
        d = SB(q); m = 14 + q
        A(f"v_max3_f32 v6, v{d}, v{d+1}, v{m}")
        for i in range(2, 16, 2): A(f"v_max3_f32 v6, v{d+i}, v{d+i+1}, v6")
        A(f"""v_mov_b32 v5, v6
              s_nop 1
              v_permlane32_swap_b32 v5, v6
              s_nop 1
              v_max_f32 v6, v6, v5
              v_sub_f32 v5, v{m}, v6
              v_exp_f32 v5, v5
              v_mov_b32 v{m}, v6""")
        for i in range(16): A(f"v_sub_f32 v{d+i}, v{d+i}, v6")
        for i in range(16): A(f"v_exp_f32 v{d+i}, v{d+i}")
        for i in range(16): A(f"v_mul_f32 v{O(q)+i}, v{O(q)+i}, v5")
        for i in range(4): A(f"v_mul_f32 v{Lr(q)+i}, v{Lr(q)+i}, v5")
        A("s_nop 1")
        for it in pv(q, False): A(it.text)
    A(f"""s_nop 15
          s_sub_u32 s40, s40, 1
          s_and_b32 s3, s40, 3
          s_cmp_eq_u32 s3, 0
          s_cselect_b32 s3, 16384, 0
          s_add_u32 s41, s41, s3
          s_add_u32 s41, s41, 4096
          s_cmp_lg_u32 s40, 0
          s_cbranch_scc1 {Ls}
          s_branch {Lfin}""")
```

```python
from dsl import *
import os
EXP = os.environ.get('EXP', '').split(',')
S, D, H, DH, F = 2048, 1024, 32, 32, 3584
KA_X, KA_WQKV, KA_WO, KA_BX, KA_W1, KA_W2, KA_W3, KA_W4, KA_G, KA_OUT, KA_DBG, KA_WS = [8*i for i in range(12)]
WS_Q   = 0x0000000
WS_KV  = 0x0400000
WS_H1  = 0x0C00000
WS_X1  = 0x1000000
WS_HO  = 0x1400000
HO_PANEL = 144 * 8192
WS_G   = 0x2600000
WS_ST  = 0x2610000
WS_CS3 = 0x2700000
WS_ST1 = 0x2660000
WS_CS1 = 0x26A0000
WS_FLAG = 0x2680000
WS_EX  = 0x2800000
F_KV = 0x2C00000
F_EX = 0x2C40000
F_H1 = 0x2C60000
F_X1 = 0x2C80000
F_O  = 0x2CA0000
F_H2 = 0x2CC0000
WS_END = 0x3000000

GELU_C0 = -2.0 * 1.4426950408889634 * 0.7978845608028654
GELU_C1 = GELU_C0 * 0.044715

def kernel_header(A, name):
    A.lines.append(f".p2align 8")
    A.lines.append(f".globl {name}")
    A.lines.append(f".type {name},@function")
    A.lines.append(f"{name}:")

def kernel_desc(name, vgpr, sgpr=96):
    acc = (vgpr + 3) // 4 * 4
    return f""".p2align 6
.amdhsa_kernel {name}
  .amdhsa_next_free_vgpr {vgpr}
  .amdhsa_next_free_sgpr {sgpr}
  .amdhsa_accum_offset {acc}
  .amdhsa_group_segment_fixed_size 0
  .amdhsa_kernarg_size 96
  .amdhsa_user_sgpr_count 2
  .amdhsa_user_sgpr_kernarg_segment_ptr 1
  .amdhsa_system_sgpr_workgroup_id_x 1
  .amdhsa_float_denorm_mode_32 {0 if "nodenorm" in EXP else 3}
.end_amdhsa_kernel
"""

def gelu(A, regs, tmp, sC0, sC1):
    n = len(regs)
    for r, t in zip(regs, tmp): A(f"v_mul_f32 v{t}, v{r}, v{r}")
    for r, t in zip(regs, tmp): A(f"v_fma_f32 v{t}, v{t}, s{sC1}, v{sC0}")
    for r, t in zip(regs, tmp): A(f"v_mul_f32 v{t}, v{t}, v{r}")
    for r, t in zip(regs, tmp): A(f"v_exp_f32 v{t}, v{t}")
    if n < 2: A("s_nop 0")
    for r, t in zip(regs, tmp): A(f"v_add_f32 v{t}, 1.0, v{t}")
    for r, t in zip(regs, tmp): A(f"v_rcp_f32 v{t}, v{t}")
    if n < 2: A("s_nop 0")
    for r, t in zip(regs, tmp): A(f"v_mul_f32 v{r}, v{r}, v{t}")

def compute_loop(A, NT, NN, KS, T, acc, XB, WB, xread, wread, advance, swapped=(), bar_after=2, sCnt=40, name="c", every_step=False, once=None, nbs=None, skip_pre=False, unroll=None):
    assert KS % 2 == 0
    if nbs is None: nbs = list(range(NN))
    pre = []
    for tb in range(NT): pre.append(Item(xread(0, tb, XB(0, tb)), gives=("X", 0, tb)))
    for nb in nbs:
        for e in range(2): pre.append(Item(wread(0, nb, e, WB(nb) + 2*e), gives=("W", nb, e)))
    if skip_pre: A("s_waitcnt lgkmcnt(0)")
    else:
        for it in pre: A(it.text)
    body = []
    for st in range(KS):
        p = st & 1
        last = st == KS - 1 or every_step
        fin = st == KS - 1
        nst = (st + 1) % KS
        pend = []
        xq = [Item(xread(nst, tb, XB(1 - p, tb)), gives=("X", 1 - p, tb)) for tb in range(NT)]
        adv = [Item(t) for t in advance()] if last else []
        tail = [Item(f"s_sub_u32 s{sCnt}, s{sCnt}, 1"), Item(f"s_cmp_lg_u32 s{sCnt}, 0")] if fin and unroll is None else []
        for ni, nb in enumerate(nbs):
            for tb in (range(NT) if ni % 2 == 0 or "nosnake" in EXP else reversed(range(NT))):
                a = acc(tb, nb)
                if nb in swapped:
                    txt = f"v_mfma_f32_16x16x32_bf16 {v(a,4)}, {v(XB(p,tb),4)}, {v(WB(nb),4)}, {v(a,4)}"
                else:
                    txt = f"v_mfma_f32_16x16x32_bf16 {v(a,4)}, {v(WB(nb),4)}, {v(XB(p,tb),4)}, {v(a,4)}"
                body.append(Item(txt, needs=[("X", p, tb), ("W", nb, 0), ("W", nb, 1)]))
                if last and ni < bar_after:
                    if adv: body.append(adv.pop(0))
                elif pend: body.append(pend.pop(0))
                elif xq: body.append(xq.pop(0))
                elif tail: body.append(tail.pop(0))
            pend += [Item(wread(nst, nb, e, WB(nb) + 2*e), gives=("W", nb, e)) for e in range(2)]
            if last and ni == bar_after - 1:
                for it in adv: body.append(it)
                body.append(Item("s_barrier", drain=True))
        for it in xq + pend + tail: body.append(it)
    lines = insert_lgkm_waits(pre, body, maxcnt=6)
    if unroll is not None:
        for ex in unroll:
            k = 0
            for l in lines:
                A(l)
                if l.startswith("v_mfma"):
                    if k in ex: A(ex[k])
                    k += 1
        return
    L = A.label(name + "loop")
    A(f"s_mov_b32 s{sCnt}, {T if once is None else once[0]}")
    if once is not None: A(f"s_mov_b32 s{sCnt+1}, {T - once[0]}")
    A(f"{L}:")
    for l in lines:
        if "noread" in EXP and l.startswith("ds_read"): continue
        if "nomfma" in EXP and l.startswith("v_mfma"): continue
        A(l)
    A(f"s_cbranch_scc1 {L}")
    if once is not None:
        Lx = A.label(name + "exit")
        A(f"s_cmp_eq_u32 s{sCnt+1}, 0")
        A(f"s_cbranch_scc1 {Lx}")
        once[1]()
        A(f"s_mov_b32 s{sCnt}, s{sCnt+1}")
        A(f"s_mov_b32 s{sCnt+1}, 0")
        A(f"s_branch {L}")
        A(f"{Lx}:")

import os
PROF = int(os.environ.get("PROF", "0"))
WS_PROF = 0x2780000
def stamp(A, i):
    if not PROF: return
    A(f"s_memrealtime s[{64+4*i}:{65+4*i}]")
    A(f"s_memtime s[{66+4*i}:{67+4*i}]")
def stamp_flush(A, kidx, n, wslo, wshi, role=0):
    if not PROF: return
    A("s_waitcnt lgkmcnt(0)")
    srd(A, 56, wslo, wshi, WS_END)
    for i in range(n):
        A(f"v_mov_b32 v{2+2*i}, s{64+4*i}")
        A(f"v_mov_b32 v{3+2*i}, s{66+4*i}")
    A(f"s_lshl_b32 s60, s2, 7")
    A(f"s_add_u32 s60, s60, {WS_PROF + kidx*65536 + role*64}")
    A("v_mov_b32 v1, 0")
    A("s_mov_b64 exec, 1")
    for i in range(n):
        A(f"buffer_store_dwordx2 v[{2+2*i}:{3+2*i}], v1, s[56:59], s60 offen offset:{8*i}")

STF = os.environ.get("STF", " sc1")
def touch_linear(A, srdreg, nbytes, vaddr, vdummy, swave, nwaves_total_log2, sidx, stmp):
    per = 8192 << nwaves_total_log2
    n = -(-nbytes // per)
    A(f"s_lshl_b32 s{stmp}, s{sidx}, 13")
    for i in range(n):
        A(f"buffer_load_dword v{vdummy}, v{vaddr}, s[{srdreg}:{srdreg+3}], s{stmp} offen")
        if i < n - 1: A(f"s_add_u32 s{stmp}, s{stmp}, {per}")

OOB = 0x7ffffff0
def gelu_pk(A, zs, css, st, tmps, outs):
    p = lambda r: v(r, 2)
    for z, c in zip(zs, css): A(f"v_pk_fma_f32 {p(z)}, {p(c)}, {p(st)}, {p(z)} op_sel_hi:[1,0,1] neg_lo:[0,1,0] neg_hi:[0,1,0]")
    for z, t in zip(zs, tmps): A(f"v_pk_mul_f32 {p(t)}, {p(z)}, {p(z)}")
    for z, t in zip(zs, tmps): A(f"v_pk_fma_f32 {p(t)}, {p(t)}, {p(st+2)}, {p(st)} op_sel:[0,0,1] op_sel_hi:[1,0,1]")
    for z, t in zip(zs, tmps): A(f"v_pk_mul_f32 {p(t)}, {p(t)}, {p(z)}")
    for t in tmps[:len(zs)]:
        A(f"v_exp_f32 v{t}, v{t}"); A(f"v_exp_f32 v{t+1}, v{t+1}")
    for z, t in zip(zs, tmps): A(f"v_pk_fma_f32 {p(t)}, {p(t)}, {p(st+2)}, {p(st+2)} op_sel:[0,1,1] op_sel_hi:[1,1,1]")
    for t in tmps[:len(zs)]:
        A(f"v_rcp_f32 v{t}, v{t}"); A(f"v_rcp_f32 v{t+1}, v{t+1}")
    for z, t in zip(zs, tmps): A(f"v_pk_mul_f32 {p(z)}, {p(z)}, {p(t)}")
    for z, o in zip(zs, outs): A(f"v_cvt_pk_bf16_f32 v{o}, v{z}, v{z+1}")

def ln_consts(A, b, tmp, wreg=None):
    A(f"""v_fma_f32 v{b+1}, -v{b}, v{b}, v{b+1}
          v_max_f32 v{b+1}, 0, v{b+1}
          v_add_f32 v{b+1}, {hexf(1e-5)}, v{b+1}
          v_rsq_f32 v{tmp}, v{b+1}
          v_sqrt_f32 v{b+3}, v{b+1}""")
    if wreg is not None: A(f"v_rcp_f32 v{wreg}, v{wreg}")
    A(f"""v_mul_f32 v{b+2}, v{tmp}, v{tmp}
          v_mul_f32 v{b+1}, {hexf(GELU_C0)}, v{tmp}
          v_mul_f32 v{b+2}, v{b+2}, v{tmp}
          v_mul_f32 v{b+2}, {hexf(GELU_C1)}, v{b+2}""")
    if wreg is not None: A(f"v_mul_f32 v{b+3}, v{b+3}, v{wreg}")

def spin_until(A, check, reload, name):
    Lok = A.label(name + "ok"); Lsp = A.label(name + "sp")
    A("s_mov_b32 s62, 0x8000")
    A(f"{Lsp}:")
    check()
    A(f"""s_cbranch_vccz {Lok}
          s_sub_u32 s62, s62, 1
          s_cmp_eq_u32 s62, 0
          s_cbranch_scc1 {Lok}
          s_sleep {os.environ.get("SLP", "8")}""")
    reload()
    A("s_waitcnt vmcnt(0)")
    A(f"s_branch {Lsp}")
    A(f"{Lok}:")

def interleave(A, main, fill):
    n = sum(1 for l in main if "buffer_load_dwordx4" in l)
    k = 0; done = 0
    for l in main:
        A.lines.append(l)
        if "buffer_load_dwordx4" in l:
            k += 1
            e = len(fill) * k // n
            A.lines += fill[done:e]; done = e

class VM:
    def __init__(self, A): self.A = A; self.log = []
    def op(self, text, tag=None):
        for l in text.split("\n"):
            l = l.strip()
            if not l: continue
            self.A(l)
            if l.startswith("buffer_"): self.log.append(tag)
    def note(self, n, tag): self.log += [tag] * n
    def count(self, *tags):
        idx = max(i for i, t in enumerate(self.log) if t in tags)
        return len(self.log) - 1 - idx
    def wait(self, *tags, lg=False):
        self.A(f"s_waitcnt vmcnt({self.count(*tags)})" + (" lgkmcnt(0)" if lg else ""))

STAMPS = {0: ["entry"], 1: ["entry"]}
ROLE = [0]
def fstamp(A, name):
    if not PROF: return
    lst = STAMPS[ROLE[0]]
    i = len(lst); lst.append(str(name))
    assert i < 32
    A("s_memrealtime s[96:97]")
    A("s_memtime s[98:99]")
    A("s_waitcnt lgkmcnt(0)")
    A(f"v_writelane_b32 v62, s96, {i}")
    A(f"v_writelane_b32 v63, s98, {i}")
    if i == 1:
        A(f"v_writelane_b32 v62, s92, 0")
        A(f"v_writelane_b32 v63, s94, 0")
def fstamp_flush(A, role):
    if not PROF: return
    A(f"""s_lshl_b32 s3, s2, 9
          s_add_u32 s3, s3, {WS_PROF + role*256}
          v_lshlrev_b32 v1, 3, v2
          s_mov_b32 exec_hi, 0
          buffer_store_dwordx2 v[62:63], v1, s[4:7], s3 offen""")

def code_touch(A, lab_from, lab_to, n, vaddr=58, vdummy=60, stmp=90, lanereg=2, swave=18):
    if "notouch" in EXP: return 0
    Lh = A.label("pc")
    A(f"s_getpc_b64 s[{stmp}:{stmp+1}]")
    A(f"{Lh}:")
    A(f"""s_add_u32 s{stmp}, s{stmp}, {lab_from}-{Lh}
          s_addc_u32 s{stmp+1}, s{stmp+1}, 0
          v_lshl_add_u32 v{vaddr}, v{lanereg}, 2, s{swave}
          v_lshlrev_b32 v{vaddr}, 7, v{vaddr}
          v_min_u32 v{vaddr}, {lab_to}-{lab_from}-4, v{vaddr}
          v_mov_b32 v{vaddr+1}, s{stmp+1}
          v_add_co_u32 v{vaddr}, vcc, s{stmp}, v{vaddr}
          s_nop 1
          v_addc_co_u32 v{vaddr+1}, vcc, 0, v{vaddr+1}, vcc
          global_load_dword v{vdummy}, v[{vaddr}:{vaddr+1}], off""")
    return 1

def gemm_loop(A, NT, nbs, T, NS, slot0, acc, XB, WB, xread, wread, swapped=(), wdb=False, bar_gap=6, sCnt=40, name="g", hooks=None, maxcnt=5, peel=None, skip_pre=False, seq=None, eager=False):
    NN = len(nbs)
    wp = (lambda p: p) if wdb else (lambda p: 0)
    def rdX(slot, st, tb): return Item(xread(slot, st, tb, XB(st, tb)), gives=("X", st, tb))
    def rdW(slot, st, nb): return [Item(wread(slot, st, nb, e, WB(wp(st), nb) + 2*e), gives=("W", wp(st), nb, e)) for e in range(2)]
    def order(ni): return list(range(NT)) if ni % 2 == 0 else list(reversed(range(NT)))
    def stage(slot, carry, tail):
        nxt = (slot + 1) % NS
        out = []
        q = list(carry)
        for st in range(2):
            sl, ns = (slot, 1) if st == 0 else (nxt, 0)
            first = rdW(sl, ns, nbs[0]) if wdb else []
            xs = [rdX(sl, ns, tb) for tb in range(NT)]
            rest = [it for nb in nbs[1:] for it in rdW(sl, ns, nb)] if wdb else []
            held = first + xs + rest
            if st == 0: q += held; held = []
            g = 0
            for ni, nb in enumerate(nbs):
                for tb in order(ni):
                    a = acc(tb, nb); w = v(WB(wp(st), nb), 4); x = v(XB(st, tb), 4)
                    o = (x, w) if nb in swapped else (w, x)
                    out.append(Item(f"v_mfma_f32_16x16x32_bf16 {v(a,4)}, {o[0]}, {o[1]}, {v(a,4)}",
                                    needs=[("X", st, tb), ("W", wp(st), nb, 0), ("W", wp(st), nb, 1)]))
                    if tb == order(ni)[-1] and not wdb:
                        new = rdW(sl, ns, nb)
                        if st == 1 and g < bar_gap: held = (new + held) if ni == 0 else (held + new)
                        elif ni == 0: q = q[:0] + [z for z in q if z.gives[0] == "W"] + new + [z for z in q if z.gives[0] != "W"]
                        else: q += new
                    if st == 1 and g == bar_gap - 1 and not q:
                        out.append(Item(";drain", drain=True))
                    if st == 1 and g == bar_gap:
                        assert not q, "reads of the current slot still pending at the barrier"
                        out.append(Item("s_barrier", drain=True))
                        q = held; held = []
                    else:
                        left = NT * NN - g
                        n = 2 if (eager or len(q) > left + 1) else 1
                        if q:
                            for _ in range(min(n, len(q))): out.append(q.pop(0))
                        elif st == 1 and g > bar_gap and tail: out.append(tail.pop(0))
                    g += 1
        out += tail
        return out, q
    pre = rdW(slot0, 0, nbs[0]) + [rdX(slot0, 0, tb) for tb in range(NT)] + [it for nb in nbs[1:] for it in rdW(slot0, 0, nb)]
    _, c = stage((slot0 - 1) % NS, [], [])
    ncar = len(c)
    carry0 = pre[len(pre) - ncar:] if ncar else []
    assert [z.text for z in carry0] == [z.text for z in c], (c, carry0)
    pre = pre[:len(pre) - ncar]
    if skip_pre: A("s_waitcnt lgkmcnt(0)")
    else:
        for it in pre: A(it.text)
    body = []; carry = carry0; marks = []
    for k in range(NS):
        tail = [Item(f"s_sub_u32 s{sCnt}, s{sCnt}, 1"), Item(f"s_cmp_lg_u32 s{sCnt}, 0")] if k == NS - 1 else []
        o, carry = stage((slot0 + k) % NS, carry, tail)
        body += o; body.append(Item(f";stage{k}"))
    lines = insert_lgkm_waits(pre, body, maxcnt=maxcnt)
    n = T // NS; rem = T % NS
    if seq is not None:
        k = 0; past = False
        while k < T:
            for l in lines:
                if l.startswith(";stage"):
                    if k in seq: seq[k]()
                    k += 1
                    if k == T: break
                elif k == T - 1 and (l == "s_barrier" or past): past = True; A(l) if l.startswith("v_mfma") else None
                elif not l.startswith((";", f"s_sub_u32 s{sCnt},", f"s_cmp_lg_u32 s{sCnt},")): A(l)
        return
    if peel is not None:
        for l in lines:
            if l.startswith(";stage"):
                k = int(l[6:])
                if k in peel: peel[k]()
            elif not l.startswith((";", f"s_sub_u32 s{sCnt},", f"s_cmp_lg_u32 s{sCnt},")): A(l)
        n -= 1
    hooks = hooks or {}
    L = A.label(name + "loop")
    segs = sorted(h // NS for h in hooks); assert all(h % NS == 0 for h in hooks) and len(segs) <= 1
    A(f"s_mov_b32 s{sCnt}, {segs[0] if segs else n}")
    if segs: A(f"s_mov_b32 s{sCnt+1}, {n - segs[0]}")
    A(f"{L}:")
    for l in lines:
        if not l.startswith(";"): A(l)
    A(f"s_cbranch_scc1 {L}")
    if segs:
        Lx = A.label(name + "exit")
        A(f"s_cmp_eq_u32 s{sCnt+1}, 0")
        A(f"s_cbranch_scc1 {Lx}")
        hooks[segs[0] * NS]()
        A(f"s_mov_b32 s{sCnt}, s{sCnt+1}")
        A(f"s_mov_b32 s{sCnt+1}, 0")
        A(f"s_branch {L}")
        A(f"{Lx}:")
    if rem:
        for l in lines:
            if l == f";stage{rem-1}": break
            if not l.startswith(";"): A(l)
```

```python
from common import *
from k1 import job_stats as _js, job_gate as _jg
import k1
NAME = "gated_mix__softmax_full_mha__mixer_s_mlp__prompt_kernel"
P_X, P_WQKV, P_WO, P_BX, P_W1, P_W2, P_W3, P_W4, P_G, P_OUT, P_DBG, P_WS = [64 + 2*i for i in range(12)]
QSCALE = (DH ** -0.5) * 1.4426950408889634
S1 = 49152
L_MISC = 155648
L_ST = L_MISC
L_CS = L_ST + 2048
L_GT = L_CS + 1024
L_NON = L_GT + 512
L_JOB = L_NON + 64
LDS_BYTES = 163840
k1.L_JOB = L_JOB
KVS = 32768
kvslot = lambda st: ((st + 1) % 3) * KVS
L_W2W = 98304
L_XR = 131072
L_C3 = 147456
S3 = 45056; L3 = 20480
S4 = 32768
WOFF = int(os.environ.get("WOFF", "2"))
WS = "s[4:7]"
DL = int(os.environ.get("DL", "3"))
L_EX = 131072
R2T, R2P = [int(x) for x in os.environ.get("ROT2", "0,0").split(",")]
MS = int(os.environ.get("MS", "0"))
FS = int(os.environ.get("FS", "2"))
dppadd = lambda r, sh: f"v_add_f32_dpp v{r}, v{r}, v{r} row_ror:{sh} row_mask:0xf bank_mask:0xf"

def flag_store(A, soff_sreg, vtmp=1):
    A(f"""v_mov_b32 v{vtmp}, s12
          s_mov_b64 exec, 1
          buffer_store_dword v{vtmp}, off, {WS}, s{soff_sreg} sc1
          s_mov_b64 exec, -1""")

def gen(A):
    kernel_header(A, NAME)
    Lend = A.label("end"); Lcomp = A.label("comp")
    A(f"s_cmp_ge_u32 s2, 256")
    A(f"s_cbranch_scc1 {Lend}")
    if PROF or "diag" in EXP:
        A("s_memrealtime s[92:93]"); A("s_memtime s[94:95]")
    A("s_load_dwordx16 s[64:79], s[0:1], 0")
    A("s_load_dwordx8 s[80:87], s[0:1], 64")
    A("""v_lshrrev_b32 v1, 6, v0
         v_and_b32 v2, 63, v0
         """ + ("s_lshr_b32 s14, s2, 5" if "badmap" in EXP else "s_and_b32 s14, s2, 7") + """
         v_readfirstlane_b32 s18, v1
         """ + ("s_and_b32 s15, s2, 31" if "badmap" in EXP else "s_lshr_b32 s15, s2, 3") + """
         s_and_b32 s16, s14, 1
         s_lshl_b32 s16, s16, 3
         s_and_b32 s3, s15, 7
         s_add_u32 s16, s16, s3
         s_lshr_b32 s17, s14, 1
         s_lshl_b32 s17, s17, 2
         s_lshr_b32 s3, s15, 3
         s_add_u32 s17, s17, s3""")
    A(f"""s_add_u32 s13, s17, {WOFF}
          s_and_b32 s13, s13, 15""")
    A("s_cmp_lt_u32 s18, 4")
    A(f"s_cbranch_scc1 {Lcomp}")
    helper(A)
    A(f"{Lend}:")
    A("s_endpgm")
    A("H_end:")
    A(f"{Lcomp}:")
    compute(A)
    return dict(name=NAME, grid=256, block=512, lds=LDS_BYTES, vgpr=256)

def helper(A):
    ROLE[0] = 1
    A("s_sub_u32 s18, s18, 4")
    if PROF: A("v_mov_b64 v[62:63], 0")
    A(f"""v_lshrrev_b32 v3, 3, v2
          v_and_b32 v4, 7, v2
          v_lshrrev_b32 v5, 1, v3
          v_xor_b32 v5, v5, v4
          s_lshl_b32 s3, s16, 7
          s_lshl_b32 s36, s18, 5
          s_add_u32 s3, s3, s36
          v_add_u32 v6, s3, v3
          v_lshlrev_b32 v6, 11, v6
          v_lshl_add_u32 v10, v5, 4, v6
          v_xor_b32 v11, 64, v10
          v_add_u32 v11, {8*2048 - 1024}, v11
          v_add_u32 v12, {16*2048 - 2048}, v10
          v_add_u32 v13, {16*2048 - 2048}, v11""")
    ra, rb = [int(x) for x in os.environ.get("ROT1", "1,1").split(",")]
    A(f"""s_mov_b32 s31, 0x20000
          s_lshl_b32 s37, s18, 12
          s_mul_i32 s52, s16, {ra}
          s_mul_i32 s3, s17, {rb}
          s_add_u32 s52, s52, s3
          s_and_b32 s52, s52, 15
          s_mov_b32 s55, s18
          s_mov_b32 s53, 0""")
    def wsetup(A, first=False):
        A(f"""s_lshl_b32 s3, s55, 11
              s_mov_b32 s30, {D*3*D*2}
              s_mov_b32 s32, 6144
              s_cmp_eq_u32 s55, 3
              s_cselect_b32 s30, {D*D*2}, s30
              s_cselect_b32 s32, 2048, s32
              s_cselect_b32 s33, 0, s3
              s_cselect_b32 s3, s13, s17
              s_lshl_b32 s3, s3, 7
              s_add_u32 s33, s33, s3
              s_lshl_b32 s34, s32, 4
              s_lshl_b32 s35, s32, 6
              s_lshl_b32 s38, s55, 13
              s_add_u32 s38, s38, 16384""")
        if not first:
            A("""s_lshl_b32 s3, s53, 12
                 s_add_u32 s38, s38, s3
                 s_mul_i32 s3, s53, s34
                 s_lshl_b32 s3, s3, 1
                 s_add_u32 s33, s33, s3""")
        A("""v_and_b32 v14, 2, v3
             v_and_b32 v15, 7, v2
             v_xor_b32 v14, v14, v15
             v_mul_lo_u32 v15, v3, s32
             v_lshl_add_u32 v14, v14, 4, v15
             s_lshl_b32 s3, s32, 3
             s_sub_u32 s3, s3, 1024
             v_xor_b32 v15, 64, v14
             v_add_u32 v15, s3, v15""")
        if first: A("s_waitcnt lgkmcnt(0)")
        A(f"""s_cmp_eq_u32 s55, 3
              s_cselect_b32 s28, s{P_W1}, s{P_WQKV}
              s_cselect_b32 s29, s{P_W1+1}, s{P_WQKV+1}
              s_and_b32 s29, s29, 0xffff""")
    wsetup(A, True)
    srd(A, 24, P_X, P_X + 1, S * D * 2)
    def issue(slot, mid=None, A=A, ng=4):
        A(f"s_add_u32 m0, s37, {slot}")
        A("s_lshl_b32 s39, s52, 7")
        for i in range(4):
            A(f"buffer_load_dwordx4 v{10+i}, s[24:27], s39 offen offset:{i*1024} lds")
        if mid: mid()
        A(f"s_add_u32 s45, s38, {slot}")
        A("s_mul_i32 s41, s52, s35")
        A("s_add_u32 s41, s41, s33")
        for i in range(ng):
            A(f"s_add_u32 m0, s45, {i*2048}")
            if i: A("s_add_u32 s41, s41, s34")
            else: A("s_add_u32 s52, s52, 1")
            A(f"buffer_load_dwordx4 v14, s[28:31], s41 offen lds")
            A(f"buffer_load_dwordx4 v15, s[28:31], s41 offen offset:1024 lds")
        A("s_and_b32 s52, s52, 15")
    fstamp(A, "start")
    issue(0)
    def barP():
        A("s_waitcnt vmcnt(4)")
        A("s_barrier")
    issue(S1, barP)
    slot = lambda t: (t % 3) * S1
    def endit(n, lg=False):
        A(f"s_waitcnt vmcnt({n})" + (" lgkmcnt(0)" if lg else ""))
        A("s_barrier")
    issue(slot(2))
    A(f"""s_lshl_b32 s46, s16, 7
          s_lshl_b32 s3, s17, 3
          s_add_u32 s46, s46, s3
          s_lshl_b32 s3, s18, 1
          s_add_u32 s46, s46, s3
          s_lshl_b32 s46, s46, 11
          v_lshlrev_b32 v8, 4, v2
          v_lshlrev_b32 v5, 11, v3
          v_lshl_add_u32 v7, v4, 4, v5
          s_lshl_b32 s47, s16, 17
          s_lshl_b32 s3, s17, 7
          s_add_u32 s47, s47, s3
          s_lshl_b32 s3, s18, 15
          s_add_u32 s47, s47, s3
          s_add_u32 s42, s47, 16384
          v_mov_b32 v9, 0xffff0000
          v_lshrrev_b32 v4, 4, v2""")
    srd(A, 8, P_G, P_G + 1, D * 2)
    srd(A, 20, P_W1, P_W1 + 1, D * D * 2)
    endit(12)
    A("""buffer_load_dwordx4 v[64:67], v8, s[24:27], s46 offen
         buffer_load_dwordx4 v[68:71], v8, s[24:27], s46 offen offset:1024
         buffer_load_dwordx4 v[72:75], v8, s[24:27], s46 offen offset:2048
         buffer_load_dwordx4 v[76:79], v8, s[24:27], s46 offen offset:3072
         buffer_load_dwordx4 v[80:83], v8, s[8:11], 0 offen
         buffer_load_dwordx4 v[84:87], v8, s[8:11], 0 offen offset:1024
         buffer_load_dwordx4 v[88:91], v7, s[20:23], s47 offen
         buffer_load_dwordx4 v[92:95], v7, s[20:23], s42 offen""")
    issue(slot(3))
    endit(20)
    srd(A, 8, P_DBG, P_DBG + 1, 256)
    A("buffer_load_dword v19, off, s[8:11], 0 sc1")
    issue(slot(4))
    srd(A, 4, P_WS, P_WS + 1, WS_END)
    A(f"""s_lshl_b32 s19, s16, 4
          s_add_u32 s19, s19, s17
          s_lshl_b32 s21, s19, 7
          s_add_u32 s21, s21, {WS_ST1}
          s_mov_b32 s22, 8
          s_mov_b32 s23, {L_JOB}
          s_lshl_b32 s3, s19, 9
          s_add_u32 s3, s3, {WS_CS1}
          s_cmp_eq_u32 s18, 1
          s_cselect_b32 s21, s3, s21
          s_cselect_b32 s22, 32, s22
          s_cselect_b32 s23, {L_JOB + 256}, s23
          s_cselect_b32 s54, -1, 0
          s_cmp_ge_u32 s18, 2
          s_cselect_b32 s22, 0, s22
          v_and_b32 v5, 31, v2
          v_lshl_add_u32 v17, v5, 3, s23
          v_cmp_gt_u32 vcc, s22, v2
          v_mov_b32 v5, {OOB}
          s_nop 0
          v_cndmask_b32 v16, v5, v8, vcc""")
    endit(12)
    spin_until(A, lambda: A("v_cmp_eq_u32 vcc, 0, v19"), lambda: A("buffer_load_dword v19, off, s[8:11], 0 sc1"), "nonce")
    A("v_readfirstlane_b32 s12, v19")
    fstamp(A, "p1j2")
    J = Asm(); _js(J)
    n = len(J.lines); cuts = [0, n // 3, 2 * n // 3, n]
    for c in range(3):
        I = Asm(); issue(slot(5 + c), None, I)
        interleave(A, I.lines, J.lines[cuts[c]:cuts[c+1]])
        endit(12, c == 2)
    fstamp(A, "p1B5")
    for i in range(4): A(f"ds_read_b64 {v(24+2*i,2)}, v17 offset:{i*256}")
    A("s_waitcnt lgkmcnt(0)")
    for i in range(2):
        A(f"""v_add_f32 v{26+i}, v{26+i}, v{28+i}
              v_add_f32 v{26+i}, v{26+i}, v{30+i}
              v_and_b32 v{26+i}, s54, v{26+i}
              v_add_f32 v{20+2*i}, v{24+i}, v{26+i}
              v_mov_b32 v{21+2*i}, s12""")
    issue(slot(8))
    A(f"buffer_store_dwordx4 v[20:23], v16, {WS}, s21 offen sc1")
    endit(13)
    J = Asm(); _jg(J)
    J(f"""s_lshr_b32 s46, s46, 9
          s_add_u32 s46, s46, {WS_G}
          v_and_b32 v5, 31, v2
          v_cmp_eq_u32 vcc, 0, v5
          v_lshrrev_b32 v30, 3, v2
          v_mov_b32 v6, {OOB}
          v_cndmask_b32 v30, v6, v30, vcc
          v_lshlrev_b32 v16, 4, v5
          s_lshl_b32 s21, s16, 11
          s_lshl_b32 s3, s18, 9
          s_add_u32 s21, s21, s3
          s_add_u32 s21, s21, {WS_ST1}
          v_lshrrev_b32 v7, 3, v2
          v_lshlrev_b32 v7, 14, v7
          v_and_b32 v6, 7, v2
          v_lshl_add_u32 v17, v6, 4, v7
          s_lshl_b32 s22, s13, 9
          s_lshl_b32 s3, s18, 7
          s_add_u32 s22, s22, s3
          s_add_u32 s22, s22, {WS_CS1}
          s_add_u32 s23, s22, 8192""")
    NT1 = 16 + MS
    def tile(t, Z):
        if t >= NT1: return 0
        if t == 16 - MS:
            Z("""s_lshr_b32 s55, s18, 1
                 s_add_u32 s55, s55, 1
                 s_and_b32 s53, s18, 1""")
            wsetup(Z)
        if t == 16:
            Z(f"""s_lshr_b32 s55, s18, 1
                  s_mul_i32 s55, s55, 3
                  s_add_u32 s52, s52, {16 - MS}
                  s_and_b32 s52, s52, 15""")
            wsetup(Z)
        full = t < 16 - MS
        issue(slot(t), None, Z, 4 if full else 2)
        return 12 if full else 8
    n = len(J.lines)
    NG = 6 if MS == 0 else (5 if MS <= 2 else 3)
    srd(A, 8, P_W2, P_W2 + 1, D * D * 2)
    for c in range(NG):
        I = Asm(); k = tile(9 + c, I)
        interleave(A, I.lines, J.lines[n * c // NG: n * (c + 1) // NG])
        if c == NG - 1:
            A(f"buffer_store_dword v28, v30, {WS}, s46 offen sc1"); k += 1
        endit(k)
        if c in (0, 1, 2, NG - 1): fstamp(A, f"p1B{7+c}")
    jp = 7 + NG
    def payload():
        A(f"""buffer_load_dwordx4 v[20:23], v16, {WS}, s21 offen sc1
              buffer_load_dwordx4 v[32:35], v17, {WS}, s22 offen sc1
              buffer_load_dwordx4 v[36:39], v17, {WS}, s23 offen sc1""")
    payload()
    k = tile(jp + 2, A)
    kt = code_touch(A, "C_p1a", "C_attend", 1) + code_touch(A, "H_p1j14", "H_end", 1) + 1
    A(f"""v_and_b32 v58, 15, v2
          v_lshlrev_b32 v58, 7, v58
          s_lshl_b32 s3, s2, 2
          s_add_u32 s3, s3, s18
          s_lshl_b32 s3, s3, 11
          buffer_load_dword v60, v58, s[8:11], s3 offen""")
    endit(k + kt)
    k14 = tile(jp + 3, A) + kt
    def chk():
        A("""v_xor_b32 v24, s12, v21
             v_xor_b32 v25, s12, v23
             v_xor_b32 v26, s12, v33
             v_xor_b32 v27, s12, v35
             v_or3_b32 v24, v24, v25, v26
             v_xor_b32 v25, s12, v37
             v_xor_b32 v26, s12, v39
             v_or3_b32 v24, v24, v25, v26
             v_or_b32 v24, v24, v27
             v_cmp_ne_u32 vcc, 0, v24""")
    A("H_p1j14:")
    spin_until(A, chk, payload, "pay")
    A(f"""v_add_f32 v32, v32, v36
          v_add_f32 v33, v34, v38
          v_mov_b32 v21, v22
          s_lshl_b32 s3, s18, 9
          s_add_u32 s3, s3, {L_ST}
          v_permlane32_swap_b32 v32, v33
          v_add_u32 v16, s3, v16
          v_add_f32 v32, v32, v33
          v_mov_b32 v33, v32""")
    ln_consts(A, 20, 24)
    A(f"""v_permlane16_swap_b32 v32, v33
          ds_write_b128 v16, v[20:23]
          v_add_f32 v32, v32, v33
          s_lshl_b32 s3, s18, 6
          s_add_u32 s3, s3, {L_CS}
          {dppadd(32, 8)}
          v_lshl_add_u32 v6, v6, 3, s3
          v_lshrrev_b32 v7, 5, v2
          v_lshl_add_u32 v6, v7, 2, v6
          ds_write_b32 v6, v32
          v_mov_b32 v5, {L_NON}
          ds_write_b32 v5, v19""")
    endit(k14, True)
    for j in range(jp + 2, NT1 - 1):
        endit(tile(j + 2, A))
    A(f"""s_lshl_b32 s33, s17, 19
          s_lshl_b32 s37, s18, 13
          s_add_u32 s33, s33, s37
          s_add_u32 s33, s33, {WS_KV}
          s_lshl_b32 s34, s17, 14
          s_lshl_b32 s3, s18, 7
          s_add_u32 s34, s34, s3
          s_add_u32 s34, s34, {F_KV}
          s_lshr_b32 s21, s18, 1
          s_and_b32 s22, s18, 1""")
    KVROT = int(os.environ.get("KVROT", "0"))
    A(f"""v_and_b32 v3, 15, v2
          s_mul_i32 s14, s16, {KVROT}
          v_lshrrev_b32 v5, 1, v2
          v_add_u32 v5, s14, v5
          v_and_b32 v5, 15, v5
          v_lshlrev_b32 v17, 10, v5
          s_sub_u32 s3, s16, s14
          s_and_b32 s3, s3, 15
          s_lshl_b32 s3, s3, 1
          s_lshl_b32 s35, 3, s3
          s_mov_b32 s36, 0""")
    V = VM(A)
    kvpoll = f"buffer_load_dword v20, v17, {WS}, s34 offen sc1"
    def kv_ready(A=A):
        A("v_cmp_eq_u32 vcc, s12, v20")
        A("s_mov_b32 s36, vcc_lo")
    A0 = A
    def kv_issue(st, A=A):
        slot = kvslot(st)
        Lr_ = A0.label("kvr"); Lok = A0.label("kvok")
        chk2 = f"""s_andn2_b32 s39, s36, s35
              s_bcnt1_i32_b32 s3, s39
              s_cmp_ge_u32 s3, 2
              s_cbranch_scc1 {Lok}"""
        A(chk2)
        A("s_mov_b32 s62, 0x8000")
        A(f"{Lr_}:")
        A(kvpoll)
        A("s_waitcnt vmcnt(0)")
        kv_ready(A)
        A(chk2)
        A(f"""s_sleep {os.environ.get("SLP", "8")}
              s_sub_u32 s62, s62, 1
              s_cmp_lg_u32 s62, 0
              s_cbranch_scc1 {Lr_}
              s_not_b32 s39, s35""")
        A(f"{Lok}:")
        for h in range(2):
            A(f"""s_ff1_i32_b32 s3, s39
                  s_bitset1_b32 s35, s3
                  s_bitset0_b32 s39, s3
                  s_and_b32 s41, s3, 1
                  s_lshl_b32 s41, s41, 12
                  s_add_u32 s41, s41, s33
                  s_lshr_b32 s3, s3, 1
                  s_add_u32 s3, s3, s14
                  s_and_b32 s3, s3, 15
                  s_add_u32 m0, s37, {slot + h*4096}
                  s_lshl_b32 s3, s3, 15
                  s_add_u32 s41, s41, s3""")
            for i in range(4): A(f"buffer_load_dwordx4 v8, {WS}, s41 offen offset:{i*1024} sc1 lds")
        V.note(8, ("kv", st))
    if "noprewarm" not in EXP: A(kvpoll)
    EARLY = "earlysetup" in EXP
    if not EARLY:
        A("s_barrier")
        fstamp(A, "p1B15")
        A("s_barrier")
    ACC, P3V, SEL, ONE, SAC, XB, WB, C3B = 64, 96, 104, 108, 112, 128, 192, 224
    acc = lambda tb, nb: ACC + 4 * (tb * 4 + nb)
    A(f"""v_lshrrev_b32 v5, 3, v2
          v_and_b32 v6, 7, v2
          v_mul_u32_u24 v7, 7168, v5
          v_cmp_eq_u32 vcc, 7, v6
          v_lshl_add_u32 v30, v6, 4, v7
          v_mov_b32 v7, {OOB}
          s_mul_i32 s47, s16, {64*7168}
          v_cndmask_b32 v30, v30, v7, vcc
          s_mul_i32 s3, s17, 448
          s_add_u32 s47, s47, s3
          s_mul_i32 s3, s18, 112
          s_add_u32 s47, s47, s3
          v_and_b32 v7, 6, v5
          v_xor_b32 v7, v7, v6
          v_lshlrev_b32 v5, 11, v5
          v_lshl_add_u32 v24, v7, 4, v5
          s_lshl_b32 s3, s17, 7
          v_add_u32 v24, s3, v24
          v_add_u32 v25, {8*2048 - 1024}, v24
          v_add_u32 v26, {16*2048 - 2048}, v24
          v_add_u32 v27, {24*2048 - 3072}, v24
          v_lshrrev_b32 v5, 2, v3
          v_and_b32 v6, 3, v3
          v_lshl_add_u32 v7, v4, 2, v5
          v_bfe_u32 v5, v7, 1, 2
          v_lshlrev_b32 v7, 7, v7
          v_lshl_add_u32 v7, v6, 3, v7
          v_lshl_add_u32 v7, v5, 5, v7
          s_lshl_b32 s46, s18, 12
          s_add_u32 s38, s46, {L_W2W}
          v_add_u32 v32, {L_W2W}, v7
          v_xor_b32 v33, 32, v32
          v_xor_b32 v34, 64, v32
          v_xor_b32 v35, 96, v32
          s_lshl_b32 s43, s16, 18
          s_lshl_b32 s3, s18, 11
          s_add_u32 s43, s43, s3
          s_add_u32 s43, s43, {WS_H1}
          s_lshl_b32 s44, s18, 16""")
    if EARLY: A("s_barrier")
    A(f"""s_add_u32 m0, s46, {L_XR}
          s_lshl_b32 s41, s17, 7""")
    for i in range(4): V.op(f"buffer_load_dwordx4 v{10+i}, s[24:27], s41 offen offset:{i*1024} lds", "xr")
    A(f"""v_lshlrev_b32 v21, 2, v2
          s_add_u32 s3, s16, 15
          s_and_b32 s3, s3, 15
          s_lshl_b32 s48, s3, {6+FS}
          s_add_u32 s48, s48, {F_H1}
          v_lshlrev_b32 v61, {FS}, v2
          s_lshl_b32 s49, s16, {6+FS}
          s_add_u32 s49, s49, {F_H1}
          s_add_u32 s3, s16, 1
          s_and_b32 s3, s3, 15
          s_lshl_b32 s50, s3, {6+FS}
          s_add_u32 s50, s50, {F_H1}
          v_and_b32 v5, 31, v2
          v_lshlrev_b32 v23, 2, v5
          v_and_b32 v5, 7, v2
          v_lshlrev_b32 v54, 7, v5
          s_lshl_b32 s3, s2, 2
          s_add_u32 s3, s3, s18
          s_lshl_b32 s63, s3, 10""")
    srd(A, 28, P_W2, P_W2 + 1, D * D * 2)
    srd(A, 8, P_W3, P_W3 + 1, D * F * 2)
    srd(A, 52, P_W4, P_W4 + 1, F * D * 2)
    srd(A, 56, P_WO, P_WO + 1, D * D * 2)
    A(f"""v_and_b32 v5, 1, v3
          v_lshlrev_b32 v5, 4, v5
          v_mov_b32 v6, 0x3f80
          v_lshlrev_b32 v6, v5, v6
          v_lshrrev_b32 v5, 1, v3""")
    for q in range(4):
        A(f"""v_cmp_eq_u32 vcc, {q}, v5
              v_mov_b32 v{ONE+q}, 0x3f803f80
              s_nop 0
              v_cndmask_b32 v{SEL+q}, 0, v6, vcc""")
    A(f"""s_lshl_b32 s42, s18, 5
          v_add_u32 v5, s42, v3
          v_lshlrev_b32 v5, 7, v5
          v_lshrrev_b32 v6, 1, v3
          v_lshrrev_b32 v7, 1, v4
          v_xor_b32 v6, v6, v7
          v_lshl_add_u32 v5, v6, 4, v5
          v_and_b32 v7, 1, v4
          v_lshl_add_u32 v5, v7, 3, v5
          v_add_u32 v10, {L_XR}, v5
          v_xor_b32 v11, 32, v10
          v_xor_b32 v12, 64, v10
          v_xor_b32 v13, 96, v10""")
    if EARLY: A("s_barrier")
    fstamp(A, "setup")
    kv_issue(1)
    fstamp(A, "j0iss")
    kv_issue(2)
    V.op(kvpoll, "poll")
    for tb in range(2):
        for nb in range(4): A(f"ds_read_b64 {v(128+8*tb+2*nb,2)}, v{10+nb} offset:{tb*2048}")
    for i in range(7):
        A(f"""v_add_u32 v5, {i*64}, v2
              v_mul_u32_u24 v6, 2341, v5
              v_lshrrev_b32 v6, 16, v6
              v_mul_u32_u24 v7, 28, v6
              v_sub_u32 v7, v5, v7
              v_bfe_u32 v5, v6, 2, 1
              v_lshlrev_b32 v5, 1, v5
              v_xor_b32 v7, v7, v5
              v_mul_u32_u24 v6, 7168, v6
              v_lshl_add_u32 v{P3V+i}, v7, 4, v6""")
        if i & 3: A(f"v_subrev_u32 v{P3V+i}, {(i&3)*1024}, v{P3V+i}")
    A("s_waitcnt lgkmcnt(0)")
    for i in range(16):
        A(f"v_lshlrev_b32 v{ACC+2*i}, 16, v{128+i}")
        A(f"v_and_b32 v{ACC+2*i+1}, v9, v{128+i}")
    V.wait(("kv", 1))
    A("s_barrier")
    fstamp(A, "B0")
    side = [0, 0]
    def cs3_loads(Z, n):
        for _ in range(n):
            k = side[0]; side[0] += 1
            Z(f"buffer_load_dwordx4 {v(C3B+4*k,4)}, v30, s[8:11], s47 offen")
            Z(f"s_add_u32 s47, s47, {8*7168}")
            V.note(1, "side")
    def touches(Z, n):
        for _ in range(n):
            k = side[1]; side[1] += 1
            if k == 2: Z(f"s_sub_u32 s63, s63, {2 << 20}")
            Z(f"buffer_load_dword v60, v54, {'s[56:59]' if k < 2 else 's[52:55]'}, s63 offen")
            Z(f"s_add_u32 s63, s63, {1 << 20}")
            V.note(1, "side")
    C3N = [int(x) for x in os.environ.get("C3N", "3,3,2").split(",")]
    TCN = [int(x) for x in os.environ.get("TCN", "3,3,3,0").split(",")]
    V.wait("poll"); kv_ready()
    kv_issue(3)
    V.op(kvpoll, "poll")
    cs3_loads(A, C3N[0])
    A("s_barrier")
    fstamp(A, "B1")
    V.wait("poll"); kv_ready()
    kv_issue(4)
    V.op(kvpoll, "poll")
    cs3_loads(A, C3N[1])
    A("s_barrier")
    fstamp(A, "B2")
    V.wait("poll"); kv_ready()
    A("H_j3:")
    def ldh1():
        for i in range(3): A(f"buffer_load_dword v{18+i}, v61, {WS}, s{48+i} offen sc1")
    def chkh1():
        A("""v_xor_b32 v18, s12, v18
             v_xor_b32 v19, s12, v19
             v_xor_b32 v20, s12, v20
             v_or3_b32 v18, v18, v19, v20
             v_cmp_ne_u32 vcc, 0, v18""")
    def w2_w(Z, b):
        Z(f"s_add_u32 m0, s38, {b*16384}")
        Z("s_nop 0")
        for i in range(4): Z(f"buffer_load_dwordx4 v{24+i}, s[28:31], s44 offen offset:{i*1024} lds")
        Z(f"s_add_u32 s44, s44, {128*2048}")
        V.note(4, "w")
    def w2_x(Z, b):
        for st in range(4):
            for tb in range(2):
                Z(f"buffer_load_dwordx4 {v(XB+32*b+8*st+4*tb,4)}, v8, {WS}, s43 offen offset:{tb*1024} sc1")
            Z("s_add_u32 s43, s43, 8192")
        V.note(8, "x")
    def w2_loads(Z, b):
        w2_w(Z, b); w2_x(Z, b)
    if "h1last" in EXP:
        w2_w(A, 0)
        kv_issue(5)
        ldh1(); V.note(3, "poll"); V.wait("poll")
    else:
        ldh1(); V.note(3, "poll")
        w2_w(A, 0)
        V.wait("poll")
    spin_until(A, chkh1, ldh1, "h1")
    fstamp(A, "h1ok")
    def w2_reads(Z, b, st):
        for nb in range(4):
            for e in range(2): Z(f"ds_read_b64_tr_b16 {v(WB+16*(st&1)+4*nb+2*e,2)}, v{32+nb} offset:{b*16384 + st*4096 + e*2048}")
    def w2_mfma(Z, b):
        for st in range(4):
            Z(f"s_waitcnt lgkmcnt({8 if st < 3 else 0})")
            for nb in range(4):
                for tb in ((0, 1) if nb % 2 == 0 else (1, 0)):
                    Z(f"v_mfma_f32_16x16x32_bf16 {v(acc(tb,nb),4)}, {v(WB+16*(st&1)+4*nb,4)}, {v(XB+32*b+8*st+4*tb,4)}, {v(acc(tb,nb),4)}")
            if st < 2: w2_reads(Z, b, st + 2)
    V.op(f"""s_lshl_b32 s41, s16, 9
          s_lshl_b32 s3, s18, 7
          s_add_u32 s41, s41, s3
          s_add_u32 s41, s41, {WS_G}
          buffer_load_dword v36, v23, {WS}, s41 offen sc1""", "g")
    w2_x(A, 0)
    if "h1last" not in EXP: kv_issue(5)
    cs3_loads(A, C3N[2])
    V.wait("w")
    A("s_barrier")
    fstamp(A, "B3")
    A(f"s_setprio {os.environ.get('HPRIO', '2')}")
    for j in range(4, 12):
        b = (j - 4) & 1
        w2_reads(A, b, 0); w2_reads(A, b, 1)
        V.wait("x")
        I = Asm(); M = Asm()
        if j < 11: w2_loads(I, 1 - b)
        kv_issue(j + 2, I)
        w2_mfma(M, b)
        interleave(A, I.lines, M.lines)
        if j == 11: break
        V.wait("w")
        if j == 5:
            for k in range(8): A(f"v_mfma_f32_16x16x32_bf16 {v(SAC,4)}, {v(SEL,4)}, {v(C3B+4*k,4)}, {'0' if k == 0 else v(SAC,4)}")
            A(f"""s_lshl_b32 s3, s18, 7
                  s_add_u32 s3, s3, {L_GT}
                  v_add_u32 v5, s3, v23
                  ds_write_b32 v5, v36""")
        if j == 6:
            for r in range(4): A(dppadd(SAC + r, 8))
            V.op(f"""v_lshlrev_b32 v5, 5, v3
                  v_lshl_add_u32 v5, v4, 4, v5
                  s_mul_i32 s41, s16, {F*4}
                  s_mul_i32 s49, s17, 896
                  s_mul_i32 s3, s18, 224
                  s_add_u32 s49, s49, s3
                  s_add_u32 s49, s49, {WS_CS3}
                  s_add_u32 s41, s41, s49
                  s_mov_b32 exec_lo, 0x007f007f
                  s_mov_b32 exec_hi, 0
                  buffer_store_dwordx4 {v(SAC,4)}, v5, {WS}, s41 offen sc1
                  s_mov_b64 exec, -1""", "st")
        A("s_barrier")
        if j in (4, 10): fstamp(A, f"B{j}")
    A(f"""s_lshl_b32 s45, s16, 18
          s_lshl_b32 s3, s17, 14
          s_add_u32 s45, s45, s3
          s_lshl_b32 s3, s18, 11
          s_add_u32 s45, s45, s3
          s_add_u32 s45, s45, {WS_X1}
          s_add_u32 s47, s45, 8192
          s_nop 1""")
    for tb in range(2):
        for nb in range(4):
            a = ACC + 4 * (tb * 4 + nb); xr = 128 + 8 * tb + 2 * nb
            A(f"""v_cvt_pk_bf16_f32 v{xr}, v{a}, v{a+1}
                  v_cvt_pk_bf16_f32 v{xr+1}, v{a+2}, v{a+3}""")
    for tb in range(2):
        V.op(f"buffer_store_dwordx4 {v(128+8*tb,4)}, v8, {WS}, s45 offen offset:{tb*1024} sc1", "st")
        V.op(f"buffer_store_dwordx4 {v(132+8*tb,4)}, v8, {WS}, s47 offen offset:{tb*1024} sc1", "st")
    for h in range(2):
        for tb in range(2):
            x = v(128 + 8*tb + 4*h, 4)
            A(f"v_mfma_f32_16x16x32_bf16 {v(SAC+4*tb,4)}, {v(ONE,4)}, {x}, {'0' if h == 0 else v(SAC+4*tb,4)}")
            A(f"v_mfma_f32_16x16x32_bf16 {v(SAC+8+4*tb,4)}, {x}, {x}, {'0' if h == 0 else v(SAC+8+4*tb,4)}")
    A(f"""v_and_b32 v5, 3, v3
          v_cmp_eq_u32 s[88:89], 1, v5
          v_cmp_eq_u32 s[90:91], 2, v5
          v_cmp_eq_u32 vcc, 3, v5
          s_lshl_b32 s41, s19, 10
          s_lshl_b32 s3, s18, 8
          s_add_u32 s41, s41, s3
          s_add_u32 s41, s41, {WS_ST}
          v_lshlrev_b32 v6, 4, v3""")
    for tb in range(2):
        q = SAC + 8 + 4*tb
        A(f"""v_cndmask_b32 v{q}, v{q}, v{q+1}, s[88:89]
              v_cndmask_b32 v{q}, v{q}, v{q+2}, s[90:91]
              v_cndmask_b32 v{SAC+2+tb}, v{q}, v{q+3}, vcc""")
    V.op(f"""v_mov_b32 v{SAC+1}, v{SAC+4}
          s_mov_b32 exec_lo, 0x00f0000f
          s_mov_b32 exec_hi, 0xf0000f00
          buffer_store_dwordx4 {v(SAC,4)}, v6, {WS}, s41 offen sc1
          s_mov_b64 exec, -1""", "st")
    touches(A, TCN[0])
    V.wait(("kv", 12))
    A("s_barrier")
    fstamp(A, "B11")
    kv_issue(14)
    A(f"""s_lshl_b32 s45, s19, {2+FS}
          s_lshl_b32 s3, s18, {FS}
          s_add_u32 s45, s45, s3
          s_add_u32 s45, s45, {F_X1}""")
    V.wait("st")
    flag_store(A, 45); V.note(1, "st")
    touches(A, TCN[1])
    A("s_barrier")
    fstamp(A, "B12")
    kv_issue(15)
    srd(A, 28, P_W3, P_W3 + 1, D * F * 2)
    A(f"""s_lshl_b32 s43, s16, 18
          s_add_u32 s43, s43, s46
          s_add_u32 s43, s43, {WS_X1}
          s_mul_i32 s44, s18, {16*7168}
          s_mul_i32 s3, s17, 448
          s_add_u32 s44, s44, s3
          s_mul_i32 s38, s18, 7168
          s_add_u32 s38, s38, 16384
          s_lshl_b32 s48, s16, {6+FS}
          s_add_u32 s48, s48, {F_X1}""")
    touches(A, TCN[2])
    V.wait(("kv", 14))
    A("s_barrier")
    fstamp(A, "B13")
    A("s_setprio 0")
    r3a, r3b = [int(x) for x in os.environ.get("ROT3", "0,0").split(",")]
    A(f"""s_mul_i32 s50, s16, {r3a}
          s_mul_i32 s3, s17, {r3b}
          s_add_u32 s50, s50, s3
          s_and_b32 s50, s50, 15
          s_mov_b32 s51, s50""")
    def p3_x(slot):
        A(f"s_add_u32 m0, s46, {slot}")
        A("s_lshl_b32 s41, s50, 14")
        A("s_add_u32 s41, s41, s43")
        for i in range(4): A(f"buffer_load_dwordx4 v8, {WS}, s41 offen offset:{i*1024} sc1 lds")
        A("s_add_u32 s50, s50, 1"); A("s_and_b32 s50, s50, 15")
    def p3_w(slot):
        A(f"s_add_u32 m0, s38, {slot}")
        A(f"s_mul_i32 s41, s51, {64*7168}")
        A("s_add_u32 s41, s41, s44")
        for i in range(7):
            if i == 4:
                A("s_add_u32 m0, m0, 4096"); A("s_add_u32 s51, s51, 1")
            A(f"buffer_load_dwordx4 v{P3V+i}, s[28:31], s41 offen offset:{(i&3)*1024} lds")
        A("s_and_b32 s51, s51, 15")
    def p3_issue(slot):
        p3_x(slot); p3_w(slot)
    ld = lambda: A(f"buffer_load_dword v20, v61, {WS}, s48 offen sc1")
    A(f"""s_lshl_b32 s47, s17, {2+FS}
          s_lshl_b32 s3, s18, {FS}
          s_add_u32 s47, s47, s3
          s_add_u32 s47, s47, {F_X1}
          v_lshlrev_b32 v18, {6+FS}, v3""")
    ld2 = lambda: A(f"buffer_load_dword v19, v18, {WS}, s47 offen sc1")
    p3_w(L3 + S3)
    p3_w(L3 + 2 * S3)
    k = code_touch(A, "C_attend", "C_slow", 1)
    ld(); ld2()
    A(f"""s_lshl_b32 s45, s16, 14
          s_lshl_b32 s3, s18, 8
          s_add_u32 s45, s45, s3
          s_add_u32 s45, s45, {WS_ST}
          v_lshlrev_b32 v21, 4, v3
          v_mul_u32_u24 v22, {F*4}, v4
          v_add_u32 v22, v22, v21
          v_lshl_add_u32 v21, v4, 10, v21""")
    endit(16 + k)
    fstamp(A, "B14")
    A("s_waitcnt vmcnt(0)")
    spin_until(A, lambda: A("v_cmp_ne_u32 vcc, s12, v20"), ld, "x1")
    fstamp(A, "x1ok")
    p3_x(L3 + S3)
    for i in range(4):
        A(f"buffer_load_dwordx4 {v(64+4*i,4)}, v21, {WS}, s45 offen sc1")
        if i < 3: A("s_add_u32 s45, s45, 4096")
    spin_until(A, lambda: A("v_cmp_ne_u32 vcc, s12, v19"), ld2, "cs")
    for i in range(4):
        A(f"buffer_load_dwordx4 {v(128+4*i,4)}, v22, {WS}, s49 offen sc1")
        if i < 3: A(f"s_add_u32 s49, s49, {4*F*4}")
    p3_x(L3 + 2 * S3)
    A("s_barrier")
    A("s_waitcnt vmcnt(4)")
    for b_ in (64, 128):
        for r in range(0, 4, 2):
            A(f"v_pk_add_f32 {v(b_+r,2)}, {v(b_+r,2)}, {v(b_+4+r,2)}")
            A(f"v_pk_add_f32 {v(b_+8+r,2)}, {v(b_+8+r,2)}, {v(b_+12+r,2)}")
        for r in range(0, 4, 2): A(f"v_pk_add_f32 {v(b_+r,2)}, {v(b_+r,2)}, {v(b_+8+r,2)}")
    A(f"""v_sub_f32 v37, 1.0, v36
          v_permlane32_swap_b32 v64, v66
          v_permlane32_swap_b32 v65, v67
          v_permlane32_swap_b32 v128, v130
          v_permlane32_swap_b32 v129, v131
          v_pk_add_f32 v[64:65], v[64:65], v[66:67]
          v_pk_add_f32 v[128:129], v[128:129], v[130:131]
          v_cvt_pk_bf16_f32 v37, v37, v37
          s_mul_i32 s3, s18, 224
          v_permlane16_swap_b32 v64, v65
          v_permlane16_swap_b32 v128, v129
          v_add_f32 v64, v64, v65
          v_add_f32 v128, v128, v129
          v_mul_f32 v64, {hexf(1.0/1024)}, v64
          s_add_u32 s3, s3, {L_CS}
          v_mov_b32 v65, v64
          v_lshl_add_u32 v22, v3, 4, s3
          v_lshl_add_u32 v22, v4, 2, v22
          v_permlane32_swap_b32 v64, v65
          s_mov_b32 exec_lo, 0x3fff3fff
          s_mov_b32 exec_hi, 0x3fff3fff
          ds_write_b32 v22, v128
          s_mov_b64 exec, -1
          v_and_b32 v37, v9, v37
          v_max_f32 v37, {hexf(2.0**-60)}, v37""")
    ln_consts(A, 64, 5, 37)
    A(f"""s_lshl_b32 s3, s18, 9
          s_add_u32 s3, s3, {L_ST}
          v_lshl_add_u32 v5, v23, 2, s3
          ds_write_b128 v5, v[64:67]
          s_waitcnt lgkmcnt(0)
          s_barrier""")
    A(f"s_mov_b32 s45, {L3}")
    A("s_mov_b32 s40, 14")
    L = A.label("p3loop")
    A(f"{L}:")
    if "p3now" in EXP: p3_x("s45")
    else: p3_issue("s45")
    A(f"""s_add_u32 s45, s45, {S3}
          s_cmp_eq_u32 s45, {L3 + 3*S3}
          s_cselect_b32 s45, {L3}, s45
          s_waitcnt vmcnt(11)
          s_barrier
          s_sub_u32 s40, s40, 1
          s_cmp_lg_u32 s40, 0
          s_cbranch_scc1 {L}""")
    A(f"""s_lshr_b32 s21, s17, 3
          s_lshl_b32 s48, s16, {6+FS}
          s_lshl_b32 s3, s21, {5+FS}
          s_add_u32 s48, s48, s3
          s_add_u32 s48, s48, {F_O}
          v_and_b32 v61, {(32 << FS) - 1}, v61""")
    ld()
    A(f"""v_lshrrev_b32 v5, 4, v2
          v_and_b32 v6, 15, v2
          v_lshlrev_b32 v7, 1, v5
          v_xor_b32 v7, v7, v6
          s_lshl_b32 s3, s18, 4
          v_add_u32 v5, s3, v5
          v_lshlrev_b32 v5, 11, v5
          v_lshl_add_u32 v11, v7, 4, v5
          s_and_b32 s3, s17, 7
          s_lshl_b32 s3, s3, 8
          v_add_u32 v11, s3, v11
          v_xor_b32 v12, 128, v11
          v_add_u32 v12, {4*2048 - 1024}, v12
          v_add_u32 v13, {8*2048 - 2048}, v11
          v_add_u32 v14, {8*2048 - 2048}, v12
          s_lshr_b32 s21, s17, 3
          s_mul_i32 s33, s16, {HO_PANEL}
          s_add_u32 s33, s33, s46
          s_add_u32 s33, s33, {WS_HO}
          s_lshl_b32 s3, s21, 17
          s_add_u32 s43, s33, s3
          s_add_u32 s43, s43, {112*8192}
          s_lshl_b32 s44, s21, 20
          s_add_u32 s38, s46, 16384""")
    srd(A, 28, P_WO, P_WO + 1, D * D * 2)
    k = code_touch(A, "C_p3end", "C_p4end", 1)
    endit(k)
    spin_until(A, lambda: A("v_cmp_ne_u32 vcc, s12, v20"), ld, "o")
    A("s_barrier")
    fstamp(A, "p3B15")
    V = VM(A)
    RW = [int(x) for x in os.environ.get("RW", "").split(",") if x]
    rwreg = {t: 64 + 16 * i for i, t in enumerate(RW)}
    NF = 36 - DL; NT4 = 36 + DL
    def p4_x(t):
        slot = (t % 4) * S4
        if t == NF:
            A(f"""s_lshl_b32 s3, s21, 11
                  s_add_u32 s46, s46, s3
                  s_add_u32 s43, s33, s3
                  s_add_u32 s43, s43, {(28 - DL) * 16384}
                  s_mov_b32 s44, {(28 - DL) * 64 * 2048}""")
        A(f"s_add_u32 m0, s46, {slot}")
        A("s_nop 0")
        for i in range(4 if t < NF else 2): V.op(f"buffer_load_dwordx4 v8, {WS}, s43 offen offset:{i*1024} sc1 lds", ("t", t))
        A("s_add_u32 s43, s43, 16384")
    def p4_w(t):
        slot = (t % 4) * S4
        if t not in rwreg:
            A(f"s_add_u32 m0, s38, {slot}")
            A("s_nop 0")
            for i in range(4): V.op(f"buffer_load_dwordx4 v{11+i}, {'s[28:31]' if t < 8 else 's[52:55]'}, s44 offen offset:{i*1024} lds", ("t", t))
        if t == 7: A(f"s_mul_i32 s44, s21, {(28 + DL)*64*2048}")
        else: A(f"s_add_u32 s44, s44, {64*2048}")
    def p4_issue(t):
        p4_x(t); p4_w(t)
    def p4_end(j):
        V.wait(("t", min(j + 1, NT4 - 1)))
        A("s_barrier")
    PP = os.environ.get("PP", "")
    for t in range(4):
        p4_x(t)
        if PP: A(f"s_waitcnt vmcnt({PP})")
        p4_w(t)
        if PP: A(f"s_waitcnt vmcnt({PP})")
    A(f"s_add_u32 s48, s48, {F_H2 - F_O}")
    V.wait(("t", 0))
    fstamp(A, "p4pre")
    A("s_barrier")
    p4_end(0)
    for j in range(1, 5):
        p4_issue(j + 3)
        p4_end(j)
    fstamp(A, "p4j5")
    A(f"""s_mul_i32 s3, s21, {(28 + DL)*16384}
          s_add_u32 s43, s33, s3""")
    ldp = f"buffer_load_dword v20, v61, {WS}, s48 offen sc1"
    L6 = A.label("h2at6"); L7 = A.label("h2at7"); Lj6 = A.label("h2j6"); Lj7 = A.label("h2j7")
    V.op(ldp, "poll"); p4_w(8); V.wait("poll")
    A("v_cmp_ne_u32 vcc, s12, v20")
    A(f"s_cbranch_vccnz {L6}")
    base = list(V.log)
    p4_x(8); A("s_barrier")
    p4_w(9)
    A(f"{Lj6}:")
    p4_x(9); A("s_barrier")
    p4_w(10)
    A(f"{Lj7}:")
    p4_x(10)
    fstamp(A, "h2ok")
    A("s_waitcnt vmcnt(8)")
    A("s_barrier")
    Lgo = A.label("h2go")
    A(f"s_branch {Lgo}")
    keep = list(V.log)
    A(f"{L6}:")
    A("s_barrier")
    A(ldp); p4_w(9); A("s_waitcnt vmcnt(4)")
    A("v_cmp_ne_u32 vcc, s12, v20")
    A(f"s_cbranch_vccnz {L7}")
    p4_x(8)
    A(f"s_branch {Lj6}")
    A(f"{L7}:")
    A("s_barrier")
    A(ldp); p4_w(10); A("s_waitcnt vmcnt(4)")
    spin_until(A, lambda: A("v_cmp_ne_u32 vcc, s12, v20"), ld, "h2")
    p4_x(8); p4_x(9)
    A(f"s_branch {Lj7}")
    A(f"{Lgo}:")
    V.log = [("t", 8)] * 4 + [("t", 9)] * 4 + [("t", 10)] * 4
    for j in range(8, NT4 - 3):
        p4_issue(j + 3)
        if j == 24: V.note(code_touch(A, "C_p4end", "C_slow", 1), "ct")
        if DL and j == 20:
            A(f"s_xor_b32 s48, s48, {32 << FS}")
            V.op(ldp, "poll")
        p4_end(j)
        if DL and j == 23:
            V.wait("poll")
            spin_until(A, lambda: A("v_cmp_ne_u32 vcc, s12, v20"), ld, "h2b")
    A(f"""s_xor_b32 s3, s19, 8
          s_lshl_b32 s43, s3, 14
          s_lshl_b32 s41, s18, 12
          s_add_u32 s43, s43, s41
          s_add_u32 s43, s43, {WS_EX}
          s_add_u32 m0, s41, {L_EX}
          s_lshl_b32 s48, s3, 9
          s_lshl_b32 s41, s18, 7
          s_add_u32 s48, s48, s41
          s_add_u32 s48, s48, {F_EX}""")
    lde = lambda: A(f"buffer_load_dword v20, off, {WS}, s48 sc1")
    def exdma():
        for i in range(4): A(f"buffer_load_dwordx4 v8, {WS}, s43 offen offset:{i*1024} sc1 lds")
    p4_end(NT4 - 3)
    if DL:
        lde()
        endit(1)
    else:
        endit(0); A("s_barrier"); lde()
    A("s_waitcnt vmcnt(0)")
    spin_until(A, lambda: A("v_cmp_ne_u32 vcc, s12, v20"), lde, "ex")
    exdma()
    endit(0)
    fstamp(A, "end")
    fstamp_flush(A, 1)

def compute(A):
    ROLE[0] = 0
    ACC, XB0, WB0 = 128, 64, 96
    acc = lambda tb, nb: ACC + 4 * (tb * 8 + nb)
    XB = lambda p, tb: XB0 + 16 * p + 4 * tb
    WB = lambda nb: WB0 + 4 * nb
    if PROF: A("v_mov_b64 v[62:63], 0")
    A("""s_lshr_b32 s19, s18, 1
         s_and_b32 s20, s18, 1
         v_and_b32 v3, 15, v2
         v_lshrrev_b32 v4, 4, v2""")
    A("""s_lshl_b32 s3, s19, 6
         v_add_u32 v5, s3, v3
         v_lshlrev_b32 v5, 7, v5
         v_lshrrev_b32 v6, 1, v3
         v_xor_b32 v6, v6, v4
         v_lshlrev_b32 v7, 4, v6
         v_add_u32 v14, v5, v7
         v_xor_b32 v15, 64, v14""")
    A("""v_lshrrev_b32 v5, 2, v3
         v_and_b32 v6, 3, v3
         v_lshl_add_u32 v7, v4, 3, v5
         v_lshlrev_b32 v7, 7, v7
         v_lshl_add_u32 v7, v6, 3, v7
         v_lshrrev_b32 v8, 1, v5
         v_and_b32 v9, 1, v4
         v_lshl_or_b32 v8, v9, 1, v8
         s_lshl_b32 s3, s20, 1
         v_xor_b32 v8, s3, v8
         v_lshl_add_u32 v16, v8, 5, v7
         v_xor_b32 v17, 32, v16""")
    A("""v_mov_b32 v10, v14
         v_mov_b32 v11, v15
         v_mov_b32 v12, v16
         v_mov_b32 v13, v17
         s_mov_b32 s21, 0""")
    Lnn = A.label("nononce")
    A(f"""s_memrealtime s[28:29]
          s_waitcnt lgkmcnt(0)
          s_or_b32 s3, s2, s18
          s_cmp_lg_u32 s3, 0
          s_cbranch_scc1 {Lnn}""")
    srd(A, 24, P_DBG, P_DBG + 1, 4)
    A(f"""s_or_b32 s28, s28, 1
          v_mov_b32 v5, s28
          v_lshlrev_b32 v6, 2, v2
          buffer_store_dword v5, v6, s[24:27], 0 offen sc1""")
    A(f"{Lnn}:")
    srd(A, 4, P_WS, P_WS + 1, WS_END)
    fstamp(A, "start")
    for i in range(0, 128, 2): A(f"v_mov_b64 {v(ACC+i,2)}, 0")
    A(f"""v_and_b32 v5, 1, v4
          v_lshrrev_b32 v6, 1, v4
          v_lshlrev_b32 v5, 6, v5
          v_lshl_add_u32 v5, v6, 9, v5
          v_lshrrev_b32 v6, 2, v3
          v_and_b32 v7, 3, v3
          v_lshl_add_u32 v6, v6, 3, v7
          v_lshl_add_u32 v21, v6, 4, v5
          v_lshlrev_b32 v5, 9, v4
          v_lshrrev_b32 v6, 3, v3
          v_and_b32 v7, 7, v3
          v_lshl_add_u32 v6, v6, 4, v7
          v_lshl_add_u32 v22, v6, 4, v5
          s_lshl_b32 s3, s20, 14
          s_lshl_b32 s22, s19, 13
          s_add_u32 s3, s3, s22
          v_add_u32 v21, s3, v21
          v_add_u32 v22, s3, v22
          s_lshl_b32 s3, s19, 10
          v_lshl_add_u32 v18, v3, 4, s3
          v_add_u32 v18, {L_ST}, v18
          s_lshl_b32 s3, s20, 7
          v_lshl_add_u32 v19, v4, 4, s3
          v_add_u32 v19, {L_CS}, v19
          v_mov_b32 v20, {L_NON}
          s_mov_b32 s38, {hexf(QSCALE)}
          s_lshl_b32 s22, s13, 1
          s_add_u32 s22, s22, s20
          s_lshr_b32 s3, s22, 3
          s_lshr_b32 s32, s3, 1
          s_add_u32 s32, s32, 1
          s_sub_u32 s33, 0, s32
          s_and_b32 s3, s3, 1
          s_cmp_eq_u32 s3, 1
          s_cselect_b32 s32, s33, s32
          s_lshl_b32 s33, s16, 7
          s_lshl_b32 s3, s19, 6
          s_add_u32 s33, s33, s3
          s_add_u32 s33, s33, s32
          s_lshl_b32 s34, s22, 13
          s_add_u32 s34, s34, {WS_H1}
          v_add_u32 v50, s33, v3
          v_and_b32 v49, 15, v50
          v_lshlrev_b32 v49, 4, v49
          v_lshl_add_u32 v49, v4, 8, v49
          v_cmp_gt_u32 vcc, 2048, v50
          s_mov_b64 s[42:43], vcc""")
    for tb in range(4):
        A(f"""v_bfe_u32 v51, v50, 7, 4
              v_bfe_u32 v48, v50, 4, 3
              v_lshl_add_u32 v51, v51, 18, v49
              v_lshl_add_u32 v{56+tb}, v48, 10, v51""")
        if tb < 3: A("v_add_u32 v50, 16, v50")
    A(f"""v_cmp_gt_u32 vcc, 2048, v50
         s_mov_b64 s[44:45], vcc
         s_lshl_b32 s23, s16, {6+FS}
         s_lshl_b32 s3, s17, {2+FS}
         s_add_u32 s23, s23, s3
         s_lshl_b32 s3, s18, {FS}
         s_add_u32 s23, s23, s3""")
    A(f"""s_lshl_b32 s3, s17, 4
          s_add_u32 s3, s3, s16
          s_lshl_b32 s46, s3, 15
          s_add_u32 s46, s46, {WS_KV}
          s_add_u32 s47, s46, 4096
          s_lshl_b32 s48, s3, 10
          s_lshl_b32 s3, s20, 8
          s_add_u32 s48, s48, s3
          s_lshl_b32 s3, s19, 7
          s_add_u32 s48, s48, s3
          s_add_u32 s48, s48, {F_KV}
          s_mov_b32 s49, 1""")
    def try_flag(Z, soff, block=False, lane=30):
        Ls = A.label("tf")
        if block:
            Z("s_cmp_eq_u32 s49, 0")
        else:
            Z("s_getreg_b32 s3, hwreg(HW_REG_IB_STS, 0, 4)")
            Z("s_cmp_ge_u32 s3, s49")
        Z(f"s_cbranch_scc1 {Ls}")
        Z("s_waitcnt vmcnt(0)")
        Z("s_mov_b32 s49, 0")
        if PROF:
            Z("s_memrealtime s[96:97]"); Z("s_waitcnt lgkmcnt(0)"); Z(f"v_writelane_b32 v62, s96, {lane}")
        flag_store(Z, soff)
        Z(f"{Ls}:")
    xread = lambda st, tb, dst: f"ds_read_b128 {v(dst,4)}, v{10+st} offset:{tb*2048}"
    wread = lambda st, nb, e, dst: f"ds_read_b64_tr_b16 {v(dst,2)}, v{12+(nb&1)} offset:{16384 + (nb>>1)*8192 + st*4096 + e*512}"
    def advance():
        return [f"s_add_u32 s21, s21, {S1}", f"s_cmp_eq_u32 s21, {3*S1}", "s_cselect_b32 s21, 0, s21",
                "v_add_u32 v10, s21, v14", "v_add_u32 v11, s21, v15", "v_add_u32 v12, s21, v16", "v_add_u32 v13, s21, v17"]
    for sl in range(3):
        for i in range(4): A(f"v_add_u32 v{24+4*sl+i}, {sl*S1}, v{14+i}")
    A("s_barrier")
    fstamp(A, "P")
    if MS or "oldp1" in EXP: compute_loop(A, 4, 8, 2, 16 - MS, acc, XB, WB, xread, wread, advance, swapped=(4, 5), name="p1c")
    else:
        xr1 = lambda sl, st, tb, dst: f"ds_read_b128 {v(dst,4)}, v{24+4*sl+st} offset:{tb*2048}"
        wr1 = lambda sl, st, nb, e, dst: f"ds_read_b64_tr_b16 {v(dst,2)}, v{26+4*sl+(nb&1)} offset:{16384 + (nb>>1)*8192 + st*4096 + e*512}"
        gemm_loop(A, 4, list(range(8)), 16, 3, 0, acc, XB, lambda p, nb: WB(nb), xr1, wr1, swapped=(4, 5), bar_gap=int(os.environ.get("BG1", "8")), name="p1c")
    A("C_p1a:")
    fstamp(A, "p1a")
    if MS: compute_loop(A, 4, 8, 2, MS, acc, XB, WB, xread, wread, advance, swapped=(4, 5), name="p1a", nbs=[2, 3, 4, 5], skip_pre=True, bar_after=1)
    fstamp(A, "p1b")
    def pack(t, a0, a1):
        A(f"v_cvt_pk_bf16_f32 v{t}, v{a0}, v{a0+1}"); A(f"v_cvt_pk_bf16_f32 v{t+1}, v{a0+2}, v{a0+3}")
        A(f"v_cvt_pk_bf16_f32 v{t+2}, v{a1}, v{a1+1}"); A(f"v_cvt_pk_bf16_f32 v{t+3}, v{a1+2}, v{a1+3}")
    for nb in ((0, 1, 6, 7) if MS else ()):
        for e in range(2): A(wread(0, nb, e, WB(nb) + 2*e))
    gst = []; lst = []
    for u in range(2):
        for a in range(2):
            t = acc(2*u + a, 2)
            pack(t, t, acc(2*u + a, 3))
            lst.append(f"ds_write_b128 v21, {v(t,4)} offset:{kvslot(0) + u*4096 + a*1024}")
            gst.append(f"buffer_store_dwordx4 {v(t,4)}, v21, {WS}, s{46 + u} offen offset:{a*1024} sc1")
        for nbv in range(2):
            t = acc(2*u + nbv, 3)
            pack(t, acc(2*u, 4+nbv), acc(2*u+1, 4+nbv))
            lst.append(f"ds_write_b128 v22, {v(t,4)} offset:{kvslot(0) + u*4096 + 2048 + nbv*128}")
            gst.append(f"buffer_store_dwordx4 {v(t,4)}, v22, {WS}, s{46 + u} offen offset:{2048 + nbv*128} sc1")
    for u in range(2):
        for i in range(4): A(f"v_permlane16_swap_b32 v{acc(2*u,2)+i}, v{acc(2*u+1,2)+i}")
    pace = int(os.environ.get("PACE", "4"))
    un = [dict() for _ in range(MS)]
    for i, g_ in enumerate(gst):
        if MS == 0: A(g_); continue
        pos = min(i * pace, MS * 32 - 8 + i)
        un[pos // 32][pos % 32] = g_
    if MS: compute_loop(A, 4, 8, 2, MS, acc, XB, WB, xread, wread, advance, name="p1b", nbs=[0, 1, 6, 7], skip_pre=True, bar_after=1, unroll=un)
    A("C_p1end:")
    fstamp(A, "p1end")
    SB = lambda i: 64 + 16 * (i & 3)
    O = lambda q: 128 + 16 * q
    Lr = lambda q: 160 + 4 * q
    Q = lambda q, b: 168 + 8 * q + 4 * b
    KB = lambda p, b: 184 + 8 * p + 4 * b
    VB = lambda p, b: 200 + 8 * p + 4 * b
    ONES, IDX, VBASE, VL16, H1P, VB0 = 216, 220, 10, 11, 224, 17
    for l in lst: A(l)
    for tb in range(4): A(f"ds_read_b128 {v(24+4*tb,4)}, v18 offset:{tb*256}")
    A("ds_read_b128 v[40:43], v19")
    A("ds_read_b128 v[44:47], v19 offset:64")
    A("ds_read_b32 v20, v20")
    A("s_waitcnt lgkmcnt(0)")
    A("s_barrier")
    A("v_readfirstlane_b32 s12, v20")
    for tb in range(4):
        a0 = acc(tb, 0)
        for r in range(0, 8, 2): A(f"v_pk_mul_f32 {v(a0+r,2)}, {v(a0+r,2)}, s[38:39] op_sel_hi:[1,0]")
        pack(Q(tb >> 1, tb & 1), a0, a0 + 4)
    try_flag(A, 48)
    for tb in range(4):
        a0 = acc(tb, 6); t = H1P + 4 * tb
        gelu_pk(A, [a0 + 2*i for i in range(4)], [40 + 2*i for i in range(4)], 24 + 4*tb, [48 + 2*i for i in range(4)], [t + i for i in range(4)])
        if tb in (0, 3):
            for r in range(4): A(f"v_cndmask_b32 v{t+r}, 0, v{t+r}, {'s[42:43]' if tb == 0 else 's[44:45]'}")
        try_flag(A, 48)
    for q in range(2):
        for i in range(4): A(f"v_permlane16_swap_b32 v{Q(q,0)+i}, v{Q(q,1)+i}")
    A(f"""v_lshlrev_b32 v{VL16}, 4, v2
          s_lshl_b32 s3, s20, 14
          v_add_u32 v{VB0}, s3, v{VL16}
          s_mov_b32 s21, {kvslot(0)}
          v_add_u32 v{VBASE}, s21, v{VB0}""")
    rdK = lambda t: [Item(f"ds_read_b128 {v(KB(t&1,b),4)}, v{VBASE} offset:{(t&3)*4096 + b*1024}", gives=("K", t&1, b)) for b in range(2)]
    rdV = lambda t: [Item(f"ds_read_b128 {v(VB(t&1,b),4)}, v{VBASE} offset:{(t&3)*4096 + 2048 + b*1024}", gives=("V", t&1, b)) for b in range(2)]
    pre = [Item("", gives=("V", 1, 0)), Item("", gives=("V", 1, 1))] + rdK(0) + rdV(0)
    for it in pre[2:]: A(it.text)
    A(f"""v_and_b32 v5, 7, v2
          v_cmp_eq_u32 vcc, 0, v5
          v_cmp_eq_u32 s[42:43], 4, v5
          v_mov_b32 v5, 0x3f803f80
          v_mov_b32 v{IDX}, 0xdddddddd
          v_cndmask_b32 v{ONES}, 0, v5, vcc
          v_cndmask_b32 v{ONES+1}, 0, v5, vcc
          v_cndmask_b32 v{ONES+2}, 0, v5, s[42:43]
          v_cndmask_b32 v{ONES+3}, 0, v5, s[42:43]""")
    for i in range(0, 40, 2): A(f"v_mov_b64 {v(128+i,2)}, 0")
    for i in range(0, 16, 2): A(f"v_mov_b64 {v(SB(3)+i,2)}, 0")
    for i in range(0, 8, 2): A(f"v_mov_b64 {v(VB(1,0)+i,2)}, 0")
    def qk(u):
        t, q = u >> 1, u & 1
        d = SB(u)
        return [Item(f"v_mfma_f32_32x32x16_bf16 {v(d,16)}, {v(KB(t&1,0),4)}, {v(Q(q,0),4)}, 0", needs=[("K", t&1, 0), ("K", t&1, 1)]),
                Item(f"v_mfma_f32_32x32x16_bf16 {v(d,16)}, {v(KB(t&1,1),4)}, {v(Q(q,1),4)}, {v(d,16)}")]
    def pv(u, need=True):
        t, q = u >> 1, u & 1
        d = SB(u)
        r = []
        for b in range(2):
            r.append(Item(f"v_smfmac_f32_32x32x32_bf16 {v(O(q),16)}, {v(VB(t&1,b),4)}, {v(d+8*b,8)}, v{IDX}", needs=[("V", t&1, b)] if need else []))
            r.append(Item(f"v_smfmac_f32_16x16x64_bf16 {v(Lr(q),4)}, {v(ONES,4)}, {v(d+8*b,8)}, v{IDX}"))
        return r
    A("s_waitcnt lgkmcnt(2)")
    for it in qk(0): A(it.text)
    fstamp(A, "att0")
    A("s_nop 9")
    body = []
    for u in range(8):
        e = [Item(f"v_exp_f32 v{SB(u)+i}, v{SB(u)+i}") for i in range(16)]
        m = qk(u + 1) + pv(u - 1)
        t1 = (u >> 1) + 1
        extra = rdK(t1) if (u & 1) == 0 else rdV(t1)
        if u == 5: extra += [Item(f"s_add_u32 s21, s21, {KVS}"), Item(f"s_cmp_eq_u32 s21, {3*KVS}"), Item("s_cselect_b32 s21, 0, s21"), Item(f"v_add_u32 v{VBASE}, s21, v{VB0}")]
        if u == 7: extra += [Item("s_sub_u32 s40, s40, 1"), Item("s_cmp_lg_u32 s40, 0")]
        cnt = [3, 3, 3, 1, 3, 3]
        k = 0
        for mi in range(6):
            body.append(m[mi])
            if mi == 0 and u == 6: body.append(Item("s_barrier", drain=True))
            if extra: body.append(extra.pop(0))
            for j in range(cnt[mi]):
                body.append(e[k]); k += 1
    lines = insert_lgkm_waits(pre, body, maxcnt=15)
    try_flag(A, 48, block=True)
    nq = 0
    h1u = [int(x) for x in os.environ.get("H1U", "2,3,4,5").split(",")]
    for l in lines:
        if l.startswith(("s_sub_u32 s40", "s_cmp_lg_u32 s40")): continue
        A(l)
        if l.startswith("v_mfma") and l.endswith(", 0"):
            for tb in range(4):
                if h1u[tb] == nq: A(f"buffer_store_dwordx4 {v(H1P+4*tb,4)}, v{56+tb}, {WS}, s34 offen sc1")
            nq += 1
    A(f"s_add_u32 s48, s23, {F_H1}")
    A("s_mov_b32 s49, 1")
    try_flag(A, 48, lane=31)
    fstamp(A, "st0end")
    L = A.label("aloop"); Lx = A.label("aexit")
    A("s_mov_b32 s40, 1")
    A("s_mov_b32 s41, 14")
    A(f"{L}:")
    for l in lines: A(l)
    A(f"s_cbranch_scc1 {L}")
    A(f"""s_cmp_eq_u32 s41, 0
          s_cbranch_scc1 {Lx}""")
    try_flag(A, 48, block=True, lane=31)
    fstamp(A, "st1end")
    A(f"""s_mov_b32 s40, s41
          s_mov_b32 s41, 0
          s_branch {L}""")
    A(f"{Lx}:")
    A("C_attend:")
    for it in pv(7, False): A(it.text)
    fstamp(A, "attend")
    A(f"""v_and_b32 v5, 31, v2
          s_lshl_b32 s3, s19, 8
          s_add_u32 s3, s3, {L_GT}
          v_lshl_add_u32 v5, v5, 2, s3
          ds_read_b32 v12, v5
          ds_read_b32 v13, v5 offset:128
          s_mul_i32 s28, s16, {HO_PANEL}
          s_add_u32 s28, s28, {WS_HO}
          s_lshl_b32 s3, s17, 1
          s_add_u32 s3, s3, s20
          s_add_u32 s3, s3, 112
          s_lshl_b32 s3, s3, 13
          s_add_u32 s29, s28, s3
          s_lshl_b32 s3, s19, 12
          s_add_u32 s29, s29, s3
          v_bfe_u32 v6, v2, 4, 1
          v_lshlrev_b32 v6, 10, v6
          v_lshl_add_u32 v6, v3, 4, v6
          v_lshrrev_b32 v7, 5, v2
          v_lshl_add_u32 v16, v7, 8, v6""")
    Lslow = A.label("slow"); Lfin = A.label("fin")
    A(f"""v_min_f32 v8, v{Lr(0)}, v{Lr(1)}
          v_max_f32 v5, v{Lr(0)}, v{Lr(1)}
          v_pk_mul_f32 v[6:7], v[128:129], 0 op_sel_hi:[1,0]""")
    for i in range(2, 32, 2): A(f"v_pk_fma_f32 v[6:7], {v(128+i,2)}, 0, v[6:7] op_sel_hi:[1,0,1]")
    A(f"""v_add_f32 v7, v6, v7
          v_fmac_f32 v7, 0, v{Lr(0)}
          v_fmac_f32 v7, 0, v{Lr(1)}
          v_cmp_le_f32 vcc, {hexf(2.0**-20)}, v8
          s_mov_b64 s[44:45], vcc
          v_cmp_ge_f32 vcc, {hexf(2.0**60)}, v5
          s_and_b64 s[44:45], s[44:45], vcc
          v_cmp_eq_f32 vcc, 0, v7
          s_and_b64 s[44:45], s[44:45], vcc
          s_cmp_eq_u64 s[44:45], -1""")
    if "forceslow" in EXP: A(f"s_branch {Lslow}")
    A(f"s_cbranch_scc0 {Lslow}")
    A(f"{Lfin}:")
    A(f"""v_rcp_f32 v6, v{Lr(0)}
          v_rcp_f32 v7, v{Lr(1)}
          s_waitcnt lgkmcnt(0)
          v_mul_f32 v6, v6, v12
          v_mul_f32 v7, v7, v13""")
    for q in range(2):
        for i in range(0, 16, 2): A(f"v_pk_mul_f32 {v(O(q)+i,2)}, {v(O(q)+i,2)}, v[6:7] op_sel:[0,{q}] op_sel_hi:[1,{q}]")
        for b in range(2):
            t = 32 + 8 * q + 4 * b
            for i in range(4): A(f"v_cvt_pk_bf16_f32 v{t+i}, v{O(q)+8*b+2*i}, v{O(q)+8*b+2*i+1}")
            A(f"buffer_store_dwordx4 {v(t,4)}, v16, {WS}, s29 offen offset:{q*2048 + b*512} sc1")
    acc = lambda tb, nb: ACC + 4 * (tb * 7 + nb)
    A(f"""s_lshl_b32 s3, s19, 12
          v_add_u32 v14, s3, v{VL16}
          v_mov_b32 v9, v{VL16}
          v_lshrrev_b32 v5, 2, v3
          v_and_b32 v6, 3, v3
          v_lshl_add_u32 v7, v4, 2, v5
          v_mul_u32_u24 v7, 448, v7
          v_add_u32 v7, 16384, v7
          v_and_b32 v8, 1, v4
          v_lshl_add_u32 v5, v6, 3, v7
          s_lshl_b32 s3, s20, 8
          v_add_u32 v5, s3, v5
          v_lshl_add_u32 v15, v8, 5, v5
          v_xor_b32 v18, 1, v8
          v_lshl_add_u32 v18, v18, 5, v5
          v_and_b32 v5, 1, v6
          v_xor_b32 v5, v5, v8
          v_lshl_add_u32 v7, v5, 5, v7
          v_lshrrev_b32 v5, 1, v6
          v_lshl_add_u32 v7, v5, 3, v7
          s_lshl_b32 s3, s20, 4
          s_add_u32 s3, s3, 192
          v_add_u32 v17, s3, v7
          v_mov_b32 v16, v18
          s_mov_b32 s21, {L3 + S3}""")
    for sl in range(3):
        for i in range(4): A(f"v_add_u32 v{48+4*sl+i}, {L3 + sl*S3}, v{14+i}")
    for i in range(0, 112, 2): A(f"v_mov_b64 {v(ACC+i,2)}, 0")
    xread = lambda sl, st, tb, dst: f"ds_read_b128 {v(dst,4)}, v{48+4*sl} offset:{st*8192 + tb*1024}"
    wread = lambda sl, st, nb, e, dst: f"ds_read_b64_tr_b16 {v(dst,2)}, v{48+4*sl+(3 if nb == 6 else 1+(nb&1))} offset:{(0 if nb == 6 else (nb>>1)*64) + (st*32 + e*16)*448}"
    fstamp(A, "p3rdy")
    A("s_barrier")
    fstamp(A, "P3")
    def flagO():
        A(f"""s_add_u32 s3, s23, {F_O}
              s_waitcnt vmcnt(0)""")
        flag_store(A, 3)
    gemm_loop(A, 4, list(range(7)), 16, 3, 1, acc, XB, lambda p, nb: WB(nb), xread, wread, bar_gap=int(os.environ.get("BG3", "8")), name="p3c", hooks={3: flagO})
    A("C_p3end:")
    fstamp(A, "p3end")
    A(f"""s_lshl_b32 s3, s19, 10
          v_lshl_add_u32 v5, v3, 4, s3
          v_add_u32 v5, {L_ST}, v5
          s_lshl_b32 s3, s20, 9
          v_lshl_add_u32 v6, v4, 4, s3
          v_add_u32 v6, {L_CS}, v6
          v_and_b32 v7, 1, v4
          v_lshlrev_b32 v7, 6, v7
          v_lshrrev_b32 v8, 1, v4
          v_lshl_add_u32 v7, v8, 4, v7
          s_lshl_b32 s3, s20, 5
          s_add_u32 s3, s3, {L_CS + 384}
          v_add_u32 v7, s3, v7
          s_waitcnt lgkmcnt(0)""")
    for tb in range(4): A(f"ds_read_b128 {v(16+4*tb,4)}, v5 offset:{tb*256}")
    for nb in range(6): A(f"ds_read_b128 {v(32+4*nb,4)}, v6 offset:{nb*64}")
    A("ds_read_b128 v[56:59], v7")
    A(f"""s_mul_i32 s29, s17, {7*8192}
          s_add_u32 s29, s29, s28
          s_lshl_b32 s3, s19, 12
          s_add_u32 s29, s29, s3
          s_add_u32 s33, s29, {3*8192}
          s_lshl_b32 s3, s20, 9
          s_add_u32 s33, s33, s3
          s_lshl_b32 s3, s20, 15
          s_add_u32 s29, s29, s3
          s_add_u32 s30, s29, 8192
          s_add_u32 s31, s29, 16384
          v_and_b32 v5, 1, v4
          v_lshlrev_b32 v5, 10, v5
          v_lshl_add_u32 v5, v8, 8, v5
          v_lshl_add_u32 v8, v3, 4, v5
          s_waitcnt lgkmcnt(0)""")
    k = 0
    for tb in range(4):
        st = 16 + 4 * tb
        for pr in range(3):
            a0 = acc(tb, 2 * pr); o = 72 + 4 * (k % 6); k += 1
            gelu_pk(A, [a0 + 2*i for i in range(4)], [32 + 8*pr + 2*i for i in range(4)], st, [64 + 2*i for i in range(4)], [o + i for i in range(4)])
            A(f"buffer_store_dwordx4 {v(o,4)}, v9, {WS}, s{29+pr} offen offset:{tb*1024} sc1")
        a0 = acc(tb, 6); o = 96 + 4 * (tb >> 1) + 2 * (tb & 1)
        gelu_pk(A, [a0, a0 + 2], [56, 58], st, [64, 66], [o, o + 1])
        if tb & 1:
            o = 96 + 4 * (tb >> 1)
            A(f"""s_nop 1
                  v_permlane16_swap_b32 v{o}, v{o+2}
                  v_permlane16_swap_b32 v{o+1}, v{o+3}
                  buffer_store_dwordx4 {v(o,4)}, v8, {WS}, s33 offen offset:{(tb>>1)*2048} sc1""")
    acc = lambda tb, nb: ACC + 4 * (tb * 4 + nb)
    A(f"""s_lshr_b32 s22, s17, 3
          s_lshl_b32 s3, s19, 12
          s_lshl_b32 s41, s22, 11
          s_add_u32 s3, s3, s41
          v_add_u32 v16, s3, v9
          v_xor_b32 v17, 2048, v16
          v_lshrrev_b32 v5, 2, v3
          v_and_b32 v6, 3, v3
          v_lshl_add_u32 v7, v4, 2, v5
          v_and_b32 v8, 7, v7
          v_lshlrev_b32 v7, 8, v7
          v_lshl_add_u32 v7, v6, 3, v7
          s_lshl_b32 s3, s20, 2
          v_xor_b32 v8, s3, v8
          v_lshl_add_u32 v18, v8, 5, v7
          v_xor_b32 v19, 32, v18
          v_xor_b32 v20, 64, v18
          v_xor_b32 v21, 96, v18
          s_mov_b32 s21, 0""")
    for i in range(6): A(f"v_add_u32 v{10+i}, 0x10000, v{16+i}")
    for i in range(0, 64, 2): A(f"v_mov_b64 {v(ACC+i,2)}, 0")
    xread = lambda sl, st, tb, dst: f"ds_read_b128 {v(dst,4)}, v{(10 if sl >> 1 else 16)+(tb>>1)} offset:{(sl&1)*S4 + st*8192 + (tb&1)*1024}"
    wread = lambda sl, st, nb, e, dst: f"ds_read_b64_tr_b16 {v(dst,2)}, v{(12 if sl >> 1 else 18)+nb} offset:{(sl&1)*S4 + 16384 + st*8192 + e*4096}"
    fstamp(A, "p4rdy")
    A("s_barrier")
    fstamp(A, "P4")
    A(f"s_add_u32 s48, s23, {F_H2}")
    A("s_mov_b32 s49, 1")
    def resid():
        try_flag(A, 48, block=True, lane=29)
        fstamp(A, "p4it4")
        A(f"""s_lshl_b32 s3, s19, 6
              s_lshl_b32 s42, s22, 5
              s_add_u32 s42, s42, s3
              s_lshl_b32 s29, s16, 18
              s_and_b32 s3, s17, 7
              s_lshl_b32 s3, s3, 15
              s_add_u32 s29, s29, s3
              s_lshl_b32 s3, s20, 14
              s_add_u32 s29, s29, s3
              s_lshl_b32 s3, s42, 6
              s_add_u32 s29, s29, s3
              s_add_u32 s29, s29, {WS_X1}
              s_add_u32 s30, s29, 8192""")
        for tb in range(2):
            A(f"buffer_load_dwordx4 {v(32+8*tb,4)}, v9, {WS}, s29 offen offset:{tb*1024} sc1")
            A(f"buffer_load_dwordx4 {v(36+8*tb,4)}, v9, {WS}, s30 offen offset:{tb*1024} sc1")
    WB4 = lambda p, nb: WB0 + 16*p + 4*nb
    NF = 36 - DL
    gemm_loop(A, 4, [0, 1, 2, 3], NF, 4, 0, acc, XB, WB4, xread, wread, wdb=True, bar_gap=int(os.environ.get("BG4", "2")), name="p4c",
              peel={0: lambda: try_flag(A, 48, lane=29), 1: lambda: try_flag(A, 48, lane=29), 2: lambda: try_flag(A, 48, lane=29), 3: resid})
    A("C_p4end:")
    fstamp(A, "p4full")
    A(f"""s_lshl_b32 s3, s16, 4
          s_add_u32 s3, s3, s17
          s_lshl_b32 s29, s3, 14
          s_lshl_b32 s41, s18, 12
          s_add_u32 s29, s29, s41
          s_add_u32 s29, s29, {WS_EX}
          s_lshl_b32 s48, s3, 9
          s_lshl_b32 s41, s18, 7
          s_add_u32 s48, s48, s41
          s_add_u32 s48, s48, {F_EX}
          s_mov_b32 s49, 1""")
    for i in range(4):
        a0 = ACC + 32 + 8 * i
        pack(192 + 4 * i, a0, a0 + 4)
        A(f"buffer_store_dwordx4 {v(192+4*i,4)}, v9, {WS}, s29 offen offset:{i*1024} sc1")
    A(f"""s_lshl_b32 s3, s42, 2
          s_add_u32 s3, s3, {L_GT}
          v_lshl_add_u32 v5, v3, 2, s3
          ds_read_b32 v48, v5
          ds_read_b32 v49, v5 offset:64""")
    R = 208
    def prep0():
        A(f"""v_mov_b32 v8, 0xffff0000
              v_sub_f32 v48, 1.0, v48
              v_sub_f32 v49, 1.0, v49
              v_cvt_pk_bf16_f32 v48, v48, v48
              v_cvt_pk_bf16_f32 v49, v49, v49
              v_and_b32 v48, v8, v48
              v_and_b32 v49, v8, v49
              s_waitcnt vmcnt(4)""")
        for i in range(16):
            A(f"v_lshlrev_b32 v{R+2*i}, 16, v{32+i}")
            A(f"v_and_b32 v{R+2*i+1}, v8, v{32+i}")
    def prep1():
        for i in range(16):
            tb = i >> 3
            A(f"v_pk_mul_f32 {v(R+2*i,2)}, {v(R+2*i,2)}, v[48:49] op_sel:[0,{tb}] op_sel_hi:[1,{tb}]")
        srd(A, 24, P_OUT, P_OUT + 1, S * D * 2)
        A(f"""v_lshlrev_b32 v5, 11, v3
              v_and_b32 v6, 1, v4
              v_lshl_add_u32 v5, v6, 5, v5
              v_lshrrev_b32 v6, 1, v4
              v_lshl_add_u32 v5, v6, 4, v5
              s_lshl_b32 s41, s16, 7
              s_add_u32 s41, s41, s42
              s_lshl_b32 s41, s41, 11
              s_and_b32 s3, s17, 7
              s_lshl_b32 s3, s3, 8
              s_add_u32 s41, s41, s3
              s_lshl_b32 s3, s20, 7
              s_add_u32 s41, s41, s3
              s_add_u32 s43, s41, {16*2048}
              s_lshl_b32 s3, s18, 12
              s_add_u32 s3, s3, {L_EX}
              v_add_u32 v6, s3, v9""")
    tf = lambda: try_flag(A, 48, lane=28)
    if DL:
        sq = {k: tf for k in range(2 * DL - 1)}
        if PROF:
            for k in range(2, 2 * DL - 1): sq[k] = lambda k=k: (tf(), fstamp(A, f"h{k}"))
        sq[0] = lambda: (tf(), prep0(), tf())
        if DL > 1: sq[1] = lambda: (tf(), prep1(), tf())
        gemm_loop(A, 2, [0, 1, 2, 3], 2 * DL, 4, NF % 4, acc, XB, WB4, xread, wread, wdb=True, bar_gap=1, name="p4h", skip_pre=True, seq=sq, eager=True, maxcnt=8)
    else:
        A("s_waitcnt lgkmcnt(0)"); prep0()
    if DL <= 1: prep1()
    try_flag(A, 48, block=True, lane=28)
    fstamp(A, "p4end")
    A("s_nop 4")
    for i in range(16): A(f"v_pk_add_f32 {v(ACC+2*i,2)}, {v(ACC+2*i,2)}, {v(R+2*i,2)}")
    A("s_waitcnt lgkmcnt(0)")
    A("s_barrier")
    fstamp(A, "exok")
    for i in range(4): A(f"ds_read_b128 {v(64+4*i,4)}, v6 offset:{i*1024}")
    for i in range(4):
        tb, pr = i >> 1, i & 1
        a0 = ACC + 8 * i; o = 96 + 4 * i
        A(f"s_waitcnt lgkmcnt({3-i})")
        for k in range(4):
            A(f"""v_lshlrev_b32 v22, 16, v{64+4*i+k}
                  v_and_b32 v23, v8, v{64+4*i+k}
                  v_pk_add_f32 {v(a0+2*k,2)}, {v(a0+2*k,2)}, v[22:23]""")
        pack(o, a0, a0 + 4)
        A(f"""s_nop 1
              v_permlane16_swap_b32 v{o}, v{o+2}
              v_permlane16_swap_b32 v{o+1}, v{o+3}
              buffer_store_dwordx4 {v(o,4)}, v5, s[24:27], s{41 if tb == 0 else 43} offen offset:{pr*64}{os.environ.get("OUTF", "")}""")
    fstamp(A, "stored")
    if PROF: A("s_waitcnt vmcnt(0)")
    fstamp(A, "drained")
    fstamp_flush(A, 0)
    if "diag" in EXP:
        Ld = A.label("diag")
        A(f"""s_waitcnt vmcnt(0)
              s_memrealtime s[96:97]
              s_memtime s[98:99]
              s_or_b32 s3, s2, s18
              s_cmp_lg_u32 s3, 0
              s_cbranch_scc1 {Ld}
              s_waitcnt lgkmcnt(0)
              s_sub_u32 s96, s96, s92
              s_sub_u32 s98, s98, s94
              v_mov_b32 v4, s96
              v_mov_b32 v5, s98""")
        srd(A, 24, P_DBG, P_DBG + 1, 256)
        A("buffer_store_dwordx2 v[4:5], off, s[24:27], 0 offset:16")
        A(f"{Ld}:")
    A("s_endpgm")
    A("C_slow:")
    A(f"{Lslow}:")
    A("s_waitcnt lgkmcnt(0)")
    for i in range(0, 40, 2): A(f"v_mov_b64 {v(128+i,2)}, 0")
    A(f"""v_mov_b32 v14, 0xff7fffff
          v_mov_b32 v15, 0xff7fffff
          s_lshl_b32 s41, s17, 19
          s_lshl_b32 s3, s20, 14
          s_add_u32 s41, s41, s3
          s_add_u32 s41, s41, {WS_KV}
          s_mov_b32 s40, 64""")
    Ls = A.label("sloop")
    A(f"{Ls}:")
    for b in range(2): A(f"buffer_load_dwordx4 {v(KB(0,b),4)}, v{VL16}, {WS}, s41 offen offset:{b*1024} sc1")
    for b in range(2): A(f"buffer_load_dwordx4 {v(VB(0,b),4)}, v{VL16}, {WS}, s41 offen offset:{2048 + b*1024} sc1")
    A("s_waitcnt vmcnt(0)")
    for q in range(2):
        for it in qk(q): A(it.text)
    A("s_nop 15")
    for q in range(2):
        d = SB(q); m = 14 + q
        A(f"v_max3_f32 v6, v{d}, v{d+1}, v{m}")
        for i in range(2, 16, 2): A(f"v_max3_f32 v6, v{d+i}, v{d+i+1}, v6")
        A(f"""v_mov_b32 v5, v6
              s_nop 1
              v_permlane32_swap_b32 v5, v6
              s_nop 1
              v_max_f32 v6, v6, v5
              v_sub_f32 v5, v{m}, v6
              v_exp_f32 v5, v5
              v_mov_b32 v{m}, v6""")
        for i in range(16): A(f"v_sub_f32 v{d+i}, v{d+i}, v6")
        for i in range(16): A(f"v_exp_f32 v{d+i}, v{d+i}")
        for i in range(16): A(f"v_mul_f32 v{O(q)+i}, v{O(q)+i}, v5")
        for i in range(4): A(f"v_mul_f32 v{Lr(q)+i}, v{Lr(q)+i}, v5")
        A("s_nop 1")
        for it in pv(q, False): A(it.text)
    A(f"""s_nop 15
          s_sub_u32 s40, s40, 1
          s_and_b32 s3, s40, 3
          s_cmp_eq_u32 s3, 0
          s_cselect_b32 s3, 16384, 0
          s_add_u32 s41, s41, s3
          s_add_u32 s41, s41, 4096
          s_cmp_lg_u32 s40, 0
          s_cbranch_scc1 {Ls}
          s_branch {Lfin}""")
```
